```python
import torch

def _softmax(x, axis=-1):
    return torch.softmax(x, dim=axis)
def _gelu(x):
    return torch.nn.functional.gelu(x, approximate="tanh")
def _silu(x):
    return torch.nn.functional.silu(x)
def _sigmoid(x):
    return torch.sigmoid(x)
def _layernorm(x, axis=-1, eps=1e-5):
    m = x.mean(dim=axis, keepdim=True)
    v = x.var(dim=axis, keepdim=True, unbiased=False)
    return (x - m) / torch.sqrt(v + eps)
def _scatter_add(tgt, idx, src, axis=0):
    return tgt.clone().index_add_(axis, idx, src)
def _segment_sum(src, seg, n):
    out = torch.zeros((n,) + src.shape[1:], dtype=src.dtype)
    return out.index_add_(0, seg, src)
def _pad(x, pw):
    flat = tuple(v for pair in reversed(pw) for v in pair)
    return torch.nn.functional.pad(x, flat)

kernel_name = 'parallel_sum__sliding_local_dilated__dense_activation_gelu__prompt'

def setup_inputs():

    _w = (lambda a: (lambda t: t.to(torch.bfloat16) if t.is_floating_point() else t)(torch.as_tensor(a)))
    def _A_setup():
        B, S, D = 1, 2048, 1024
        return {
            "x": _w((lambda *s: torch.randn(*s, dtype=torch.bfloat16) * 0.05)(B, S, D)),
            "wqkv": _w((lambda *s: torch.randn(*s, dtype=torch.bfloat16) * 0.05)(D, 3 * D)),
            "wo": _w((lambda *s: torch.randn(*s, dtype=torch.bfloat16) * 0.05)(D, D)),
        }
    _A_in = _A_setup()

    def _B_setup():
        B, S, D, F = 1, 2048, 1024, 3584
        return {
            "x": _w((lambda *s: torch.randn(*s, dtype=torch.bfloat16) * 0.05)(B, S, D)),
            "w1": _w((lambda *s: torch.randn(*s, dtype=torch.bfloat16) * 3.2)(D, F) * (D ** -0.5)),
            "b1": _w((lambda *s: torch.randn(*s, dtype=torch.bfloat16) * 3.2)(F) * 0.01),
            "w2": _w((lambda *s: torch.randn(*s, dtype=torch.bfloat16) * 0.4)(F, D) * (F ** -0.5)),
            "b2": _w((lambda *s: torch.randn(*s, dtype=torch.bfloat16) * 0.4)(D) * 0.01),
        }
    _B_in = _B_setup()

    return {
        "A_x": _A_in["x"],
        "A_wqkv": _A_in["wqkv"],
        "A_wo": _A_in["wo"],
        "B_x": _B_in["x"],
        "B_w1": _B_in["w1"],
        "B_b1": _B_in["b1"],
        "B_w2": _B_in["w2"],
        "B_b2": _B_in["b2"],
    }

def reference(A_x, A_wqkv, A_wo, B_x, B_w1, B_b1, B_w2, B_b2):
    def _A_ref(x, wqkv, wo):
        B, S, D = x.shape
        H = 32; Dh = D // H
        W, dil = 8, 2
        qkv = (lambda x, *d: x.permute(*d))((x @ wqkv).reshape(B, S, 3, H, Dh), 2, 0, 3, 1, 4)
        q, k, v = qkv[0], qkv[1], qkv[2]
        scale = Dh ** -0.5
        pos = torch.arange(S)
        off = torch.arange(W) * dil
        idx = pos[:, None] - off[None, :]
        mask = idx >= 0
        idx_c = torch.where(mask, idx, 0).reshape(-1)
        kg = k[:, :, idx_c, :].reshape(B, H, S, W, Dh)
        vg = v[:, :, idx_c, :].reshape(B, H, S, W, Dh)
        logits = torch.einsum("bhsd,bhswd->bhsw", q, kg) * scale
        logits = torch.where(mask[None, None, :, :], logits, -1e9)
        attn = _softmax(logits, axis=-1)
        o = torch.einsum("bhsw,bhswd->bhsd", attn, vg)
        return (lambda x, *d: x.permute(*d))(o, 0, 2, 1, 3).reshape(B, S, D) @ wo

    def _B_ref(x, w1, b1, w2, b2):
        h = torch.einsum("bsd,df->bsf", x, w1) + b1
        h = _gelu(h)
        return torch.einsum("bsf,fd->bsd", h, w2) + b2

    x = A_x
    xn = _layernorm(x, axis=-1)
    return x + _A_ref(xn, A_wqkv, A_wo) + _B_ref(xn, B_w1, B_b1, B_w2, B_b2)
```

```python
class Asm:
    def __init__(self):
        self.lines = []
        self._lab = 0
    def e(self, s):
        for ln in s.strip('\n').split('\n'):
            self.lines.append(' ' + ln.strip())
    def raw(self, s):
        self.lines.append(s)
    def label(self, name):
        self.lines.append(name + ':')
    def newlabel(self, p='L'):
        self._lab += 1
        return '%s_%d' % (p, self._lab)
    def text(self):
        return '\n'.join(self.lines) + '\n'
    def srd(self, d, b, nbytes):
        self.e('s_mov_b32 s%d, s%d' % (d, b))
        self.e('s_and_b32 s%d, s%d, 0xffff' % (d + 1, b + 1))
        self.e('s_mov_b32 s%d, 0x%x' % (d + 2, nbytes))
        self.e('s_mov_b32 s%d, 0x00020000' % (d + 3))

def kernel_header(name):
    return ('.globl %s\n.p2align 8\n.type %s,@function\n%s:\n' % (name, name, name))

def kernel_desc(name, nvgpr, accum_offset, nsgpr=102):
    return ('''.p2align 6
.amdhsa_kernel %s
  .amdhsa_next_free_vgpr %d
  .amdhsa_next_free_sgpr %d
  .amdhsa_accum_offset %d
  .amdhsa_group_segment_fixed_size 0
  .amdhsa_kernarg_size 88
  .amdhsa_user_sgpr_count 2
  .amdhsa_user_sgpr_kernarg_segment_ptr 1
  .amdhsa_system_sgpr_workgroup_id_x 1
  .amdhsa_float_denorm_mode_32 3
.end_amdhsa_kernel
''' % (name, nvgpr, nsgpr, accum_offset))

def build_file(launches, kernels, comment=''):
    out = []
    for ln in comment.strip('\n').split('\n'):
        if ln:
            out.append('; ' + ln)
    for k, g, b, lds in launches:
        out.append('; @launch kernel=%s grid=(%d,1,1) block=(%d,1,1) lds=%d' % (k, g, b, lds))
    out.append('.amdgcn_target "amdgcn-amd-amdhsa--gfx950"')
    out.append('.text')
    s = '\n'.join(out) + '\n'
    for name, body, nv, ao in kernels:
        s += kernel_header(name) + body
    s += '.section .rodata,"a"\n'
    for name, body, nv, ao in kernels:
        s += kernel_desc(name, nv, ao)
    return s
```

```python
import re
REG = re.compile(r'^(-|abs\()?([vas])(\d+|\[(\d+):(\d+)\])\)?$')
def regs(op):
    op = op.strip()
    if op in ('vcc', 'exec'):
        return {(op, 0), (op, 1)}
    if op in ('vcc_lo', 'exec_lo'): return {(op[:-3], 0)}
    if op in ('vcc_hi', 'exec_hi'): return {(op[:-3], 1)}
    if op == 'm0': return {('m0', 0)}
    m = REG.match(op)
    if not m: return set()
    f = m.group(2)
    if m.group(4) is not None:
        return {(f, i) for i in range(int(m.group(4)), int(m.group(5)) + 1)}
    return {(f, int(m.group(3)))}
TRANS = ('v_exp_f32', 'v_log_f32', 'v_rcp_f32', 'v_rsq_f32', 'v_sqrt_f32', 'v_sin_f32', 'v_cos_f32')
class I:
    pass
def parse(line):
    s = line.split(';')[0].strip()
    if not s or s.endswith(':') or s.startswith('.'):
        return None
    parts = s.split(None, 1)
    op = parts[0]
    rest = parts[1] if len(parts) > 1 else ''
    ops = []; cur = ''; d = 0
    for ch in rest:
        if ch == '[': d += 1
        if ch == ']': d -= 1
        if ch == ',' and d == 0:
            ops.append(cur.strip()); cur = ''
        else: cur += ch
    if cur.strip(): ops.append(cur.strip())
    mods = ''
    if ops:
        last = ops[-1].split(None, 1)
        if len(last) > 1:
            ops[-1] = last[0]; mods = last[1]
    i = I(); i.op = op; i.ops = ops; i.mods = mods; i.text = s
    i.mfma = op.startswith('v_mfma')
    i.valu = op.startswith('v_') and not i.mfma
    i.salu = op.startswith('s_')
    i.vmem = op.startswith(('buffer_', 'global_'))
    i.ds = op.startswith('ds_')
    i.trans = op.replace('_e32', '').replace('_e64', '') in TRANS
    i.dpp = 'dpp' in op or 'row_' in mods or 'quad_perm' in mods
    i.perm = op.startswith('v_permlane')
    i.lds_dma = i.vmem and re.search(r'\blds\b', mods) is not None
    i.w = set(); i.r = set(); i.srcc = set(); i.ab = set(); i.stdata = set()
    R = [regs(o) for o in ops]
    if i.mfma:
        i.w = R[0]; i.ab = R[1] | R[2]; i.srcc = R[3]; i.r = i.ab | i.srcc
        i.passes = 8 if '32x32' in op else 4
    elif i.perm:
        i.w = R[0] | R[1]; i.r = R[0] | R[1]
    elif i.valu:
        i.w = set(R[0])
        start = 1
        if re.match(r'v_(add|sub|subrev|addc|subb)_co', op): i.w |= R[1]; start = 2
        for x in R[start:]: i.r |= x
        if op.startswith(('v_fmac', 'v_dot2c', 'v_pk_fmac')) or i.dpp: i.r |= R[0]
        if op.startswith('v_cmpx'): i.w |= regs('exec')
        if op.startswith('v_writelane'): i.r |= R[0]
    elif i.vmem:
        if op in ('buffer_wbl2', 'buffer_inv'): pass
        elif i.lds_dma:
            for x in R: i.r |= x
            i.r |= {('m0', 0)}
        elif 'load' in op:
            i.w = R[0]
            for x in R[1:]: i.r |= x
        elif 'atomic' in op:
            if op.startswith('global') and len(ops) == 4:
                i.w = R[0]
                for x in R[1:]: i.r |= x
            else:
                for x in R: i.r |= x
                if op.startswith('buffer') and 'sc0' in mods: i.w = R[0]
        else:
            for x in R: i.r |= x
            if 'x4' in op or 'x3' in op:
                i.stdata = R[0] if op.startswith('buffer') else R[1]
    elif i.ds:
        if op.startswith(('ds_read', 'ds_bpermute', 'ds_swizzle', 'ds_permute')):
            i.w = R[0]
            for x in R[1:]: i.r |= x
        else:
            for x in R: i.r |= x
    elif i.salu:
        if op.startswith(('s_cmp', 's_cbranch', 's_branch', 's_waitcnt', 's_barrier', 's_nop', 's_endpgm', 's_sleep', 's_setprio', 's_bitcmp')):
            for x in R: i.r |= x
        else:
            if R: i.w = set(R[0])
            for x in R[1:]: i.r |= x
            if 'saveexec' in op: i.w |= regs('exec'); i.r |= regs('exec')
    i.slots = 1
    if op == 's_nop': i.slots = int(ops[0], 0) + 1
    return i
def isv(s): return {x for x in s if x[0] in 'va' and len(x[0]) == 1}
def iss(s): return {x for x in s if x[0] in ('s', 'vcc', 'exec')}
def need(p, c):
    n = 0
    if p.valu:
        wv = isv(p.w); ws = iss(p.w)
        if c.mfma and wv & c.r: n = max(n, 2)
        if c.perm and wv & c.r: n = max(n, 2)
        if c.valu and c.dpp and wv & c.r: n = max(n, 2)
        if c.op.startswith(('v_readlane', 'v_readfirstlane')) and wv & c.r: n = max(n, 1)
        if p.trans and c.valu and wv & c.r: n = max(n, 1)
        if p.trans and (c.vmem or c.ds) and wv & c.r: n = max(n, 1)
        if c.vmem and ws & c.r: n = max(n, 5)
        if c.valu and ws & c.r: n = max(n, 4 if c.op.startswith(('v_readlane', 'v_writelane')) else 2)
        if c.valu and c.op.startswith('v_cndmask') and len(c.ops) == 3 and ('vcc', 0) in ws: n = max(n, 2)
        if c.salu and ws & c.r: n = max(n, 1)
        if ('exec', 0) in p.w:
            if c.mfma or c.perm or c.op.startswith(('v_readlane', 'v_readfirstlane', 'v_writelane')): n = max(n, 4)
            if c.dpp: n = max(n, 5)
        if p.op.startswith('v_dot') and (c.valu or c.mfma or c.vmem or c.ds) and wv & (c.r | c.w):
            if not (c.op == p.op and not (wv & (regs(c.ops[1]) | regs(c.ops[2])))): n = max(n, 3)
    if p.mfma:
        big = {4: 8, 8: 12}[p.passes]
        if c.mfma:
            if p.w & c.ab: n = max(n, big)
            if p.w & c.srcc and not (p.w == c.srcc and p.passes == c.passes): n = max(n, big - 2)
            if p.w & c.w and not (p.w == c.srcc): n = max(n, big)
        elif (c.valu or c.vmem or c.ds) and p.w & (c.r | c.w): n = max(n, big)
        if c.valu and p.srcc & c.w: n = max(n, {4: 3, 8: 7}[p.passes])
    if p.salu and ('m0', 0) in p.w and c.lds_dma: n = max(n, 1)
    if p.stdata and (p.stdata & c.w): n = max(n, 2 if (c.valu or c.mfma) else 1)
    return n
NOSCC = ('s_mov', 's_cselect', 's_cbranch', 's_branch', 's_waitcnt', 's_barrier', 's_nop', 's_endpgm', 's_sleep', 's_setprio', 's_mul_i32', 's_mul_hi', 's_load', 's_mem', 's_getreg', 's_movk')
def lint_scc(text):
    last = None
    for line in text.split('\n'):
        c = parse(line)
        if c is None or not c.salu: continue
        if c.op.startswith('s_addc'): assert last.op.startswith('s_add_u32')
        if c.op.startswith(('s_cselect', 's_cbranch_scc')):
            assert last is not None and last.op.startswith(('s_cmp', 's_bitcmp')), (last and last.text, c.text)
        if not c.op.startswith(NOSCC): last = c
def fix(text, verbose=False):
    lint_scc(text)
    out = []; hist = []
    added = 0
    for line in text.split('\n'):
        c = parse(line)
        if c is None:
            out.append(line); continue
        dist = 0; req = 0
        for p in reversed(hist):
            n = need(p, c)
            if n - dist > req: req = n - dist
            dist += p.slots
            if dist >= 14: break
        if req > 0:
            nop = ' s_nop %d' % (req - 1)
            out.append(nop); hist.append(parse(nop)); added += 1
        out.append(line); hist.append(c)
        if len(hist) > 40: hist = hist[-20:]
    if verbose: print('hazard: inserted %d nops' % added)
    return '\n'.join(out)
```

```python
from hazard import parse
class Stream:
    def __init__(self, asm):
        self.a = asm
        self.ds = []
        self.vm = []
        self.mute = False
    def _out(self, s):
        if not self.mute: self.a.e(s)
    def emit(self, text, tag=None):
        for ln in text.strip().split('\n'):
            i = parse(ln)
            if i is None:
                if not self.mute: self.a.raw(ln.strip())
                continue
            lg = None; vc = None
            touch = i.r | i.w
            for k in range(len(self.ds) - 1, -1, -1):
                if self.ds[k] & touch:
                    lg = len(self.ds) - 1 - k; break
            for k in range(len(self.vm) - 1, -1, -1):
                if self.vm[k][1] & touch:
                    vc = len(self.vm) - 1 - k; break
            self.wait(vc, lg)
            self._out(ln)
            if i.ds: self.ds.append(set(i.w))
            if i.vmem and i.op not in ('buffer_wbl2', 'buffer_inv'): self.vm.append((tag, set(i.w)))
    def wait(self, vc=None, lg=None):
        parts = []
        if vc is not None:
            vc = min(vc, 63)
            if vc < len(self.vm):
                parts.append('vmcnt(%d)' % vc); self.vm = self.vm[len(self.vm) - vc:] if vc else []
        if lg is not None:
            lg = min(lg, 15)
            if lg < len(self.ds):
                parts.append('lgkmcnt(%d)' % lg); self.ds = self.ds[len(self.ds) - lg:] if lg else []
        if parts: self._out('s_waitcnt ' + ' '.join(parts))
    def wait_tag(self, pred, lg=None):
        vc = None
        for k in range(len(self.vm) - 1, -1, -1):
            if pred(self.vm[k][0]):
                vc = len(self.vm) - 1 - k; break
        self.wait(vc, lg)
    def state(self):
        return ([frozenset(x) for x in self.ds], [(t, frozenset(w)) for t, w in self.vm])
```

```python
import sys, struct, math
from asmlib import *
from sched import Stream
import hazard

NAME = 'parallel_sum__sliding_local_dilated__dense_activation_gelu__prompt'
WS_BYTES = 268435456
WS_RSTD = 0
WS_NMR = 8192
WS_FLAG = 0x10000
WS_H = 1 << 20
WS_P = 32 << 20
WS_TS = 250 << 20

def f32(x):
    return '0x%08x' % struct.unpack('<I', struct.pack('<f', x))[0]
def vr(b, n=4, f='v'):
    return '%s[%d:%d]' % (f, b, b + n - 1) if n > 1 else '%s%d' % (f, b)
def ar(b, n=4):
    return vr(b, n, 'a')

class Cfg:
    rot = 0
    stamps = False
    def __init__(self, **kw):
        for k, v in kw.items(): setattr(self, k, v)

def stamp(a, cfg, kid, idx, srd):
    if not cfg.stamps: return
    a.e('s_memrealtime s[%d:%d]' % (64 + 4 * idx, 65 + 4 * idx))
    a.e('s_memtime s[%d:%d]' % (66 + 4 * idx, 67 + 4 * idx))
    a.e('s_waitcnt lgkmcnt(0)')

def stamp_flush(a, cfg, kid, n, srd, wavereg):
    if not cfg.stamps: return
    L = a.newlabel('L_ts')
    a.e('s_lshl_b32 s96, s2, 2\ns_add_u32 s96, s96, s%d\ns_lshl_b32 s96, s96, 6' % wavereg)
    a.e('s_add_u32 s96, s96, %d' % (WS_TS + kid * 65536))
    a.e('s_mov_b64 exec, 1')
    a.e('v_mov_b32 v1, 0')
    for idx in range(n):
        a.e('v_mov_b32 v2, s%d\nv_mov_b32 v3, s%d' % (64 + 4 * idx, 66 + 4 * idx))
        a.e('buffer_store_dwordx2 v[2:3], v1, s[%d:%d], s96 offen offset:%d' % (srd, srd + 3, idx * 8))
        a.e('s_nop 1')

def allreduce64(a, op, x, t):
    d = 'row_mask:0xf bank_mask:0xf'
    for m in ('quad_perm:[1,0,3,2]', 'quad_perm:[2,3,0,1]', 'row_half_mirror', 'row_mirror'):
        for xx in x:
            a.e('%s_dpp v%d, v%d, v%d %s %s' % (op, xx, xx, xx, m, d))
    for sw in ('v_permlane16_swap_b32', 'v_permlane32_swap_b32'):
        for xx, tt in zip(x, t): a.e('v_mov_b32 v%d, v%d' % (tt, xx))
        for xx, tt in zip(x, t): a.e('%s v%d, v%d' % (sw, xx, tt))
        for xx, tt in zip(x, t): a.e('%s v%d, v%d, v%d' % (op, xx, xx, tt))

def gen_k0(cfg):
    a = Asm()
    a.e('s_cmp_ge_u32 s2, 256\ns_cbranch_scc1 K0_end')
    a.e('s_load_dwordx2 s[4:5], s[0:1], 0\ns_load_dwordx2 s[6:7], s[0:1], 80')
    a.e('v_and_b32 v1, 63, v0\nv_lshlrev_b32 v1, 4, v1')
    a.e('v_lshrrev_b32 v2, 6, v0')
    a.e('v_lshl_add_u32 v1, v2, 12, v1')
    a.e('s_lshl_b32 s3, s2, 14')
    a.e('s_waitcnt lgkmcnt(0)')
    a.srd(8, 4, 2048 * 2048)
    a.srd(12, 6, WS_BYTES)
    for k in range(4):
        a.e('buffer_load_dwordx4 %s, v1, s[8:11], s3 offen offset:%d' % (vr(4 + 4 * k), k * 1024))
    a.e('v_lshlrev_b32 v3, 2, v0\nv_mov_b32 v60, 0')
    a.e('s_lshl_b32 s16, s2, 7\ns_add_u32 s16, s16, %d' % WS_FLAG)
    a.e('v_cmp_gt_u32 vcc, 32, v0\ns_and_saveexec_b64 s[18:19], vcc\ns_cbranch_execz K0_nz')
    a.e('buffer_store_dword v60, v3, s[12:15], s16 offen')
    a.label('K0_nz')
    a.e('s_mov_b64 exec, s[18:19]')
    a.e('s_waitcnt vmcnt(0)')
    for k in range(16):
        a.e('v_lshlrev_b32 v%d, 16, v%d' % (20 + 2 * k, 4 + k))
        a.e('v_and_b32 v%d, 0xffff0000, v%d' % (21 + 2 * k, 4 + k))
    for r in range(2):
        b = 20 + 16 * r
        a.e('v_add_f32 v%d, v%d, v%d' % (4 + r, b, b + 1))
        for k in range(2, 16): a.e('v_add_f32 v%d, v%d, v%d' % (4 + r, 4 + r, b + k))
    allreduce64(a, 'v_add_f32', [4, 5], [6, 7])
    for r in range(2):
        a.e('v_mul_f32 v%d, %s, v%d' % (4 + r, f32(1.0 / 1024), 4 + r))
        b = 20 + 16 * r
        for k in range(16): a.e('v_sub_f32 v%d, v%d, v%d' % (b + k, b + k, 4 + r))
        a.e('v_mul_f32 v%d, v%d, v%d' % (8 + r, b, b))
        for k in range(1, 16): a.e('v_fmac_f32 v%d, v%d, v%d' % (8 + r, b + k, b + k))
    allreduce64(a, 'v_add_f32', [8, 9], [6, 7])
    for r in range(2):
        m, v = 4 + r, 8 + r
        a.e('v_mul_f32 v%d, %s, v%d' % (v, f32(1.0 / 1024), v))
        a.e('v_cvt_pk_bf16_f32 v10, v%d, v%d' % (m, v))
        a.e('v_lshlrev_b32 v%d, 16, v10' % m)
        a.e('v_and_b32 v%d, 0xffff0000, v10' % v)
        a.e('v_add_f32 v%d, %s, v%d' % (v, f32(1e-5), v))
        a.e('v_cvt_pk_bf16_f32 v10, v%d, v%d' % (v, v))
        a.e('v_lshlrev_b32 v10, 16, v10')
        a.e('v_sqrt_f32 v10, v10')
        a.e('v_cvt_pk_bf16_f32 v10, v10, v10')
        a.e('v_lshlrev_b32 v10, 16, v10')
        a.e('v_rcp_f32 v%d, v10' % (12 + r))
        a.e('v_mul_f32 v%d, -v%d, v%d' % (14 + r, m, 12 + r))
    a.e('v_lshlrev_b32 v2, 3, v2')
    a.e('s_lshl_b32 s3, s2, 5\ns_add_u32 s17, s3, %d' % WS_NMR)
    a.e('s_mov_b64 exec, 1')
    a.e('buffer_store_dwordx2 v[12:13], v2, s[12:15], s3 offen')
    a.e('buffer_store_dwordx2 v[14:15], v2, s[12:15], s17 offen')
    a.label('K0_end')
    a.e('s_endpgm')
    return hazard.fix(a.text())

XS = 32768
WB = 65536
WSLOT = 28928
W_FFN = 12288
W_HALO = 26624
W_ONES = 28672
EX = WB + 3 * WSLOT
EX_KV = EX + 1024
K1_LDS = 163840
ACC1 = 48
def acc1(t, i): return ACC1 + (t * 4 + i) * 4
def xa(buf, i, s): return buf * 32 + (i * 2 + s) * 4
def ha(s): return 64 + s * 4
def wa(t, s): return 72 + t * 8 + s * 4
EXA = 176
B1A = 192
ST1 = 206
ST2 = 216
EXTRAS = [[2, 6, 7, 12], [3, 8, 9], [4, 10, 11], [5, 0, 1]]

def k1_wread(t, s, j4):
    d = wa(t, s) + 2 * j4
    if t < 6:
        return 'ds_read_b64_tr_b16 %s, v%d offset:%d' % (ar(d, 2), 14 + (t & 1), t * 32 + j4 * 768 + s * 6144)
    return 'ds_read_b64_tr_b16 %s, v16 offset:%d' % (ar(d, 2), W_FFN + (t - 6) * 32 + j4 * 1792 + s * 7168)
def k1_xread(buf, slot, i, s):
    return 'ds_read_b128 %s, v%d offset:%d' % (ar(xa(buf, i, s)), 10 + s, slot * XS + i * 2048)
def k1_mfma(t, d, df, x, w):
    if t in (4, 5): A, B = x, w
    else: A, B = w, x
    return 'v_mfma_f32_16x16x32_bf16 %s, %s, %s, %s' % (vr(d, 4, df), ar(A), ar(B), vr(d, 4, df))

def k1_dmas(w, xslot):
    L = []
    for ii in range(3):
        L.append(('s_add_u32 m0, s34, %d' % ((3 * w + ii) * 1024),
                  'buffer_load_dwordx4 v%d, s[12:15], s32 offen lds' % (3 + ii)))
    for ii in range(4):
        q = 4 * w + ii
        if q < 14:
            L.append(('s_add_u32 m0, s34, %d' % (W_FFN + q * 1024),
                      'buffer_load_dwordx4 v%d, s[16:19], s33 offen lds' % (6 + ii)))
        else:
            L.append(('s_add_u32 m0, s34, %d' % (W_HALO + (q - 14) * 1024),
                      'buffer_load_dwordx4 v%d, s[8:11], s31 offen lds' % (6 + ii)))
    for i in range(8):
        su = 's_mov_b32 m0, %d' % (xslot * XS + w * 8192 + i * 1024)
        if i >= 2:
            if i % 2 == 0: su += '\ns_add_u32 s37, s31, %d' % ((i // 2) * 32768)
            so = 's37'
        else: so = 's31'
        L.append((su, 'buffer_load_dwordx4 v%d, s[8:11], %s offen lds' % (1 + (i & 1), so)))
    return L

def k1_kcalc(cfg):
    if cfg.rot:
        W = cfg.rot
        s = 's_add_u32 s38, s36, s41\ns_and_b32 s38, s38, %d\ns_andn2_b32 s39, s36, %d\ns_or_b32 s38, s38, s39\n' % (W - 1, W - 1)
        k = 's38'
    else:
        s = ''; k = 's36'
    s += 's_lshl_b32 s31, %s, 7\ns_mul_i32 s32, %s, %d\ns_mul_i32 s33, %s, %d' % (k, k, 64 * 6144, k, 64 * 7168)
    return s.split('\n')

def k1_step(S, cfg, w, par):
    order = [(0, 0), (0, 1), (1, 1), (1, 0), (2, 0), (2, 1), (3, 1), (3, 0)]
    ex_at = {}
    for e, t in enumerate(EXTRAS[w]):
        ex_at.setdefault(t if t >= 2 else t + 7, []).append((e, t))
    mf = []; wstart = []
    for t in range(13):
        wstart.append(len(mf))
        for (i, s) in order:
            mf.append(k1_mfma(t, acc1(t, i), 'v', xa(par, i, s), wa(t, s)))
        for (e, te) in ex_at.get(t, []):
            for s in (0, 1):
                mf.append(k1_mfma(te, EXA + 4 * e, 'a', ha(s), wa(te, s)))
    n = len(mf)
    fill = [[] for _ in range(n)]
    pre = [[] for _ in range(n)]
    for t in range(13):
        tt = (t + 2) % 13
        rd = [k1_wread(tt, s, j4) for s in (0, 1) for j4 in (0, 1)]
        if t < 11:
            for k, r in enumerate(rd): fill[wstart[t] + k].append(r)
        else:
            xs = [(0, 0), (0, 1), (1, 1), (1, 0)] if t == 11 else [(2, 0), (2, 1), (3, 1), (3, 0)]
            seq = rd + [k1_xread(1 - par, 1 - par, i, s) for (i, s) in xs]
            for k, r in enumerate(seq): fill[wstart[t] + k].append(r)
    fill[wstart[0] + 4].append('ds_read_b128 %s, v12' % ar(ha(0)))
    fill[wstart[0] + 5].append('ds_read_b128 %s, v13' % ar(ha(1)))
    fill[wstart[1] + 4].append('s_cmp_eq_u32 s34, %d\ns_cselect_b32 s35, %d, s42' % (WB + WSLOT, -2 * WSLOT & 0xffffffff))
    fill[wstart[2] + 4].append('v_add_u32 v12, s35, v12')
    fill[wstart[2] + 5].append('v_add_u32 v13, s35, v13')
    fill[wstart[10] + 4].append('v_add_u32 v14, s35, v14')
    fill[wstart[10] + 5].append('v_add_u32 v15, s35, v15')
    fill[wstart[10] + 6].append('v_add_u32 v16, s35, v16')
    pre[wstart[11]].append('BARRIER')
    dm = k1_dmas(w, par)
    for k, (su, ld) in enumerate(dm):
        p = 3 + (k * (n - 8)) // 15
        fill[p].append(su)
        fill[p + 1].append(('DMA', ld))
    last = 3 + (14 * (n - 8)) // 15 + 1
    kc = ['s_add_u32 s36, s36, 1'] + k1_kcalc(cfg)
    kc += ['s_add_u32 s34, s34, %d' % WSLOT, 's_cmp_eq_u32 s34, %d\ns_cselect_b32 s34, %d, s34' % (WB + 3 * WSLOT, WB)]
    if par == 1:
        kc += ['s_cmp_ge_u32 s36, 16\ns_cselect_b32 s10, 0, s10', 's_cselect_b32 s14, 0, s14\ns_cselect_b32 s18, 0, s18']
    p = last + 1; k = 0
    room = n - p
    per = (len(kc) + room - 1) // room
    while k < len(kc):
        for x in kc[k:k + per]: fill[p].append(x)
        k += per; p += 1
    tagn = ('d', par)
    for k in range(n):
        for x in pre[k]:
            if x == 'BARRIER':
                S.wait_tag(lambda t: t != tagn, lg=0)
                S.emit('s_barrier')
        S.emit(mf[k])
        for x in fill[k]:
            if isinstance(x, tuple): S.emit(x[1], tag=tagn)
            else: S.emit(x)

def pk(op, d, *src, sel=None, selhi=None):
    s = 'v_pk_%s_f32 %s, %s' % (op, vr(d, 2), ', '.join(x if isinstance(x, str) else vr(x, 2) for x in src))
    n = len(src)
    if sel is not None: s += ' op_sel:[%s]' % ','.join(map(str, sel))
    if selhi is not None: s += ' op_sel_hi:[%s]' % ','.join(map(str, selhi))
    return s

def gen_k1(cfg):
    a = Asm()
    a.e('s_cmp_ge_u32 s2, 256\ns_cbranch_scc1 K1_end')
    stamp(a, cfg, 1, 0, 20)
    a.e('s_load_dwordx4 s[44:47], s[0:1], 0')
    a.e('s_load_dwordx4 s[48:51], s[0:1], 32')
    a.e('s_load_dwordx2 s[52:53], s[0:1], 80')
    a.e('v_lshrrev_b32 v17, 6, v0\nv_and_b32 v0, 63, v0')
    a.e('v_readfirstlane_b32 s28, v17')
    a.e('s_and_b32 s29, s2, 1\ns_lshl_b32 s29, s29, 2\ns_lshr_b32 s3, s2, 6\ns_add_u32 s29, s29, s3')
    a.e('s_bfe_u32 s30, s2, 0x20001\ns_lshl_b32 s30, s30, 3\ns_bfe_u32 s3, s2, 0x30003\ns_add_u32 s30, s30, s3')
    if cfg.rot:
        a.e('s_add_u32 s41, s29, s30')
    a.e('s_lshl_b32 s3, s29, 8\ns_lshl_b32 s4, s28, 6\ns_add_u32 s54, s3, s4')
    a.e('v_lshrrev_b32 v18, 3, v0')
    a.e('v_lshrrev_b32 v19, 4, v0')
    a.e('v_and_b32 v20, 7, v0')
    a.e('v_xor_b32 v21, v20, v19')
    a.e('v_xor_b32 v22, 4, v21')
    a.e('v_add_u32 v23, s54, v18')
    a.e('v_lshlrev_b32 v23, 11, v23')
    a.e('v_lshl_add_u32 v1, v21, 4, v23')
    a.e('v_lshl_add_u32 v2, v22, 4, v23')
    a.e('v_add_u32 v2, 0x4000, v2')
    a.e('s_mul_i32 s3, s28, 192\ns_lshl_b32 s4, s30, 6')
    for ii in range(3):
        a.e('v_add_u32 v23, s3, v0')
        if ii: a.e('v_add_u32 v23, %d, v23' % (64 * ii))
        a.e('v_mul_u32_u24 v24, 5462, v23\nv_lshrrev_b32 v24, 16, v24')
        a.e('v_mul_u32_u24 v25, 12, v24\nv_sub_u32 v25, v23, v25')
        a.e('v_lshrrev_b32 v26, 2, v24\nv_and_b32 v26, 2, v26\nv_xor_b32 v25, v25, v26')
        a.e('v_lshrrev_b32 v26, 2, v25\nv_and_b32 v25, 3, v25')
        a.e('v_mul_u32_u24 v24, 6144, v24')
        a.e('v_lshl_add_u32 v24, v26, 11, v24\nv_lshl_add_u32 v24, v25, 4, v24')
        a.e('v_add_u32 v%d, s4, v24' % (3 + ii))
    a.e('s_lshl_b32 s3, s28, 8\ns_mul_i32 s4, s30, 224\ns_and_b32 s5, s30, 1\ns_lshl_b32 s5, s5, 1')
    for ii in range(4):
        a.e('v_add_u32 v23, s3, v0')
        if ii: a.e('v_add_u32 v23, %d, v23' % (64 * ii))
        a.e('v_mul_u32_u24 v24, 4682, v23\nv_lshrrev_b32 v24, 16, v24')
        a.e('v_mul_u32_u24 v25, 14, v24\nv_sub_u32 v25, v23, v25')
        a.e('v_add_u32 v25, s5, v25\nv_subrev_u32 v26, 14, v25\nv_min_u32 v25, v25, v26')
        a.e('v_and_b32 v26, 0x33, v24\nv_and_b32 v27, 4, v24\nv_lshl_add_u32 v26, v27, 1, v26')
        a.e('v_and_b32 v27, 8, v24\nv_lshrrev_b32 v27, 1, v27\nv_add_u32 v26, v26, v27')
        a.e('v_mul_u32_u24 v26, 7168, v26')
        a.e('v_lshl_add_u32 v26, v25, 4, v26')
        a.e('v_add_u32 v%d, s4, v26' % (6 + ii))
    a.e('s_lshl_b32 s3, s29, 8\ns_sub_u32 s3, s3, 16\ns_max_i32 s55, s3, 0')
    a.e('s_cmp_lg_u32 s28, 3\ns_cbranch_scc1 K1_nohalo')
    a.e('v_add_u32 v23, s55, v18\nv_lshlrev_b32 v23, 11, v23')
    a.e('v_lshl_add_u32 v8, v21, 4, v23')
    a.e('v_lshl_add_u32 v9, v22, 4, v23\nv_add_u32 v9, 0x4000, v9')
    a.label('K1_nohalo')
    a.e('s_waitcnt lgkmcnt(0)')
    a.srd(8, 44, 2048 * 2048)
    a.srd(12, 46, 1024 * 6144)
    a.srd(16, 48, 1024 * 7168)
    a.srd(20, 52, WS_BYTES)
    a.srd(24, 50, 7168)
    a.e('s_mov_b32 s36, 0\ns_mov_b32 s34, %d\ns_mov_b32 s42, %d' % (WB, WSLOT))
    for x in k1_kcalc(cfg): a.e(x)
    a.e('s_cmp_eq_u32 s28, 1\ns_cbranch_scc1 K1_w1\ns_cmp_eq_u32 s28, 2\ns_cbranch_scc1 K1_w2\ns_cmp_eq_u32 s28, 3\ns_cbranch_scc1 K1_w3')

    def common_setup(S):
        S.emit('v_and_b32 v20, 15, v0')
        S.emit('v_lshrrev_b32 v21, 1, v20\nv_xor_b32 v21, v21, v19')
        S.emit('v_lshlrev_b32 v21, 4, v21\nv_lshl_add_u32 v21, v20, 7, v21')
        S.emit('s_lshl_b32 s3, s28, 13')
        S.emit('v_add_u32 v10, s3, v21\nv_xor_b32 v11, 64, v10')
        S.emit('v_add_u32 v12, %d, v21\nv_xor_b32 v13, 64, v12' % (WB + W_HALO))
        S.emit('v_mov_b32 v22, %d\nv_cmp_eq_u32 vcc, 0, v20' % (WB + W_ONES))
        S.emit('v_cndmask_b32 v12, v12, v22, vcc\nv_cndmask_b32 v13, v13, v22, vcc')
        S.emit('v_bfe_u32 v22, v0, 2, 2')
        S.emit('v_and_b32 v23, 3, v0\nv_lshlrev_b32 v23, 3, v23')
        S.emit('v_lshl_add_u32 v24, v19, 3, v22\nv_mul_u32_u24 v24, 192, v24\nv_add_u32 v24, v24, v23')
        S.emit('v_add_u32 v24, %d, v24' % WB)
        S.emit('v_and_b32 v25, 1, v19\nv_lshlrev_b32 v26, 5, v25')
        S.emit('v_add_u32 v14, v24, v26\nv_sub_u32 v15, v24, v26')
        S.emit('v_lshrrev_b32 v26, 1, v19\nv_lshlrev_b32 v26, 4, v26\nv_lshl_add_u32 v26, v25, 2, v26\nv_add_u32 v26, v26, v22')
        S.emit('v_mul_u32_u24 v26, 224, v26\nv_add_u32 v26, v26, v23\nv_add_u32 v16, %d, v26' % WB)
        S.emit('v_mov_b32 v28, 0x3f803f80\nv_mov_b32 v29, v28\nv_mov_b32 v30, v28\nv_mov_b32 v31, v28\nv_mov_b32 v27, %d' % (WB + W_ONES))
        for k in range(3): S.emit('ds_write_b128 v27, v[28:31] offset:%d' % (k * WSLOT))
        S.emit('v_lshlrev_b32 v22, 2, v20\nv_lshlrev_b32 v23, 4, v19\nv_lshlrev_b32 v24, 3, v19')
        S.emit('s_lshl_b32 s3, s55, 2\ns_lshl_b32 s4, s54, 2\ns_add_u32 s5, s3, %d\ns_add_u32 s6, s4, %d' % (WS_NMR, WS_NMR))
        for k in range(5):
            so, sn, off = ('s3', 's5', 0) if k == 0 else ('s4', 's6', (k - 1) * 64)
            S.emit('buffer_load_dword a%d, v22, s[20:23], %s offen offset:%d' % (ST1 + k, so, off))
            S.emit('buffer_load_dword a%d, v22, s[20:23], %s offen offset:%d' % (ST1 + 5 + k, sn, off))
            S.emit('buffer_load_dwordx4 %s, v23, s[20:23], %s offen offset:%d' % (ar(ST2 + 4 * k), so, off))
            S.emit('buffer_load_dwordx4 %s, v23, s[20:23], %s offen offset:%d' % (ar(ST2 + 20 + 4 * k), sn, off))
        S.emit('s_mul_i32 s3, s30, 224\ns_and_b32 s4, s30, 1\ns_lshl_b32 s5, s4, 5\ns_add_u32 s5, s5, s3')
        S.emit('s_xor_b32 s4, s4, 1\ns_mul_i32 s4, s4, 192\ns_add_u32 s4, s4, s3')
        for f in range(7):
            if f < 6: S.emit('buffer_load_dwordx2 %s, v24, s[24:27], s5 offen offset:%d' % (ar(B1A + 2 * f, 2), f * 32))
            else: S.emit('buffer_load_dwordx2 %s, v24, s[24:27], s4 offen' % ar(B1A + 2 * f, 2))
        for r in range(ACC1, 256): S.emit('v_mov_b32 v%d, 0' % r)
        for r in range(EXA, EXA + 16): S.emit('v_accvgpr_write_b32 a%d, 0' % r)

    for w in range(4):
        if w: a.label('K1_w%d' % w)
        S = Stream(a)
        for st in range(2):
            for su, ld in k1_dmas(w, st):
                S.emit(su); S.emit(ld, tag=('p', st))
            S.emit('s_add_u32 s36, s36, 1\ns_add_u32 s34, s34, %d' % WSLOT)
            for x in k1_kcalc(cfg): S.emit(x)
        common_setup(S)
        S.wait_tag(lambda t: t == ('p', 0), lg=0)
        S.emit('s_barrier')
        stamp(a, cfg, 1, 1, 20)
        for t in (0, 1):
            for s in (0, 1):
                for j4 in (0, 1): S.emit(k1_wread(t, s, j4))
        S.wait(lg=0)
        for i in range(4):
            for s in (0, 1): S.emit(k1_xread(0, 0, i, s))
        S.wait(lg=0)
        S.mute = True
        k1_step(S, cfg, w, 0); k1_step(S, cfg, w, 1)
        st0 = S.state()
        S.mute = False
        a.raw('.p2align 3')
        a.label('K1_loop%d' % w)
        k1_step(S, cfg, w, 0); k1_step(S, cfg, w, 1)
        assert S.state() == st0
        a.e('s_cmp_lt_u32 s36, 18\ns_cbranch_scc1 K1_loop%d' % w)
        stamp(a, cfg, 1, 2, 20)
        S.wait(lg=0)
        S.emit('v_lshlrev_b32 v1, 4, v19\nv_add_u32 v1, %d, v1' % EX)
        S.emit('v_and_b32 v20, 15, v0\nv_lshlrev_b32 v2, 2, v20\nv_add_u32 v2, %d, v2' % EX)
        S.emit('v_lshlrev_b32 v3, 4, v0')
        S.emit('v_add_u32 v4, %d, v3' % EX_KV)
        S.emit('s_nop 3')
        S.emit('s_mov_b32 exec_lo, 0x00010001\ns_mov_b32 exec_hi, 0x00010001')
        for e, t in enumerate(EXTRAS[w]):
            if t not in (4, 5): S.emit('ds_write_b128 v1, %s offset:%d' % (ar(EXA + 4 * e), t * 64))
        for e, t in enumerate(EXTRAS[w]):
            if t in (4, 5):
                S.emit('s_mov_b64 exec, 0xffff')
                S.emit('ds_write_b32 v2, a%d offset:%d' % (EXA + 4 * e, t * 64))
        S.emit('s_mov_b64 exec, -1')
        S.wait(lg=0)
        S.emit('s_barrier')
        t = EXTRAS[w][0]
        for r in range(4): S.emit('v_accvgpr_read_b32 v%d, a%d' % (24 + r, EXA + r))
        if t < 4:
            S.emit('ds_read_b128 v[28:31], v1 offset:%d' % (t * 64))
            S.emit('v_accvgpr_read_b32 v32, a%d\nv_accvgpr_read_b32 v33, a%d' % (ST1, ST1 + 5))
            for r in range(4):
                S.emit('v_mul_f32 v%d, v33, v%d' % (28 + r, 28 + r))
                S.emit('v_fma_f32 v%d, v32, v%d, v%d' % (24 + r, 24 + r, 28 + r))
        else:
            S.emit('ds_read_b32 v28, v2 offset:%d' % (t * 64))
            for r in range(4):
                S.emit('v_accvgpr_read_b32 v%d, a%d\nv_accvgpr_read_b32 v%d, a%d' % (32 + r, ST2 + r, 36 + r, ST2 + 20 + r))
            for r in range(4):
                S.emit('v_mul_f32 v%d, v%d, v28' % (36 + r, 36 + r))
                S.emit('v_fma_f32 v%d, v%d, v%d, v%d' % (24 + r, 32 + r, 24 + r, 36 + r))
        S.emit('v_cvt_pk_bf16_f32 v24, v24, v25\nv_cvt_pk_bf16_f32 v25, v26, v27')
        S.emit('ds_write_b64 v4, v[24:25] offset:%d' % ((0 if t < 4 else 1024) + 8 * (t & 1)))
        S.wait(lg=0)
        if w < 3: a.e('s_branch K1_epi')

    a.label('K1_epi')
    S = Stream(a)
    RN = 6
    CC = 14
    CS = 24
    T = 40
    for t in range(4): S.emit('ds_read_b128 %s, v1 offset:%d' % (vr(CS + 4 * t), t * 64))
    S.emit('ds_read_b32 v16, v2 offset:256\nds_read_b32 v17, v2 offset:320')
    for i in range(4):
        S.emit('v_accvgpr_read_b32 v%d, a%d\nv_accvgpr_read_b32 v%d, a%d' % (RN + 2 * i, ST1 + 1 + i, RN + 2 * i + 1, ST1 + 6 + i))
    c1 = -2.0 * math.sqrt(2.0 / math.pi) * math.log2(math.e)
    S.emit('v_mov_b32 v%d, %s\nv_mov_b32 v%d, %s' % (CC, f32(c1), CC + 1, f32(c1 * 0.044715)))
    for t0 in (2, 0):
        for i in range(4):
            for h in range(4):
                S.emit(pk('mul', T + 2 * h, RN + 2 * i, CS + 4 * t0 + 2 * h, sel=[1, 0], selhi=[1, 1]))
            for h in range(4):
                r = acc1(t0 + (h >> 1), i) + 2 * (h & 1)
                S.emit(pk('fma', T + 2 * h, RN + 2 * i, r, T + 2 * h, sel=[0, 0, 0], selhi=[0, 1, 1]))
            for h in range(4):
                S.emit('v_cvt_pk_bf16_f32 v%d, v%d, v%d' % (acc1(t0, i) + h, T + 2 * h, T + 2 * h + 1))
    VS = [acc1(3, 0), acc1(1, 0)]
    for i in range(4):
        for r in range(4):
            S.emit('v_accvgpr_read_b32 v%d, a%d\nv_accvgpr_read_b32 v%d, a%d' % (CS + r, ST2 + 4 * (i + 1) + r, CS + 4 + r, ST2 + 20 + 4 * (i + 1) + r))
        for h in range(4):
            tv = h >> 1
            S.emit(pk('mul', T + 2 * h, CS + 4 + 2 * (h & 1), 16, sel=[0, tv], selhi=[1, tv]))
        for h in range(4):
            S.emit(pk('fma', T + 2 * h, CS + 2 * (h & 1), acc1(4 + (h >> 1), i) + 2 * (h & 1), T + 2 * h))
        for h in range(4):
            S.emit('v_cvt_pk_bf16_f32 v%d, v%d, v%d' % (VS[h >> 1] + 2 * (i + 1) + (h & 1), T + 2 * h, T + 2 * h + 1))
    S.emit('s_lshl_b32 s3, s28, 11\nv_add_u32 v4, s3, v4')
    S.emit('ds_write_b128 v4, %s offset:2048' % vr(acc1(2, 3)))
    S.emit('ds_write_b64 v4, %s offset:3072' % vr(VS[0] + 8, 2))
    S.emit('ds_write_b64 v4, %s offset:3080' % vr(VS[1] + 8, 2))
    S.emit('s_lshr_b32 s3, s54, 4\ns_mul_i32 s3, s3, 144\ns_lshr_b32 s4, s30, 3\ns_mul_i32 s4, s4, 36\ns_add_u32 s3, s3, s4')
    S.emit('s_and_b32 s4, s30, 7\ns_add_u32 s56, s3, s4\ns_lshl_b32 s56, s56, 10\ns_add_u32 s56, s56, %d' % WS_H)
    S.emit('s_lshr_b32 s4, s4, 1\ns_mul_i32 s4, s4, 7\ns_add_u32 s3, s3, s4\ns_add_u32 s3, s3, 8\ns_lshl_b32 s3, s3, 10\ns_add_u32 s3, s3, %d' % WS_H)
    S.emit('s_and_b32 s4, s30, 1\ns_lshl_b32 s5, s4, 12\ns_add_u32 s57, s3, s5')
    S.emit('s_lshl_b32 s5, s4, 3\ns_add_u32 s58, s3, s5\ns_add_u32 s58, s58, 3072')
    S.wait(lg=0)
    S.emit('s_barrier')
    KP = 20
    S.emit('ds_read_b128 %s, v4' % vr(KP))
    S.emit('ds_read_b64 %s, v4 offset:1024' % vr(VS[0], 2))
    S.emit('ds_read_b64 %s, v4 offset:1032' % vr(VS[1], 2))
    S.emit('v_and_b32 v5, 15, v0\nv_and_b32 v16, 1, v0\nv_lshl_add_u32 v17, v19, 2, v16')
    S.emit('v_cmp_eq_u32 s[60:61], 1, v16\nv_cmp_le_u32 s[62:63], v17, v5\nv_add_u32 v17, 2, v17\nv_cmp_le_u32 s[4:5], v17, v5')
    S.emit('v_mov_b32 v16, 0xffff\nv_mov_b32 v17, 0xffff0000\nv_cndmask_b32 v16, v16, v17, s[60:61]')
    MK = CS
    S.emit('v_cndmask_b32 v%d, 0, v16, s[62:63]\nv_cndmask_b32 v%d, v16, 0, s[62:63]' % (MK, MK + 1))
    S.emit('v_cndmask_b32 v%d, 0, v16, s[4:5]\nv_cndmask_b32 v%d, v16, 0, s[4:5]' % (MK + 2, MK + 3))
    S.emit('s_cmp_eq_u32 s54, 0\ns_cselect_b32 s3, %s, 0' % f32(-1e30))
    for r in range(4): S.emit('v_mov_b32 v%d, s3' % (28 + r))
    SC = lambda i: acc1(4, i)
    SP = lambda i: acc1(5, i)
    for i in (1, 2, 3, 0):
        S.emit('v_mfma_f32_16x16x32_bf16 %s, %s, %s, 0' % (vr(SC(i)), vr(acc1(2, i)), vr(acc1(0, i))))
        kp = KP if i == 0 else acc1(2, i - 1)
        S.emit('v_mfma_f32_16x16x32_bf16 %s, %s, %s, %s' % (vr(SP(i)), vr(kp), vr(acc1(0, i)), vr(28) if i == 0 else '0'))
    I4 = (1, 2, 3, 0)
    for i in I4:
        c, p = SC(i), SP(i)
        S.emit('v_cndmask_b32 v%d, v%d, v%d, s[60:61]' % (c, c, c + 1))
        S.emit('v_cndmask_b32 v%d, v%d, v%d, s[60:61]' % (c + 2, c + 2, c + 3))
        S.emit('v_cndmask_b32 v%d, v%d, v%d, s[60:61]' % (p, p, p + 1))
        S.emit('v_cndmask_b32 v%d, v%d, v%d, s[60:61]' % (p + 2, p + 2, p + 3))
        S.emit('v_cndmask_b32 v%d, v%d, v%d, s[62:63]' % (c, p, c))
        S.emit('v_cndmask_b32 v%d, v%d, v%d, s[4:5]' % (c + 1, p + 2, c + 2))
        S.emit('v_max_f32 v%d, v%d, v%d' % (c + 2, c, c + 1))
    for sw in ('v_permlane16_swap_b32', 'v_permlane32_swap_b32'):
        for i in I4: S.emit('v_mov_b32 v%d, v%d' % (SC(i) + 3, SC(i) + 2))
        for i in I4: S.emit('%s v%d, v%d' % (sw, SC(i) + 2, SC(i) + 3))
        for i in I4: S.emit('v_max_f32 v%d, v%d, v%d' % (SC(i) + 2, SC(i) + 2, SC(i) + 3))
    S.emit('s_mov_b32 s3, %s' % f32(32 ** -0.5 * math.log2(math.e)))
    for i in I4:
        c = SC(i)
        S.emit('v_sub_f32 v%d, v%d, v%d\nv_sub_f32 v%d, v%d, v%d' % (c, c, c + 2, c + 1, c + 1, c + 2))
        S.emit('v_mul_f32 v%d, s3, v%d\nv_mul_f32 v%d, s3, v%d' % (c, c, c + 1, c + 1))
    for i in I4:
        c = SC(i)
        S.emit('v_exp_f32 v%d, v%d\nv_exp_f32 v%d, v%d' % (c, c, c + 1, c + 1))
    for i in I4: S.emit('v_add_f32 v%d, v%d, v%d' % (SC(i) + 2, SC(i), SC(i) + 1))
    for sw in ('v_permlane16_swap_b32', 'v_permlane32_swap_b32'):
        for i in I4: S.emit('v_mov_b32 v%d, v%d' % (SC(i) + 3, SC(i) + 2))
        for i in I4: S.emit('%s v%d, v%d' % (sw, SC(i) + 2, SC(i) + 3))
        for i in I4: S.emit('v_add_f32 v%d, v%d, v%d' % (SC(i) + 2, SC(i) + 2, SC(i) + 3))
    for i in I4: S.emit('v_rcp_f32 v%d, v%d' % (SC(i) + 2, SC(i) + 2))
    for i in I4:
        c, p = SC(i), SP(i)
        S.emit('v_mul_f32 v%d, v%d, v%d\nv_mul_f32 v%d, v%d, v%d' % (c, c, c + 2, c + 1, c + 1, c + 2))
        S.emit('v_cvt_pk_bf16_f32 v%d, v%d, v%d\nv_cvt_pk_bf16_f32 v%d, v%d, v%d' % (c, c, c, c + 1, c + 1, c + 1))
        S.emit('v_and_b32 v%d, v%d, v%d\nv_and_b32 v%d, v%d, v%d' % (p, c, MK + 1, p + 1, c + 1, MK + 3))
        S.emit('v_and_b32 v%d, v%d, v%d\nv_and_b32 v%d, v%d, v%d' % (p + 2, c, MK, p + 3, c + 1, MK + 2))
    for i in I4:
        S.emit('v_mfma_f32_16x16x32_bf16 %s, %s, %s, 0' % (vr(acc1(0, i)), vr(VS[0] + 2 * i), vr(SP(i))))
        S.emit('v_mfma_f32_16x16x32_bf16 %s, %s, %s, 0' % (vr(SC(i)), vr(VS[1] + 2 * i), vr(SP(i))))
    for i in I4:
        o = acc1(0, i)
        S.emit('v_cvt_pk_bf16_f32 v%d, v%d, v%d\nv_cvt_pk_bf16_f32 v%d, v%d, v%d' % (o, o, o + 1, o + 1, o + 2, o + 3))
        c = SC(i)
        S.emit('v_cvt_pk_bf16_f32 v%d, v%d, v%d\nv_cvt_pk_bf16_f32 v%d, v%d, v%d' % (o + 2, c, c + 1, o + 3, c + 2, c + 3))
        S.emit('s_add_u32 s3, s56, %d' % (i * 144 * 1024))
        S.emit('buffer_store_dwordx4 %s, v3, s[20:23], s3 offen' % vr(o))
    def gelu(quads, i):
        n = len(quads) * 2
        P = [(q[0] + 2 * h, q[1] + 2 * h, q[2] + 2 * h) for q in quads for h in range(2)]
        for k, (x, cs, b) in enumerate(P): S.emit(pk('fma', T + 2 * k, RN + 2 * i, cs, b, sel=[1, 0, 0], selhi=[1, 1, 1]))
        for k, (x, cs, b) in enumerate(P): S.emit(pk('fma', x, RN + 2 * i, x, T + 2 * k, sel=[0, 0, 0], selhi=[0, 1, 1]))
        for k, (x, cs, b) in enumerate(P): S.emit(pk('mul', T + 2 * k, x, x))
        for k, (x, cs, b) in enumerate(P): S.emit(pk('fma', T + 2 * k, T + 2 * k, CC, CC, sel=[0, 1, 0], selhi=[1, 1, 0]))
        for k, (x, cs, b) in enumerate(P): S.emit(pk('mul', T + 2 * k, T + 2 * k, x))
        for k in range(2 * n): S.emit('v_exp_f32 v%d, v%d' % (T + k, T + k))
        for k in range(n): S.emit(pk('add', T + 2 * k, T + 2 * k, '1.0', selhi=[1, 0]))
        for k in range(2 * n): S.emit('v_rcp_f32 v%d, v%d' % (T + k, T + k))
        for k, (x, cs, b) in enumerate(P): S.emit(pk('mul', T + 2 * k, T + 2 * k, x))
        for k in range(n): S.emit('v_cvt_pk_bf16_f32 v%d, v%d, v%d' % (quads[0][0] + k, T + 2 * k, T + 2 * k + 1))
    for fp in range(4):
        fs = [2 * fp, 2 * fp + 1] if fp < 3 else [6]
        for k, f in enumerate(fs):
            S.emit('ds_read_b128 %s, v1 offset:%d' % (vr(CS + 4 * k), (6 + f) * 64))
            for h in range(2):
                S.emit('v_accvgpr_read_b32 v16, a%d' % (B1A + 2 * f + h))
                S.emit('v_lshlrev_b32 v%d, 16, v16\nv_and_b32 v%d, 0xffff0000, v16' % (CS + 8 + 4 * k + 2 * h, CS + 9 + 4 * k + 2 * h))
        for i in range(4):
            gelu([(acc1(6 + f, i), CS + 4 * k, CS + 8 + 4 * k) for k, f in enumerate(fs)], i)
            if fp < 3:
                S.emit('s_add_u32 s3, s57, %d' % (i * 144 * 1024 + fp * 1024))
                S.emit('buffer_store_dwordx4 %s, v3, s[20:23], s3 offen' % vr(acc1(6 + fs[0], i)))
            else:
                S.emit('s_add_u32 s3, s58, %d' % (i * 144 * 1024))
                S.emit('buffer_store_dwordx2 %s, v3, s[20:23], s3 offen' % vr(acc1(12, i), 2))
    stamp(a, cfg, 1, 3, 20)
    if cfg.stamps:
        a.e('s_waitcnt vmcnt(0)')
        stamp(a, cfg, 1, 4, 20)
    stamp_flush(a, cfg, 1, 5, 20, 28)
    a.label('K1_end')
    a.e('s_endpgm')
    return hazard.fix(a.text())

ACC2 = 128
def acc2(t, i): return ACC2 + (t * 4 + i) * 4
def aa(buf, i, s): return buf * 32 + (i * 2 + s) * 4
def wb(t, s): return 96 + t * 8 + s * 4
K2_LDS = 49152
def k2_wread(slot, t, s, j4):
    return 'ds_read_b64_tr_b16 %s, v%d offset:%d' % (ar(wb(t, s) + 2 * j4, 2), 8 + t, slot * 16384 + s * 8192 + j4 * 4096)
def k2_loads(slot):
    L = []
    for ii in range(4):
        su = 's_add_u32 m0, s40, %d' % (slot * 16384 + ii * 1024)
        L.append((su, 'buffer_load_dwordx4 v%d, s[12:15], %s offen lds' % (5 + (ii & 1), 's32' if ii < 2 else 's33'), 'w'))
    for i in range(4):
        for s in (0, 1):
            L.append((None, 'buffer_load_dwordx4 %s, v%d, s[16:19], s31 offen offset:%d' % (ar(aa(slot, i, s)), 1 + i, s * 1024), 'a'))
    return L
def k2_kcalc():
    return ['s_lshl_b32 s31, s36, 11',
            's_cmp_lt_u32 s36, 4\ns_cselect_b32 s12, s46, s48',
            's_cselect_b32 s13, s47, s49\ns_cselect_b32 s14, s42, s43',
            's_cselect_b32 s32, s38, s39\ns_lshl_b32 s33, s36, 17',
            's_add_u32 s32, s32, s33\ns_add_u32 s33, s32, 16384',
            's_cmp_ge_u32 s36, 18\ns_cselect_b32 s14, 0, s14',
            's_cselect_b32 s18, 0, s18']
def k2_step(S, cfg, par):
    order = [(0, 0), (0, 1), (1, 1), (1, 0), (2, 0), (2, 1), (3, 1), (3, 0)]
    mf = []
    for t in range(8):
        for (i, s) in order:
            d = acc2(t, i)
            mf.append('v_mfma_f32_16x16x32_bf16 %s, %s, %s, %s' % (vr(d), ar(wb(t, s)), ar(aa(par, i, s)), vr(d)))
    n = 64
    fill = [[] for _ in range(n)]
    for t in range(8):
        tt = (t + 2) % 8
        sl = par if t < 6 else (par + 1) % 3
        for k, (s, j4) in enumerate(((0, 0), (0, 1), (1, 0), (1, 1))):
            fill[8 * t + k].append(k2_wread(sl, tt, s, j4))
    ld = k2_loads((par + 2) % 3)
    for k, (su, l, kind) in enumerate(ld):
        p = 1 + (k * 56) // 12
        if su: fill[p].append(su)
        fill[p + 1].append((kind, l))
    kc = ['s_add_u32 s36, s36, 1'] + k2_kcalc()
    for k, x in enumerate(kc): fill[55 + k].append(x)
    for k in range(n):
        if k == 48:
            S.wait_tag(lambda t: t == ('w', (par + 1) % 3), lg=0)
            S.emit('s_barrier')
        S.emit(mf[k])
        for x in fill[k]:
            if isinstance(x, tuple): S.emit(x[1], tag=(x[0], (par + 2) % 3))
            else: S.emit(x)

def gen_k2(cfg):
    a = Asm()
    a.e('s_cmp_ge_u32 s2, 256\ns_cbranch_scc1 K2_end')
    stamp(a, cfg, 2, 0, 20)
    a.e('s_load_dwordx2 s[44:45], s[0:1], 0')
    a.e('s_load_dwordx2 s[46:47], s[0:1], 16')
    a.e('s_load_dwordx4 s[48:51], s[0:1], 48')
    a.e('s_load_dwordx2 s[52:53], s[0:1], 64')
    a.e('s_load_dwordx2 s[54:55], s[0:1], 80')
    a.e('v_lshrrev_b32 v17, 6, v0\nv_and_b32 v0, 63, v0')
    a.e('v_readfirstlane_b32 s28, v17')
    a.e('s_and_b32 s29, s2, 1\ns_lshl_b32 s29, s29, 2\ns_lshr_b32 s3, s2, 6\ns_add_u32 s29, s29, s3')
    a.e('s_bfe_u32 s30, s2, 0x20001\ns_bfe_u32 s41, s2, 0x30003')
    a.e('v_lshrrev_b32 v19, 4, v0\nv_and_b32 v20, 15, v0\nv_lshlrev_b32 v7, 4, v0')
    a.e('s_lshl_b32 s3, s29, 4\ns_lshl_b32 s4, s28, 2\ns_add_u32 s56, s3, s4')
    a.e('s_mul_i32 s5, s30, 36')
    for i in range(4):
        a.e('s_add_u32 s4, s30, %d\ns_and_b32 s4, s4, 3\ns_add_u32 s4, s4, s56' % i)
        if i == 0: a.e('s_mov_b32 s57, s4')
        a.e('s_mul_i32 s4, s4, 144\ns_add_u32 s4, s4, s5\ns_lshl_b32 s4, s4, 10\ns_add_u32 s4, s4, %d' % WS_H)
        a.e('v_add_u32 v%d, s4, v7' % (1 + i))
    a.e('s_lshl_b32 s3, s28, 15\ns_lshl_b32 s4, s41, 8\ns_add_u32 s3, s3, s4')
    a.e('v_lshlrev_b32 v21, 1, v19\nv_xor_b32 v21, v21, v20\nv_xor_b32 v22, 8, v21')
    a.e('v_lshlrev_b32 v23, 11, v19\nv_add_u32 v23, s3, v23')
    a.e('v_lshl_add_u32 v5, v21, 4, v23\nv_lshl_add_u32 v6, v22, 4, v23\nv_add_u32 v6, 0x2000, v6')
    a.e('s_lshl_b32 s40, s28, 12')
    a.e('s_lshl_b32 s38, s30, 19')
    a.e('s_mul_i32 s39, s30, %d\ns_sub_u32 s39, s39, %d' % (896 * 2048, 4 << 17))
    a.e('s_mov_b32 s42, %d\ns_mov_b32 s43, %d' % (1024 * 2048, 3584 * 2048))
    a.e('s_waitcnt lgkmcnt(0)')
    a.e('s_and_b32 s47, s47, 0xffff\ns_and_b32 s49, s49, 0xffff')
    a.srd(8, 44, 2048 * 2048)
    a.srd(12, 46, 1024 * 2048)
    a.srd(16, 54, WS_BYTES)
    a.srd(20, 54, WS_BYTES)
    a.srd(24, 50, 2048)
    a.srd(60, 52, 2048 * 2048)
    S = Stream(a)
    S.emit('s_mov_b32 s36, 0')
    for st in range(2):
        for x in k2_kcalc(): S.emit(x)
        for su, l, kind in k2_loads(st):
            if su: S.emit(su)
            S.emit(l, tag=(kind, st))
        S.emit('s_add_u32 s36, s36, 1')
        if st == 0:
            S.emit('v_lshlrev_b32 v21, 3, v19\nv_lshl_add_u32 v22, v20, 11, v21')
            S.emit('s_lshl_b32 s4, s41, 8\ns_lshl_b32 s3, s57, 15\ns_add_u32 s58, s3, s4')
            for t in range(8):
                S.emit('buffer_load_dwordx2 %s, v22, s[8:11], s58 offen offset:%d' % (vr(32 + 2 * t, 2), t * 32))
            for t in range(8):
                S.emit('buffer_load_dwordx2 %s, v21, s[24:27], s4 offen offset:%d' % (vr(48 + 2 * t, 2), t * 32))
    for x in k2_kcalc(): S.emit(x)
    S.emit('v_bfe_u32 v22, v0, 2, 3')
    S.emit('v_lshrrev_b32 v23, 2, v0\nv_lshlrev_b32 v23, 8, v23')
    S.emit('v_and_b32 v24, 3, v0\nv_lshl_add_u32 v23, v24, 3, v23')
    for t in range(8):
        S.emit('v_xor_b32 v24, %d, v22\nv_lshl_add_u32 v%d, v24, 5, v23' % (t, 8 + t))
    for t in range(8):
        for i in range(1, 4):
            for r in range(4): S.emit('v_mov_b32 v%d, 0' % (acc2(t, i) + r))
    for t in range(8):
        for h in range(2):
            x, b, d = 32 + 2 * t + h, 48 + 2 * t + h, acc2(t, 0) + 2 * h
            S.emit('v_lshlrev_b32 v24, 16, v%d\nv_lshlrev_b32 v25, 16, v%d\nv_add_f32 v%d, v24, v25' % (x, b, d))
            S.emit('v_and_b32 v24, 0xffff0000, v%d\nv_and_b32 v25, 0xffff0000, v%d\nv_add_f32 v%d, v24, v25' % (x, b, d + 1))
    S.wait_tag(lambda t: t in (('w', 0), ('a', 0)), lg=0)
    S.emit('s_barrier')
    stamp(a, cfg, 2, 1, 20)
    for t in (0, 1):
        for s in (0, 1):
            for j4 in (0, 1): S.emit(k2_wread(0, t, s, j4))
    S.wait(lg=0)
    S.mute = True
    for p in range(3): k2_step(S, cfg, p)
    st0 = S.state()
    S.mute = False
    a.raw('.p2align 3')
    a.label('K2_loop')
    for p in range(3): k2_step(S, cfg, p)
    assert S.state() == st0
    a.e('s_cmp_lt_u32 s36, 20\ns_cbranch_scc1 K2_loop')
    stamp(a, cfg, 2, 2, 20)
    a.e('s_lshl_b32 s3, s29, 3\ns_add_u32 s3, s3, s41')
    a.e('s_lshl_b32 s5, s3, 2\ns_add_u32 s5, s5, s28\ns_lshl_b32 s5, s5, 7\ns_add_u32 s59, s5, %d' % WS_FLAG)
    a.e('s_mul_i32 s3, s3, %d\ns_lshl_b32 s4, s28, 13\ns_add_u32 s3, s3, s4\ns_add_u32 s3, s3, %d' % (12 * 32768, WS_P))
    for i in range(1, 4):
        a.e('s_add_u32 s4, s30, %d\ns_and_b32 s4, s4, 3\ns_mul_i32 s4, s4, %d\ns_add_u32 s4, s4, s3\ns_add_u32 s4, s4, %d' % (i, 3 * 32768, (i - 1) * 32768))
        for t in range(8):
            if t == 4: a.e('s_add_u32 s4, s4, 4096')
            a.e('buffer_store_dwordx4 %s, v7, s[20:23], s4 offen offset:%d sc1' % (vr(acc2(t, i)), (t & 3) * 1024))
    a.e('s_mul_i32 s4, s30, %d\ns_add_u32 s3, s3, s4' % (3 * 32768))
    a.e('v_mov_b32 v1, 1\nv_mov_b32 v2, 0\ns_lshl_b32 s4, s30, 2\ns_add_u32 s4, s4, s59')
    a.e('s_waitcnt vmcnt(0)')
    stamp(a, cfg, 2, 3, 20)
    a.e('s_mov_b64 exec, 1')
    a.e('buffer_store_dword v1, v2, s[20:23], s4 offen sc1')
    a.e('s_mov_b32 s5, 0')
    a.label('K2_poll')
    a.e('buffer_load_dwordx4 v[8:11], v2, s[20:23], s59 offen sc1')
    a.e('s_add_u32 s5, s5, 1')
    a.e('s_waitcnt vmcnt(0)')
    a.e('v_add3_u32 v8, v8, v9, v10\nv_add_u32 v8, v8, v11')
    a.e('v_readfirstlane_b32 s6, v8')
    a.e('s_cmp_eq_u32 s6, 4\ns_cbranch_scc1 K2_go')
    a.e('s_cmp_lt_u32 s5, 0x40000\ns_cbranch_scc1 K2_poll')
    a.label('K2_go')
    a.e('s_mov_b64 exec, -1')
    stamp(a, cfg, 2, 4, 20)
    S = Stream(a)
    RB = 16
    for t in range(8):
        for j in range(3):
            S.emit('s_add_u32 s4, s3, %d' % (j * 32768 + (t >> 2) * 4096))
            S.emit('buffer_load_dwordx4 %s, v7, s[20:23], s4 offen offset:%d sc1' % (vr(RB + (t * 3 + j) * 4), (t & 3) * 1024))
    S.emit('v_lshrrev_b32 v2, 4, v0\nv_and_b32 v3, 1, v2\nv_lshrrev_b32 v2, 1, v2\nv_lshlrev_b32 v3, 5, v3\nv_lshl_add_u32 v3, v2, 4, v3')
    S.emit('v_and_b32 v2, 15, v0\nv_lshl_add_u32 v3, v2, 11, v3')
    for tp in range(4):
        for t in (2 * tp, 2 * tp + 1):
            d = acc2(t, 0); r = RB + t * 12
            for h in (0, 2): S.emit(pk('add', d + h, d + h, r + h))
            for h in (0, 2): S.emit(pk('add', r + 4 + h, r + 4 + h, r + 8 + h))
            for h in (0, 2): S.emit(pk('add', d + h, d + h, r + 4 + h))
        d0, d1 = acc2(2 * tp, 0), acc2(2 * tp + 1, 0)
        S.emit('v_cvt_pk_bf16_f32 v%d, v%d, v%d\nv_cvt_pk_bf16_f32 v%d, v%d, v%d' % (d0, d0, d0 + 1, d0 + 1, d0 + 2, d0 + 3))
        S.emit('v_cvt_pk_bf16_f32 v%d, v%d, v%d\nv_cvt_pk_bf16_f32 v%d, v%d, v%d' % (d0 + 2, d1, d1 + 1, d0 + 3, d1 + 2, d1 + 3))
        S.emit('v_permlane16_swap_b32 v%d, v%d\nv_permlane16_swap_b32 v%d, v%d' % (d0, d0 + 2, d0 + 1, d0 + 3))
        S.emit('buffer_store_dwordx4 %s, v3, s[60:63], s58 offen offset:%d' % (vr(d0), tp * 64))
    if cfg.stamps:
        a.e('s_waitcnt vmcnt(0)')
        stamp(a, cfg, 2, 5, 20)
    stamp_flush(a, cfg, 2, 6, 20, 28)
    a.label('K2_end')
    a.e('s_endpgm')
    return hazard.fix(a.text())

HEADER = open('cdna_kernels/%s.s.ref' % NAME).read().split('; Override launch')[0] if __name__ == '__main__' else ''

def build(cfg, header=''):
    launches = [('stats_kernel', 256, 256, 0), (NAME + '_kernel', 256, 256, K1_LDS), ('outproj_kernel', 256, 256, K2_LDS)]
    kernels = [('stats_kernel', gen_k0(cfg), 64, 64), (NAME + '_kernel', gen_k1(cfg), 512, 256), ('outproj_kernel', gen_k2(cfg), 512, 256)]
    return header + build_file(launches, kernels)

if __name__ == '__main__':
    out = sys.argv[1]
    kw = {}
    for x in sys.argv[2:]:
        k, v = x.split('='); kw[k] = eval(v)
    open(out, 'w').write(build(Cfg(**kw), HEADER))
```

```python
import sys, struct, math
from asmlib import *
from sched import Stream
import hazard

NAME = 'parallel_sum__sliding_local_dilated__dense_activation_gelu__prompt'
WS_BYTES = 268435456
WS_RSTD = 0
WS_NMR = 8192
WS_FLAG = 0x10000
WS_H = 1 << 20
WS_P = 32 << 20
WS_TS = 250 << 20

def f32(x):
    return '0x%08x' % struct.unpack('<I', struct.pack('<f', x))[0]
def vr(b, n=4, f='v'):
    return '%s[%d:%d]' % (f, b, b + n - 1) if n > 1 else '%s%d' % (f, b)
def ar(b, n=4):
    return vr(b, n, 'a')

class Cfg:
    rot = 0
    stamps = False
    amp = None
    def __init__(self, **kw):
        for k, v in kw.items(): setattr(self, k, v)

def stamp(a, cfg, kid, idx, srd):
    if not cfg.stamps: return
    a.e('s_memrealtime s[%d:%d]' % (64 + 4 * idx, 65 + 4 * idx))
    a.e('s_memtime s[%d:%d]' % (66 + 4 * idx, 67 + 4 * idx))
    a.e('s_waitcnt lgkmcnt(0)')

def stamp_flush(a, cfg, kid, n, srd, wavereg):
    if not cfg.stamps: return
    L = a.newlabel('L_ts')
    a.e('s_lshl_b32 s96, s2, 2\ns_add_u32 s96, s96, s%d\ns_lshl_b32 s96, s96, 6' % wavereg)
    a.e('s_add_u32 s96, s96, %d' % (WS_TS + kid * 65536))
    a.e('s_mov_b64 exec, 1')
    a.e('v_mov_b32 v1, 0')
    for idx in range(n):
        a.e('v_mov_b32 v2, s%d\nv_mov_b32 v3, s%d' % (64 + 4 * idx, 66 + 4 * idx))
        a.e('buffer_store_dwordx2 v[2:3], v1, s[%d:%d], s96 offen offset:%d' % (srd, srd + 3, idx * 8))
        a.e('s_nop 1')

def allreduce64(a, op, x, t):
    d = 'row_mask:0xf bank_mask:0xf'
    for m in ('quad_perm:[1,0,3,2]', 'quad_perm:[2,3,0,1]', 'row_half_mirror', 'row_mirror'):
        for xx in x:
            a.e('%s_dpp v%d, v%d, v%d %s %s' % (op, xx, xx, xx, m, d))
    for sw in ('v_permlane16_swap_b32', 'v_permlane32_swap_b32'):
        for xx, tt in zip(x, t): a.e('v_mov_b32 v%d, v%d' % (tt, xx))
        for xx, tt in zip(x, t): a.e('%s v%d, v%d' % (sw, xx, tt))
        for xx, tt in zip(x, t): a.e('%s v%d, v%d, v%d' % (op, xx, xx, tt))

def gen_k0(cfg):
    a = Asm()
    a.e('s_cmp_ge_u32 s2, 256\ns_cbranch_scc1 K0_end')
    stamp(a, cfg, 0, 0, 12)
    a.e('s_load_dwordx2 s[4:5], s[0:1], 0\ns_load_dwordx2 s[6:7], s[0:1], 80')
    a.e('v_and_b32 v1, 63, v0\nv_lshlrev_b32 v1, 4, v1')
    a.e('v_lshrrev_b32 v2, 6, v0')
    a.e('v_lshl_add_u32 v1, v2, 12, v1')
    a.e('s_lshl_b32 s3, s2, 14')
    a.e('s_waitcnt lgkmcnt(0)')
    a.srd(8, 4, 2048 * 2048)
    a.srd(12, 6, WS_BYTES)
    for k in range(4):
        a.e('buffer_load_dwordx4 %s, v1, s[8:11], s3 offen offset:%d' % (vr(4 + 4 * k), k * 1024))
    a.e('v_lshlrev_b32 v3, 2, v0\nv_mov_b32 v60, 0')
    a.e('s_lshl_b32 s16, s2, 7\ns_add_u32 s16, s16, %d' % WS_FLAG)
    a.e('v_cmp_gt_u32 vcc, 32, v0\ns_and_saveexec_b64 s[18:19], vcc\ns_cbranch_execz K0_nz')
    a.e('buffer_store_dword v60, v3, s[12:15], s16 offen')
    a.label('K0_nz')
    a.e('s_mov_b64 exec, s[18:19]')
    a.e('s_waitcnt vmcnt(0)')
    for k in range(16):
        a.e('v_lshlrev_b32 v%d, 16, v%d' % (20 + 2 * k, 4 + k))
        a.e('v_and_b32 v%d, 0xffff0000, v%d' % (21 + 2 * k, 4 + k))
    for r in range(2):
        b = 20 + 16 * r
        a.e('v_add_f32 v%d, v%d, v%d' % (4 + r, b, b + 1))
        for k in range(2, 16): a.e('v_add_f32 v%d, v%d, v%d' % (4 + r, 4 + r, b + k))
    allreduce64(a, 'v_add_f32', [4, 5], [6, 7])
    for r in range(2):
        a.e('v_mul_f32 v%d, %s, v%d' % (4 + r, f32(1.0 / 1024), 4 + r))
        b = 20 + 16 * r
        for k in range(16): a.e('v_sub_f32 v%d, v%d, v%d' % (b + k, b + k, 4 + r))
        a.e('v_mul_f32 v%d, v%d, v%d' % (8 + r, b, b))
        for k in range(1, 16): a.e('v_fmac_f32 v%d, v%d, v%d' % (8 + r, b + k, b + k))
    allreduce64(a, 'v_add_f32', [8, 9], [6, 7])
    for r in range(2):
        m, v = 4 + r, 8 + r
        a.e('v_mul_f32 v%d, %s, v%d' % (v, f32(1.0 / 1024), v))
        a.e('v_cvt_pk_bf16_f32 v10, v%d, v%d' % (m, v))
        a.e('v_lshlrev_b32 v%d, 16, v10' % m)
        a.e('v_and_b32 v%d, 0xffff0000, v10' % v)
        a.e('v_add_f32 v%d, %s, v%d' % (v, f32(1e-5), v))
        a.e('v_cvt_pk_bf16_f32 v10, v%d, v%d' % (v, v))
        a.e('v_lshlrev_b32 v10, 16, v10')
        a.e('v_sqrt_f32 v10, v10')
        a.e('v_cvt_pk_bf16_f32 v10, v10, v10')
        a.e('v_lshlrev_b32 v10, 16, v10')
        a.e('v_rcp_f32 v%d, v10' % (12 + r))
        a.e('v_mul_f32 v%d, -v%d, v%d' % (14 + r, m, 12 + r))
    a.e('v_lshlrev_b32 v2, 3, v2')
    a.e('s_lshl_b32 s3, s2, 5\ns_add_u32 s17, s3, %d' % WS_NMR)
    a.e('s_mov_b64 exec, 1')
    a.e('buffer_store_dwordx2 v[12:13], v2, s[12:15], s3 offen')
    a.e('buffer_store_dwordx2 v[14:15], v2, s[12:15], s17 offen')
    if cfg.stamps:
        a.e('v_lshrrev_b32 v2, 6, v0\ns_nop 0\nv_readfirstlane_b32 s28, v2\ns_waitcnt vmcnt(0)')
        stamp(a, cfg, 0, 1, 12)
    stamp_flush(a, cfg, 0, 2, 12, 28)
    a.label('K0_end')
    a.e('s_endpgm')
    return hazard.fix(a.text())

XS = 32768
WB = 65536
WSLOT = 28928
W_FFN = 12288
W_HALO = 26624
W_ONES = 28672
EX = WB + 3 * WSLOT
EX_KV = EX + 1024
K1_LDS = 163840
ACC1 = 48
def acc1(t, i): return ACC1 + (t * 4 + i) * 4
def xa(buf, i, s): return buf * 32 + (i * 2 + s) * 4
def ha(s): return 64 + s * 4
def wa(t, s): return 72 + t * 8 + s * 4
EXA = 176
B1A = 192
ST1 = 206
ST2 = 216
EXTRAS = [[2, 6, 7, 12], [3, 8, 9], [4, 10, 11], [5, 0, 1]]

def k1_wread(t, s, j4):
    d = wa(t, s) + 2 * j4
    if t < 6:
        return 'ds_read_b64_tr_b16 %s, v%d offset:%d' % (ar(d, 2), 14 + (t & 1), t * 32 + j4 * 768 + s * 6144)
    return 'ds_read_b64_tr_b16 %s, v16 offset:%d' % (ar(d, 2), W_FFN + (t - 6) * 32 + j4 * 1792 + s * 7168)
def k1_xread(buf, slot, i, s):
    return 'ds_read_b128 %s, v%d offset:%d' % (ar(xa(buf, i, s)), 10 + s, slot * XS + i * 2048)
def k1_mfma(t, d, df, x, w):
    if t in (4, 5): A, B = x, w
    else: A, B = w, x
    return 'v_mfma_f32_16x16x32_bf16 %s, %s, %s, %s' % (vr(d, 4, df), ar(A), ar(B), vr(d, 4, df))

def k1_dmas(w, xslot):
    L = []
    for ii in range(3):
        L.append(('s_add_u32 m0, s34, %d' % ((3 * w + ii) * 1024),
                  'buffer_load_dwordx4 v%d, s[12:15], s32 offen lds' % (3 + ii)))
    for ii in range(4):
        q = 4 * w + ii
        if q < 14:
            L.append(('s_add_u32 m0, s34, %d' % (W_FFN + q * 1024),
                      'buffer_load_dwordx4 v%d, s[16:19], s33 offen lds' % (6 + ii)))
        else:
            L.append(('s_add_u32 m0, s34, %d' % (W_HALO + (q - 14) * 1024),
                      'buffer_load_dwordx4 v%d, s[8:11], s31 offen lds' % (6 + ii)))
    for i in range(8):
        su = 's_mov_b32 m0, %d' % (xslot * XS + w * 8192 + i * 1024)
        if i >= 2:
            if i % 2 == 0: su += '\ns_add_u32 s37, s31, %d' % ((i // 2) * 32768)
            so = 's37'
        else: so = 's31'
        L.append((su, 'buffer_load_dwordx4 v%d, s[8:11], %s offen lds' % (1 + (i & 1), so)))
    return L

def k1_kcalc(cfg):
    if cfg.rot:
        W = cfg.rot
        s = 's_add_u32 s38, s36, s41\ns_and_b32 s38, s38, %d\ns_andn2_b32 s39, s36, %d\ns_or_b32 s38, s38, s39\n' % (W - 1, W - 1)
        k = 's38'
    else:
        s = ''; k = 's36'
    s += 's_lshl_b32 s31, %s, 7\ns_mul_i32 s32, %s, %d\ns_mul_i32 s33, %s, %d' % (k, k, 64 * 6144, k, 64 * 7168)
    return s.split('\n')

def k1_step(S, cfg, w, par):
    order = [(0, 0), (0, 1), (1, 1), (1, 0), (2, 0), (2, 1), (3, 1), (3, 0)]
    ex_at = {}
    for e, t in enumerate(EXTRAS[w]):
        ex_at.setdefault(t if t >= 2 else t + 7, []).append((e, t))
    mf = []; wstart = []
    for t in range(13):
        wstart.append(len(mf))
        for (i, s) in order:
            mf.append(k1_mfma(t, acc1(t, i), 'v', xa(par, i, s), wa(t, s)))
        for (e, te) in ex_at.get(t, []):
            for s in (0, 1):
                mf.append(k1_mfma(te, EXA + 4 * e, 'a', ha(s), wa(te, s)))
    n = len(mf)
    fill = [[] for _ in range(n)]
    pre = [[] for _ in range(n)]
    for t in range(13):
        tt = (t + 2) % 13
        rd = [k1_wread(tt, s, j4) for s in (0, 1) for j4 in (0, 1)]
        if t < 11:
            for k, r in enumerate(rd): fill[wstart[t] + k].append(r)
        else:
            xs = [(0, 0), (0, 1), (1, 1), (1, 0)] if t == 11 else [(2, 0), (2, 1), (3, 1), (3, 0)]
            seq = rd + [k1_xread(1 - par, 1 - par, i, s) for (i, s) in xs]
            for k, r in enumerate(seq): fill[wstart[t] + k].append(r)
    fill[wstart[0] + 4].append('ds_read_b128 %s, v12' % ar(ha(0)))
    fill[wstart[0] + 5].append('ds_read_b128 %s, v13' % ar(ha(1)))
    fill[wstart[1] + 4].append('s_cmp_eq_u32 s34, %d\ns_cselect_b32 s35, %d, s42' % (WB + WSLOT, -2 * WSLOT & 0xffffffff))
    fill[wstart[2] + 4].append('v_add_u32 v12, s35, v12')
    fill[wstart[2] + 5].append('v_add_u32 v13, s35, v13')
    fill[wstart[10] + 4].append('v_add_u32 v14, s35, v14')
    fill[wstart[10] + 5].append('v_add_u32 v15, s35, v15')
    fill[wstart[10] + 6].append('v_add_u32 v16, s35, v16')
    pre[wstart[11]].append('BARRIER')
    dm = k1_dmas(w, par)
    for k, (su, ld) in enumerate(dm):
        p = 3 + (k * (n - 8)) // 15
        fill[p].append(su)
        fill[p + 1].append(('DMA', ld))
    last = 3 + (14 * (n - 8)) // 15 + 1
    kc = ['s_add_u32 s36, s36, 1'] + k1_kcalc(cfg)
    kc += ['s_add_u32 s34, s34, %d' % WSLOT, 's_cmp_eq_u32 s34, %d\ns_cselect_b32 s34, %d, s34' % (WB + 3 * WSLOT, WB)]
    if par == 1:
        kc += ['s_cmp_ge_u32 s36, 16\ns_cselect_b32 s10, 0, s10', 's_cselect_b32 s14, 0, s14\ns_cselect_b32 s18, 0, s18']
    p = last + 1; k = 0
    room = n - p
    per = (len(kc) + room - 1) // room
    while k < len(kc):
        for x in kc[k:k + per]: fill[p].append(x)
        k += per; p += 1
    tagn = ('d', par)
    for k in range(n):
        for x in pre[k]:
            if x == 'BARRIER':
                S.wait_tag(lambda t: t != tagn, lg=0)
                S.emit('s_barrier')
        S.emit(mf[k])
        for x in fill[k]:
            if isinstance(x, tuple): S.emit(x[1], tag=tagn)
            else: S.emit(x)

def pk(op, d, *src, sel=None, selhi=None):
    s = 'v_pk_%s_f32 %s, %s' % (op, vr(d, 2), ', '.join(x if isinstance(x, str) else vr(x, 2) for x in src))
    n = len(src)
    if sel is not None: s += ' op_sel:[%s]' % ','.join(map(str, sel))
    if selhi is not None: s += ' op_sel_hi:[%s]' % ','.join(map(str, selhi))
    return s

def gen_k1(cfg):
    a = Asm()
    a.e('s_cmp_ge_u32 s2, 256\ns_cbranch_scc1 K1_end')
    stamp(a, cfg, 1, 0, 20)
    a.e('s_load_dwordx4 s[44:47], s[0:1], 0')
    a.e('s_load_dwordx4 s[48:51], s[0:1], 32')
    a.e('s_load_dwordx2 s[52:53], s[0:1], 80')
    a.e('v_lshrrev_b32 v17, 6, v0\nv_and_b32 v0, 63, v0')
    a.e('v_readfirstlane_b32 s28, v17')
    a.e('s_and_b32 s29, s2, 1\ns_lshl_b32 s29, s29, 2\ns_lshr_b32 s3, s2, 6\ns_add_u32 s29, s29, s3')
    a.e('s_bfe_u32 s30, s2, 0x20001\ns_lshl_b32 s30, s30, 3\ns_bfe_u32 s3, s2, 0x30003\ns_add_u32 s30, s30, s3')
    if cfg.rot:
        a.e('s_add_u32 s41, s29, s30')
    a.e('s_lshl_b32 s3, s29, 8\ns_lshl_b32 s4, s28, 6\ns_add_u32 s54, s3, s4')
    a.e('v_lshrrev_b32 v18, 3, v0')
    a.e('v_lshrrev_b32 v19, 4, v0')
    a.e('v_and_b32 v20, 7, v0')
    a.e('v_xor_b32 v21, v20, v19')
    a.e('v_xor_b32 v22, 4, v21')
    a.e('v_add_u32 v23, s54, v18')
    a.e('v_lshlrev_b32 v23, 11, v23')
    a.e('v_lshl_add_u32 v1, v21, 4, v23')
    a.e('v_lshl_add_u32 v2, v22, 4, v23')
    a.e('v_add_u32 v2, 0x4000, v2')
    a.e('s_mul_i32 s3, s28, 192\ns_lshl_b32 s4, s30, 6')
    for ii in range(3):
        a.e('v_add_u32 v23, s3, v0')
        if ii: a.e('v_add_u32 v23, %d, v23' % (64 * ii))
        a.e('v_mul_u32_u24 v24, 5462, v23\nv_lshrrev_b32 v24, 16, v24')
        a.e('v_mul_u32_u24 v25, 12, v24\nv_sub_u32 v25, v23, v25')
        a.e('v_lshrrev_b32 v26, 2, v24\nv_and_b32 v26, 2, v26\nv_xor_b32 v25, v25, v26')
        a.e('v_lshrrev_b32 v26, 2, v25\nv_and_b32 v25, 3, v25')
        a.e('v_mul_u32_u24 v24, 6144, v24')
        a.e('v_lshl_add_u32 v24, v26, 11, v24\nv_lshl_add_u32 v24, v25, 4, v24')
        a.e('v_add_u32 v%d, s4, v24' % (3 + ii))
    a.e('s_lshl_b32 s3, s28, 8\ns_mul_i32 s4, s30, 224\ns_and_b32 s5, s30, 1\ns_lshl_b32 s5, s5, 1')
    for ii in range(4):
        a.e('v_add_u32 v23, s3, v0')
        if ii: a.e('v_add_u32 v23, %d, v23' % (64 * ii))
        a.e('v_mul_u32_u24 v24, 4682, v23\nv_lshrrev_b32 v24, 16, v24')
        a.e('v_mul_u32_u24 v25, 14, v24\nv_sub_u32 v25, v23, v25')
        a.e('v_add_u32 v25, s5, v25\nv_subrev_u32 v26, 14, v25\nv_min_u32 v25, v25, v26')
        a.e('v_and_b32 v26, 0x33, v24\nv_and_b32 v27, 4, v24\nv_lshl_add_u32 v26, v27, 1, v26')
        a.e('v_and_b32 v27, 8, v24\nv_lshrrev_b32 v27, 1, v27\nv_add_u32 v26, v26, v27')
        a.e('v_mul_u32_u24 v26, 7168, v26')
        a.e('v_lshl_add_u32 v26, v25, 4, v26')
        a.e('v_add_u32 v%d, s4, v26' % (6 + ii))
    a.e('s_lshl_b32 s3, s29, 8\ns_sub_u32 s3, s3, 16\ns_max_i32 s55, s3, 0')
    a.e('s_cmp_lg_u32 s28, 3\ns_cbranch_scc1 K1_nohalo')
    a.e('v_add_u32 v23, s55, v18\nv_lshlrev_b32 v23, 11, v23')
    a.e('v_lshl_add_u32 v8, v21, 4, v23')
    a.e('v_lshl_add_u32 v9, v22, 4, v23\nv_add_u32 v9, 0x4000, v9')
    a.label('K1_nohalo')
    a.e('s_waitcnt lgkmcnt(0)')
    a.srd(8, 44, 2048 * 2048)
    a.srd(12, 46, 1024 * 6144)
    a.srd(16, 48, 1024 * 7168)
    a.srd(20, 52, WS_BYTES)
    a.srd(24, 50, 7168)
    a.e('s_mov_b32 s36, 0\ns_mov_b32 s34, %d\ns_mov_b32 s42, %d' % (WB, WSLOT))
    for x in k1_kcalc(cfg): a.e(x)
    a.e('s_cmp_eq_u32 s28, 1\ns_cbranch_scc1 K1_w1\ns_cmp_eq_u32 s28, 2\ns_cbranch_scc1 K1_w2\ns_cmp_eq_u32 s28, 3\ns_cbranch_scc1 K1_w3')

    def common_setup(S):
        S.emit('v_and_b32 v20, 15, v0')
        S.emit('v_lshrrev_b32 v21, 1, v20\nv_xor_b32 v21, v21, v19')
        S.emit('v_lshlrev_b32 v21, 4, v21\nv_lshl_add_u32 v21, v20, 7, v21')
        S.emit('s_lshl_b32 s3, s28, 13')
        S.emit('v_add_u32 v10, s3, v21\nv_xor_b32 v11, 64, v10')
        S.emit('v_add_u32 v12, %d, v21\nv_xor_b32 v13, 64, v12' % (WB + W_HALO))
        S.emit('v_mov_b32 v22, %d\nv_cmp_eq_u32 vcc, 0, v20' % (WB + W_ONES))
        S.emit('v_cndmask_b32 v12, v12, v22, vcc\nv_cndmask_b32 v13, v13, v22, vcc')
        S.emit('v_bfe_u32 v22, v0, 2, 2')
        S.emit('v_and_b32 v23, 3, v0\nv_lshlrev_b32 v23, 3, v23')
        S.emit('v_lshl_add_u32 v24, v19, 3, v22\nv_mul_u32_u24 v24, 192, v24\nv_add_u32 v24, v24, v23')
        S.emit('v_add_u32 v24, %d, v24' % WB)
        S.emit('v_and_b32 v25, 1, v19\nv_lshlrev_b32 v26, 5, v25')
        S.emit('v_add_u32 v14, v24, v26\nv_sub_u32 v15, v24, v26')
        S.emit('v_lshrrev_b32 v26, 1, v19\nv_lshlrev_b32 v26, 4, v26\nv_lshl_add_u32 v26, v25, 2, v26\nv_add_u32 v26, v26, v22')
        S.emit('v_mul_u32_u24 v26, 224, v26\nv_add_u32 v26, v26, v23\nv_add_u32 v16, %d, v26' % WB)
        S.emit('v_mov_b32 v28, 0x3f803f80\nv_mov_b32 v29, v28\nv_mov_b32 v30, v28\nv_mov_b32 v31, v28\nv_mov_b32 v27, %d' % (WB + W_ONES))
        for k in range(3): S.emit('ds_write_b128 v27, v[28:31] offset:%d' % (k * WSLOT))
        S.emit('v_lshlrev_b32 v22, 2, v20\nv_lshlrev_b32 v23, 4, v19\nv_lshlrev_b32 v24, 3, v19')
        S.emit('s_lshl_b32 s3, s55, 2\ns_lshl_b32 s4, s54, 2\ns_add_u32 s5, s3, %d\ns_add_u32 s6, s4, %d' % (WS_NMR, WS_NMR))
        for k in range(5):
            so, sn, off = ('s3', 's5', 0) if k == 0 else ('s4', 's6', (k - 1) * 64)
            S.emit('buffer_load_dword a%d, v22, s[20:23], %s offen offset:%d' % (ST1 + k, so, off))
            S.emit('buffer_load_dword a%d, v22, s[20:23], %s offen offset:%d' % (ST1 + 5 + k, sn, off))
            S.emit('buffer_load_dwordx4 %s, v23, s[20:23], %s offen offset:%d' % (ar(ST2 + 4 * k), so, off))
            S.emit('buffer_load_dwordx4 %s, v23, s[20:23], %s offen offset:%d' % (ar(ST2 + 20 + 4 * k), sn, off))
        S.emit('s_mul_i32 s3, s30, 224\ns_and_b32 s4, s30, 1\ns_lshl_b32 s5, s4, 5\ns_add_u32 s5, s5, s3')
        S.emit('s_xor_b32 s4, s4, 1\ns_mul_i32 s4, s4, 192\ns_add_u32 s4, s4, s3')
        for f in range(7):
            if f < 6: S.emit('buffer_load_dwordx2 %s, v24, s[24:27], s5 offen offset:%d' % (ar(B1A + 2 * f, 2), f * 32))
            else: S.emit('buffer_load_dwordx2 %s, v24, s[24:27], s4 offen' % ar(B1A + 2 * f, 2))
        for r in range(ACC1, 256): S.emit('v_mov_b32 v%d, 0' % r)
        for r in range(EXA, EXA + 16): S.emit('v_accvgpr_write_b32 a%d, 0' % r)

    for w in range(4):
        if w: a.label('K1_w%d' % w)
        S = Stream(a)
        for st in range(2):
            for su, ld in k1_dmas(w, st):
                S.emit(su); S.emit(ld, tag=('p', st))
            S.emit('s_add_u32 s36, s36, 1\ns_add_u32 s34, s34, %d' % WSLOT)
            for x in k1_kcalc(cfg): S.emit(x)
        common_setup(S)
        S.wait_tag(lambda t: t == ('p', 0), lg=0)
        S.emit('s_barrier')
        stamp(a, cfg, 1, 1, 20)
        for t in (0, 1):
            for s in (0, 1):
                for j4 in (0, 1): S.emit(k1_wread(t, s, j4))
        S.wait(lg=0)
        for i in range(4):
            for s in (0, 1): S.emit(k1_xread(0, 0, i, s))
        S.wait(lg=0)
        S.mute = True
        k1_step(S, cfg, w, 0); k1_step(S, cfg, w, 1)
        st0 = S.state()
        S.mute = False
        a.raw('.p2align 3')
        a.label('K1_loop%d' % w)
        k1_step(S, cfg, w, 0); k1_step(S, cfg, w, 1)
        assert S.state() == st0
        a.e('s_cmp_lt_u32 s36, 18\ns_cbranch_scc1 K1_loop%d' % w)
        stamp(a, cfg, 1, 2, 20)
        S.wait(lg=0)
        S.emit('v_lshlrev_b32 v1, 4, v19\nv_add_u32 v1, %d, v1' % EX)
        S.emit('v_and_b32 v20, 15, v0\nv_lshlrev_b32 v2, 2, v20\nv_add_u32 v2, %d, v2' % EX)
        S.emit('v_lshlrev_b32 v3, 4, v0')
        S.emit('v_add_u32 v4, %d, v3' % EX_KV)
        S.emit('s_nop 3')
        S.emit('s_mov_b32 exec_lo, 0x00010001\ns_mov_b32 exec_hi, 0x00010001')
        for e, t in enumerate(EXTRAS[w]):
            if t not in (4, 5): S.emit('ds_write_b128 v1, %s offset:%d' % (ar(EXA + 4 * e), t * 64))
        for e, t in enumerate(EXTRAS[w]):
            if t in (4, 5):
                S.emit('s_mov_b64 exec, 0xffff')
                S.emit('ds_write_b32 v2, a%d offset:%d' % (EXA + 4 * e, t * 64))
        S.emit('s_mov_b64 exec, -1')
        S.wait(lg=0)
        S.emit('s_barrier')
        t = EXTRAS[w][0]
        for r in range(4): S.emit('v_accvgpr_read_b32 v%d, a%d' % (24 + r, EXA + r))
        if t < 4:
            S.emit('ds_read_b128 v[28:31], v1 offset:%d' % (t * 64))
            S.emit('v_accvgpr_read_b32 v32, a%d\nv_accvgpr_read_b32 v33, a%d' % (ST1, ST1 + 5))
            for r in range(4):
                S.emit('v_mul_f32 v%d, v33, v%d' % (28 + r, 28 + r))
                S.emit('v_fma_f32 v%d, v32, v%d, v%d' % (24 + r, 24 + r, 28 + r))
        else:
            S.emit('ds_read_b32 v28, v2 offset:%d' % (t * 64))
            for r in range(4):
                S.emit('v_accvgpr_read_b32 v%d, a%d\nv_accvgpr_read_b32 v%d, a%d' % (32 + r, ST2 + r, 36 + r, ST2 + 20 + r))
            for r in range(4):
                S.emit('v_mul_f32 v%d, v%d, v28' % (36 + r, 36 + r))
                S.emit('v_fma_f32 v%d, v%d, v%d, v%d' % (24 + r, 32 + r, 24 + r, 36 + r))
        S.emit('v_cvt_pk_bf16_f32 v24, v24, v25\nv_cvt_pk_bf16_f32 v25, v26, v27')
        S.emit('ds_write_b64 v4, v[24:25] offset:%d' % ((0 if t < 4 else 1024) + 8 * (t & 1)))
        S.wait(lg=0)
        if w < 3: a.e('s_branch K1_epi')

    a.label('K1_epi')
    S = Stream(a)
    RN = 6
    CC = 14
    CS = 24
    T = 40
    for t in range(4): S.emit('ds_read_b128 %s, v1 offset:%d' % (vr(CS + 4 * t), t * 64))
    S.emit('ds_read_b32 v16, v2 offset:256\nds_read_b32 v17, v2 offset:320')
    for i in range(4):
        S.emit('v_accvgpr_read_b32 v%d, a%d\nv_accvgpr_read_b32 v%d, a%d' % (RN + 2 * i, ST1 + 1 + i, RN + 2 * i + 1, ST1 + 6 + i))
    c1 = -2.0 * math.sqrt(2.0 / math.pi) * math.log2(math.e)
    S.emit('v_mov_b32 v%d, %s\nv_mov_b32 v%d, %s' % (CC, f32(c1), CC + 1, f32(c1 * 0.044715)))
    for t0 in (2, 0):
        for i in range(4):
            for h in range(4):
                S.emit(pk('mul', T + 2 * h, RN + 2 * i, CS + 4 * t0 + 2 * h, sel=[1, 0], selhi=[1, 1]))
            for h in range(4):
                r = acc1(t0 + (h >> 1), i) + 2 * (h & 1)
                S.emit(pk('fma', T + 2 * h, RN + 2 * i, r, T + 2 * h, sel=[0, 0, 0], selhi=[0, 1, 1]))
            for h in range(4):
                S.emit('v_cvt_pk_bf16_f32 v%d, v%d, v%d' % (acc1(t0, i) + h, T + 2 * h, T + 2 * h + 1))
    VS = [acc1(3, 0), acc1(1, 0)]
    for i in range(4):
        for r in range(4):
            S.emit('v_accvgpr_read_b32 v%d, a%d\nv_accvgpr_read_b32 v%d, a%d' % (CS + r, ST2 + 4 * (i + 1) + r, CS + 4 + r, ST2 + 20 + 4 * (i + 1) + r))
        for h in range(4):
            tv = h >> 1
            S.emit(pk('mul', T + 2 * h, CS + 4 + 2 * (h & 1), 16, sel=[0, tv], selhi=[1, tv]))
        for h in range(4):
            S.emit(pk('fma', T + 2 * h, CS + 2 * (h & 1), acc1(4 + (h >> 1), i) + 2 * (h & 1), T + 2 * h))
        for h in range(4):
            S.emit('v_cvt_pk_bf16_f32 v%d, v%d, v%d' % (VS[h >> 1] + 2 * (i + 1) + (h & 1), T + 2 * h, T + 2 * h + 1))
    S.emit('s_lshl_b32 s3, s28, 11\nv_add_u32 v4, s3, v4')
    S.emit('ds_write_b128 v4, %s offset:2048' % vr(acc1(2, 3)))
    S.emit('ds_write_b64 v4, %s offset:3072' % vr(VS[0] + 8, 2))
    S.emit('ds_write_b64 v4, %s offset:3080' % vr(VS[1] + 8, 2))
    S.emit('s_lshr_b32 s3, s54, 4\ns_mul_i32 s3, s3, 144\ns_lshr_b32 s4, s30, 3\ns_mul_i32 s4, s4, 36\ns_add_u32 s3, s3, s4')
    S.emit('s_and_b32 s4, s30, 7\ns_add_u32 s56, s3, s4\ns_lshl_b32 s56, s56, 10\ns_add_u32 s56, s56, %d' % WS_H)
    S.emit('s_lshr_b32 s4, s4, 1\ns_mul_i32 s4, s4, 7\ns_add_u32 s3, s3, s4\ns_add_u32 s3, s3, 8\ns_lshl_b32 s3, s3, 10\ns_add_u32 s3, s3, %d' % WS_H)
    S.emit('s_and_b32 s4, s30, 1\ns_lshl_b32 s5, s4, 12\ns_add_u32 s57, s3, s5')
    S.emit('s_lshl_b32 s5, s4, 3\ns_add_u32 s58, s3, s5\ns_add_u32 s58, s58, 3072')
    S.wait(lg=0)
    S.emit('s_barrier')
    KP = 20
    S.emit('ds_read_b128 %s, v4' % vr(KP))
    S.emit('ds_read_b64 %s, v4 offset:1024' % vr(VS[0], 2))
    S.emit('ds_read_b64 %s, v4 offset:1032' % vr(VS[1], 2))
    S.emit('v_and_b32 v5, 15, v0\nv_and_b32 v16, 1, v0\nv_lshl_add_u32 v17, v19, 2, v16')
    S.emit('v_cmp_eq_u32 s[60:61], 1, v16\nv_cmp_le_u32 s[62:63], v17, v5\nv_add_u32 v17, 2, v17\nv_cmp_le_u32 s[4:5], v17, v5')
    S.emit('v_mov_b32 v16, 0xffff\nv_mov_b32 v17, 0xffff0000\nv_cndmask_b32 v16, v16, v17, s[60:61]')
    MK = CS
    S.emit('v_cndmask_b32 v%d, 0, v16, s[62:63]\nv_cndmask_b32 v%d, v16, 0, s[62:63]' % (MK, MK + 1))
    S.emit('v_cndmask_b32 v%d, 0, v16, s[4:5]\nv_cndmask_b32 v%d, v16, 0, s[4:5]' % (MK + 2, MK + 3))
    S.emit('s_cmp_eq_u32 s54, 0\ns_cselect_b32 s3, %s, 0' % f32(-1e30))
    for r in range(4): S.emit('v_mov_b32 v%d, s3' % (28 + r))
    SC = lambda i: acc1(4, i)
    SP = lambda i: acc1(5, i)
    for i in (1, 2, 3, 0):
        S.emit('v_mfma_f32_16x16x32_bf16 %s, %s, %s, 0' % (vr(SC(i)), vr(acc1(2, i)), vr(acc1(0, i))))
        kp = KP if i == 0 else acc1(2, i - 1)
        S.emit('v_mfma_f32_16x16x32_bf16 %s, %s, %s, %s' % (vr(SP(i)), vr(kp), vr(acc1(0, i)), vr(28) if i == 0 else '0'))
    I4 = (1, 2, 3, 0)
    for i in I4:
        c, p = SC(i), SP(i)
        S.emit('v_cndmask_b32 v%d, v%d, v%d, s[60:61]' % (c, c, c + 1))
        S.emit('v_cndmask_b32 v%d, v%d, v%d, s[60:61]' % (c + 2, c + 2, c + 3))
        S.emit('v_cndmask_b32 v%d, v%d, v%d, s[60:61]' % (p, p, p + 1))
        S.emit('v_cndmask_b32 v%d, v%d, v%d, s[60:61]' % (p + 2, p + 2, p + 3))
        S.emit('v_cndmask_b32 v%d, v%d, v%d, s[62:63]' % (c, p, c))
        S.emit('v_cndmask_b32 v%d, v%d, v%d, s[4:5]' % (c + 1, p + 2, c + 2))
        S.emit('v_max_f32 v%d, v%d, v%d' % (c + 2, c, c + 1))
    for sw in ('v_permlane16_swap_b32', 'v_permlane32_swap_b32'):
        for i in I4: S.emit('v_mov_b32 v%d, v%d' % (SC(i) + 3, SC(i) + 2))
        for i in I4: S.emit('%s v%d, v%d' % (sw, SC(i) + 2, SC(i) + 3))
        for i in I4: S.emit('v_max_f32 v%d, v%d, v%d' % (SC(i) + 2, SC(i) + 2, SC(i) + 3))
    S.emit('s_mov_b32 s3, %s' % f32(32 ** -0.5 * math.log2(math.e)))
    for i in I4:
        c = SC(i)
        S.emit('v_sub_f32 v%d, v%d, v%d\nv_sub_f32 v%d, v%d, v%d' % (c, c, c + 2, c + 1, c + 1, c + 2))
        S.emit('v_mul_f32 v%d, s3, v%d\nv_mul_f32 v%d, s3, v%d' % (c, c, c + 1, c + 1))
    for i in I4:
        c = SC(i)
        S.emit('v_exp_f32 v%d, v%d\nv_exp_f32 v%d, v%d' % (c, c, c + 1, c + 1))
    for i in I4: S.emit('v_add_f32 v%d, v%d, v%d' % (SC(i) + 2, SC(i), SC(i) + 1))
    for sw in ('v_permlane16_swap_b32', 'v_permlane32_swap_b32'):
        for i in I4: S.emit('v_mov_b32 v%d, v%d' % (SC(i) + 3, SC(i) + 2))
        for i in I4: S.emit('%s v%d, v%d' % (sw, SC(i) + 2, SC(i) + 3))
        for i in I4: S.emit('v_add_f32 v%d, v%d, v%d' % (SC(i) + 2, SC(i) + 2, SC(i) + 3))
    for i in I4: S.emit('v_rcp_f32 v%d, v%d' % (SC(i) + 2, SC(i) + 2))
    for i in I4:
        c, p = SC(i), SP(i)
        S.emit('v_mul_f32 v%d, v%d, v%d\nv_mul_f32 v%d, v%d, v%d' % (c, c, c + 2, c + 1, c + 1, c + 2))
        S.emit('v_cvt_pk_bf16_f32 v%d, v%d, v%d\nv_cvt_pk_bf16_f32 v%d, v%d, v%d' % (c, c, c, c + 1, c + 1, c + 1))
        S.emit('v_and_b32 v%d, v%d, v%d\nv_and_b32 v%d, v%d, v%d' % (p, c, MK + 1, p + 1, c + 1, MK + 3))
        S.emit('v_and_b32 v%d, v%d, v%d\nv_and_b32 v%d, v%d, v%d' % (p + 2, c, MK, p + 3, c + 1, MK + 2))
    for i in I4:
        S.emit('v_mfma_f32_16x16x32_bf16 %s, %s, %s, 0' % (vr(acc1(0, i)), vr(VS[0] + 2 * i), vr(SP(i))))
        S.emit('v_mfma_f32_16x16x32_bf16 %s, %s, %s, 0' % (vr(SC(i)), vr(VS[1] + 2 * i), vr(SP(i))))
    for i in I4:
        o = acc1(0, i)
        S.emit('v_cvt_pk_bf16_f32 v%d, v%d, v%d\nv_cvt_pk_bf16_f32 v%d, v%d, v%d' % (o, o, o + 1, o + 1, o + 2, o + 3))
        c = SC(i)
        S.emit('v_cvt_pk_bf16_f32 v%d, v%d, v%d\nv_cvt_pk_bf16_f32 v%d, v%d, v%d' % (o + 2, c, c + 1, o + 3, c + 2, c + 3))
        S.emit('s_add_u32 s3, s56, %d' % (i * 144 * 1024))
        S.emit('buffer_store_dwordx4 %s, v3, s[20:23], s3 offen' % vr(o))
    def gelu(quads, i):
        n = len(quads) * 2
        P = [(q[0] + 2 * h, q[1] + 2 * h, q[2] + 2 * h) for q in quads for h in range(2)]
        for k, (x, cs, b) in enumerate(P): S.emit(pk('fma', T + 2 * k, RN + 2 * i, cs, b, sel=[1, 0, 0], selhi=[1, 1, 1]))
        for k, (x, cs, b) in enumerate(P): S.emit(pk('fma', x, RN + 2 * i, x, T + 2 * k, sel=[0, 0, 0], selhi=[0, 1, 1]))
        for k, (x, cs, b) in enumerate(P): S.emit(pk('mul', T + 2 * k, x, x))
        for k, (x, cs, b) in enumerate(P): S.emit(pk('fma', T + 2 * k, T + 2 * k, CC, CC, sel=[0, 1, 0], selhi=[1, 1, 0]))
        for k, (x, cs, b) in enumerate(P): S.emit(pk('mul', T + 2 * k, T + 2 * k, x))
        for k in range(2 * n): S.emit('v_exp_f32 v%d, v%d' % (T + k, T + k))
        for k in range(n): S.emit(pk('add', T + 2 * k, T + 2 * k, '1.0', selhi=[1, 0]))
        for k in range(2 * n): S.emit('v_rcp_f32 v%d, v%d' % (T + k, T + k))
        for k, (x, cs, b) in enumerate(P): S.emit(pk('mul', T + 2 * k, T + 2 * k, x))
        for k in range(n): S.emit('v_cvt_pk_bf16_f32 v%d, v%d, v%d' % (quads[0][0] + k, T + 2 * k, T + 2 * k + 1))
    for fp in range(4):
        fs = [2 * fp, 2 * fp + 1] if fp < 3 else [6]
        for k, f in enumerate(fs):
            S.emit('ds_read_b128 %s, v1 offset:%d' % (vr(CS + 4 * k), (6 + f) * 64))
            for h in range(2):
                S.emit('v_accvgpr_read_b32 v16, a%d' % (B1A + 2 * f + h))
                S.emit('v_lshlrev_b32 v%d, 16, v16\nv_and_b32 v%d, 0xffff0000, v16' % (CS + 8 + 4 * k + 2 * h, CS + 9 + 4 * k + 2 * h))
        for i in range(4):
            gelu([(acc1(6 + f, i), CS + 4 * k, CS + 8 + 4 * k) for k, f in enumerate(fs)], i)
            if fp < 3:
                S.emit('s_add_u32 s3, s57, %d' % (i * 144 * 1024 + fp * 1024))
                S.emit('buffer_store_dwordx4 %s, v3, s[20:23], s3 offen' % vr(acc1(6 + fs[0], i)))
            else:
                S.emit('s_add_u32 s3, s58, %d' % (i * 144 * 1024))
                S.emit('buffer_store_dwordx2 %s, v3, s[20:23], s3 offen' % vr(acc1(12, i), 2))
    stamp(a, cfg, 1, 3, 20)
    if cfg.stamps:
        a.e('s_waitcnt vmcnt(0)')
        stamp(a, cfg, 1, 4, 20)
    stamp_flush(a, cfg, 1, 5, 20, 28)
    a.label('K1_end')
    a.e('s_endpgm')
    return hazard.fix(a.text())

ACC2 = 128
def acc2(t, i): return ACC2 + (t * 4 + i) * 4
def aa(buf, i, s): return buf * 32 + (i * 2 + s) * 4
def wb(t, s): return 96 + t * 8 + s * 4
K2_LDS = 49152
def k2_wread(slot, t, s, j4):
    return 'ds_read_b64_tr_b16 %s, v%d offset:%d' % (ar(wb(t, s) + 2 * j4, 2), 8 + t, slot * 16384 + s * 8192 + j4 * 4096)
def k2_loads(slot):
    L = []
    for ii in range(4):
        su = 's_add_u32 m0, s40, %d' % (slot * 16384 + ii * 1024)
        L.append((su, 'buffer_load_dwordx4 v%d, s[12:15], %s offen lds' % (5 + (ii & 1), 's32' if ii < 2 else 's33'), 'w'))
    for i in range(4):
        for s in (0, 1):
            L.append((None, 'buffer_load_dwordx4 %s, v%d, s[16:19], s31 offen offset:%d' % (ar(aa(slot, i, s)), 1 + i, s * 1024), 'a'))
    return L
def k2_kcalc():
    return ['s_lshl_b32 s31, s36, 11',
            's_cmp_lt_u32 s36, 4\ns_cselect_b32 s12, s46, s48',
            's_cselect_b32 s13, s47, s49\ns_cselect_b32 s14, s42, s43',
            's_cselect_b32 s32, s38, s39\ns_lshl_b32 s33, s36, 17',
            's_add_u32 s32, s32, s33\ns_add_u32 s33, s32, 16384',
            's_cmp_ge_u32 s36, 18\ns_cselect_b32 s14, 0, s14',
            's_cselect_b32 s18, 0, s18']
def k2_step(S, cfg, par):
    order = [(0, 0), (0, 1), (1, 1), (1, 0), (2, 0), (2, 1), (3, 1), (3, 0)]
    mf = []
    for t in range(8):
        for (i, s) in order:
            d = acc2(t, i)
            mf.append('v_mfma_f32_16x16x32_bf16 %s, %s, %s, %s' % (vr(d), ar(wb(t, s)), ar(aa(par, i, s)), vr(d)))
    n = 64
    fill = [[] for _ in range(n)]
    for t in range(8):
        tt = (t + 2) % 8
        sl = par if t < 6 else (par + 1) % 3
        for k, (s, j4) in enumerate(((0, 0), (0, 1), (1, 0), (1, 1))):
            fill[8 * t + k].append(k2_wread(sl, tt, s, j4))
    ld = k2_loads((par + 2) % 3)
    for k, (su, l, kind) in enumerate(ld):
        p = 1 + (k * 56) // 12
        if su: fill[p].append(su)
        fill[p + 1].append((kind, l))
    kc = ['s_add_u32 s36, s36, 1'] + k2_kcalc()
    for k, x in enumerate(kc): fill[55 + k].append(x)
    for k in range(n):
        if k == 48:
            S.wait_tag(lambda t: t == ('w', (par + 1) % 3), lg=0)
            S.emit('s_barrier')
        S.emit(mf[k])
        for x in fill[k]:
            if isinstance(x, tuple): S.emit(x[1], tag=(x[0], (par + 2) % 3))
            else: S.emit(x)

def gen_k2(cfg):
    a = Asm()
    a.e('s_cmp_ge_u32 s2, 256\ns_cbranch_scc1 K2_end')
    stamp(a, cfg, 2, 0, 20)
    a.e('s_load_dwordx2 s[44:45], s[0:1], 0')
    a.e('s_load_dwordx2 s[46:47], s[0:1], 16')
    a.e('s_load_dwordx4 s[48:51], s[0:1], 48')
    a.e('s_load_dwordx2 s[52:53], s[0:1], 64')
    a.e('s_load_dwordx2 s[54:55], s[0:1], 80')
    a.e('v_lshrrev_b32 v17, 6, v0\nv_and_b32 v0, 63, v0')
    a.e('v_readfirstlane_b32 s28, v17')
    a.e('s_and_b32 s29, s2, 1\ns_lshl_b32 s29, s29, 2\ns_lshr_b32 s3, s2, 6\ns_add_u32 s29, s29, s3')
    a.e('s_bfe_u32 s30, s2, 0x20001\ns_bfe_u32 s41, s2, 0x30003')
    a.e('v_lshrrev_b32 v19, 4, v0\nv_and_b32 v20, 15, v0\nv_lshlrev_b32 v7, 4, v0')
    a.e('s_lshl_b32 s3, s29, 4\ns_lshl_b32 s4, s28, 2\ns_add_u32 s56, s3, s4')
    a.e('s_mul_i32 s5, s30, 36')
    for i in range(4):
        a.e('s_add_u32 s4, s30, %d\ns_and_b32 s4, s4, 3\ns_add_u32 s4, s4, s56' % i)
        if i == 0: a.e('s_mov_b32 s57, s4')
        a.e('s_mul_i32 s4, s4, 144\ns_add_u32 s4, s4, s5\ns_lshl_b32 s4, s4, 10\ns_add_u32 s4, s4, %d' % WS_H)
        a.e('v_add_u32 v%d, s4, v7' % (1 + i))
    a.e('s_lshl_b32 s3, s28, 15\ns_lshl_b32 s4, s41, 8\ns_add_u32 s3, s3, s4')
    a.e('v_lshlrev_b32 v21, 1, v19\nv_xor_b32 v21, v21, v20\nv_xor_b32 v22, 8, v21')
    a.e('v_lshlrev_b32 v23, 11, v19\nv_add_u32 v23, s3, v23')
    a.e('v_lshl_add_u32 v5, v21, 4, v23\nv_lshl_add_u32 v6, v22, 4, v23\nv_add_u32 v6, 0x2000, v6')
    a.e('s_lshl_b32 s40, s28, 12')
    a.e('s_lshl_b32 s38, s30, 19')
    a.e('s_mul_i32 s39, s30, %d\ns_sub_u32 s39, s39, %d' % (896 * 2048, 4 << 17))
    a.e('s_mov_b32 s42, %d\ns_mov_b32 s43, %d' % (1024 * 2048, 3584 * 2048))
    a.e('s_waitcnt lgkmcnt(0)')
    a.e('s_and_b32 s47, s47, 0xffff\ns_and_b32 s49, s49, 0xffff')
    a.srd(8, 44, 2048 * 2048)
    a.srd(12, 46, 1024 * 2048)
    a.srd(16, 54, WS_BYTES)
    a.srd(20, 54, WS_BYTES)
    a.srd(24, 50, 2048)
    a.srd(60, 52, 2048 * 2048)
    S = Stream(a)
    S.emit('s_mov_b32 s36, 0')
    for st in range(2):
        for x in k2_kcalc(): S.emit(x)
        for su, l, kind in k2_loads(st):
            if su: S.emit(su)
            S.emit(l, tag=(kind, st))
        S.emit('s_add_u32 s36, s36, 1')
        if st == 0:
            S.emit('v_lshlrev_b32 v21, 3, v19\nv_lshl_add_u32 v22, v20, 11, v21')
            S.emit('s_lshl_b32 s4, s41, 8\ns_lshl_b32 s3, s57, 15\ns_add_u32 s58, s3, s4')
            for t in range(8):
                S.emit('buffer_load_dwordx2 %s, v22, s[8:11], s58 offen offset:%d' % (vr(32 + 2 * t, 2), t * 32))
            for t in range(8):
                S.emit('buffer_load_dwordx2 %s, v21, s[24:27], s4 offen offset:%d' % (vr(48 + 2 * t, 2), t * 32))
    for x in k2_kcalc(): S.emit(x)
    S.emit('v_bfe_u32 v22, v0, 2, 3')
    S.emit('v_lshrrev_b32 v23, 2, v0\nv_lshlrev_b32 v23, 8, v23')
    S.emit('v_and_b32 v24, 3, v0\nv_lshl_add_u32 v23, v24, 3, v23')
    for t in range(8):
        S.emit('v_xor_b32 v24, %d, v22\nv_lshl_add_u32 v%d, v24, 5, v23' % (t, 8 + t))
    for t in range(8):
        for i in range(1, 4):
            for r in range(4): S.emit('v_mov_b32 v%d, 0' % (acc2(t, i) + r))
    for t in range(8):
        for h in range(2):
            x, b, d = 32 + 2 * t + h, 48 + 2 * t + h, acc2(t, 0) + 2 * h
            S.emit('v_lshlrev_b32 v24, 16, v%d\nv_lshlrev_b32 v25, 16, v%d\nv_add_f32 v%d, v24, v25' % (x, b, d))
            S.emit('v_and_b32 v24, 0xffff0000, v%d\nv_and_b32 v25, 0xffff0000, v%d\nv_add_f32 v%d, v24, v25' % (x, b, d + 1))
    S.wait_tag(lambda t: t in (('w', 0), ('a', 0)), lg=0)
    S.emit('s_barrier')
    stamp(a, cfg, 2, 1, 20)
    for t in (0, 1):
        for s in (0, 1):
            for j4 in (0, 1): S.emit(k2_wread(0, t, s, j4))
    S.wait(lg=0)
    S.mute = True
    for p in range(3): k2_step(S, cfg, p)
    st0 = S.state()
    S.mute = False
    a.raw('.p2align 3')
    a.label('K2_loop')
    for p in range(3): k2_step(S, cfg, p)
    assert S.state() == st0
    a.e('s_cmp_lt_u32 s36, 20\ns_cbranch_scc1 K2_loop')
    stamp(a, cfg, 2, 2, 20)
    a.e('s_lshl_b32 s3, s29, 3\ns_add_u32 s3, s3, s41')
    a.e('s_lshl_b32 s5, s3, 2\ns_add_u32 s5, s5, s28\ns_lshl_b32 s5, s5, 7\ns_add_u32 s59, s5, %d' % WS_FLAG)
    a.e('s_mul_i32 s3, s3, %d\ns_lshl_b32 s4, s28, 13\ns_add_u32 s3, s3, s4\ns_add_u32 s3, s3, %d' % (12 * 32768, WS_P))
    for i in range(1, 4):
        a.e('s_add_u32 s4, s30, %d\ns_and_b32 s4, s4, 3\ns_mul_i32 s4, s4, %d\ns_add_u32 s4, s4, s3\ns_add_u32 s4, s4, %d' % (i, 3 * 32768, (i - 1) * 32768))
        for t in range(8):
            if t == 4: a.e('s_add_u32 s4, s4, 4096')
            a.e('buffer_store_dwordx4 %s, v7, s[20:23], s4 offen offset:%d sc1' % (vr(acc2(t, i)), (t & 3) * 1024))
    a.e('s_mul_i32 s4, s30, %d\ns_add_u32 s3, s3, s4' % (3 * 32768))
    a.e('v_mov_b32 v1, 1\nv_mov_b32 v2, 0\ns_lshl_b32 s4, s30, 2\ns_add_u32 s4, s4, s59')
    a.e('s_waitcnt vmcnt(0)')
    stamp(a, cfg, 2, 3, 20)
    a.e('s_mov_b64 exec, 1')
    a.e('buffer_store_dword v1, v2, s[20:23], s4 offen sc1')
    a.e('s_mov_b32 s5, 0')
    a.label('K2_poll')
    a.e('buffer_load_dwordx4 v[8:11], v2, s[20:23], s59 offen sc1')
    a.e('s_add_u32 s5, s5, 1')
    a.e('s_waitcnt vmcnt(0)')
    a.e('v_add3_u32 v8, v8, v9, v10\nv_add_u32 v8, v8, v11')
    a.e('v_readfirstlane_b32 s6, v8')
    a.e('s_cmp_eq_u32 s6, 4\ns_cbranch_scc1 K2_go')
    a.e('s_cmp_lt_u32 s5, 0x40000\ns_cbranch_scc1 K2_poll')
    a.label('K2_go')
    a.e('s_mov_b64 exec, -1')
    stamp(a, cfg, 2, 4, 20)
    S = Stream(a)
    RB = 16
    for t in range(8):
        for j in range(3):
            S.emit('s_add_u32 s4, s3, %d' % (j * 32768 + (t >> 2) * 4096))
            S.emit('buffer_load_dwordx4 %s, v7, s[20:23], s4 offen offset:%d sc1' % (vr(RB + (t * 3 + j) * 4), (t & 3) * 1024))
    S.emit('v_lshrrev_b32 v2, 4, v0\nv_and_b32 v3, 1, v2\nv_lshrrev_b32 v2, 1, v2\nv_lshlrev_b32 v3, 5, v3\nv_lshl_add_u32 v3, v2, 4, v3')
    S.emit('v_and_b32 v2, 15, v0\nv_lshl_add_u32 v3, v2, 11, v3')
    for tp in range(4):
        for t in (2 * tp, 2 * tp + 1):
            d = acc2(t, 0); r = RB + t * 12
            for h in (0, 2): S.emit(pk('add', d + h, d + h, r + h))
            for h in (0, 2): S.emit(pk('add', r + 4 + h, r + 4 + h, r + 8 + h))
            for h in (0, 2): S.emit(pk('add', d + h, d + h, r + 4 + h))
        d0, d1 = acc2(2 * tp, 0), acc2(2 * tp + 1, 0)
        S.emit('v_cvt_pk_bf16_f32 v%d, v%d, v%d\nv_cvt_pk_bf16_f32 v%d, v%d, v%d' % (d0, d0, d0 + 1, d0 + 1, d0 + 2, d0 + 3))
        S.emit('v_cvt_pk_bf16_f32 v%d, v%d, v%d\nv_cvt_pk_bf16_f32 v%d, v%d, v%d' % (d0 + 2, d1, d1 + 1, d0 + 3, d1 + 2, d1 + 3))
        S.emit('v_permlane16_swap_b32 v%d, v%d\nv_permlane16_swap_b32 v%d, v%d' % (d0, d0 + 2, d0 + 1, d0 + 3))
        S.emit('buffer_store_dwordx4 %s, v3, s[60:63], s58 offen offset:%d' % (vr(d0), tp * 64))
    if cfg.stamps:
        a.e('s_waitcnt vmcnt(0)')
        stamp(a, cfg, 2, 5, 20)
    stamp_flush(a, cfg, 2, 6, 20, 28)
    a.label('K2_end')
    a.e('s_endpgm')
    return hazard.fix(a.text())

def gen_amp(cfg):
    (ka, ia), (kb, ib), mult = cfg.amp
    a = Asm()
    a.e('s_cmp_ge_u32 s2, 1\ns_cbranch_scc1 KA_end')
    a.e('s_load_dwordx2 s[4:5], s[0:1], 80\ns_waitcnt lgkmcnt(0)')
    a.srd(8, 4, WS_BYTES)
    wg = 100
    a.e('v_mov_b32 v1, 0')
    a.e('s_mov_b32 s12, %d\ns_mov_b32 s13, %d' % (WS_TS + ka * 65536 + wg * 256 + ia * 8, WS_TS + kb * 65536 + wg * 256 + ib * 8))
    a.e('buffer_load_dword v2, v1, s[8:11], s12 offen\nbuffer_load_dword v3, v1, s[8:11], s13 offen')
    a.e('s_memrealtime s[16:17]\ns_waitcnt vmcnt(0) lgkmcnt(0)')
    a.e('v_sub_u32 v2, v3, v2\ns_nop 1\nv_readfirstlane_b32 s14, v2\ns_nop 3')
    a.e('s_min_u32 s14, s14, 20000\ns_mul_i32 s14, s14, %d' % mult)
    a.label('KA_spin')
    a.e('s_memrealtime s[18:19]\ns_waitcnt lgkmcnt(0)\ns_sub_u32 s15, s18, s16\ns_cmp_lt_u32 s15, s14\ns_cbranch_scc1 KA_spin')
    a.label('KA_end')
    a.e('s_endpgm')
    return a.text()

HEADER = open('cdna_kernels/%s.s.ref' % NAME).read().split('; Override launch')[0] if __name__ == '__main__' else ''

def build(cfg, header=''):
    launches = [('stats_kernel', 256, 256, 0), (NAME + '_kernel', 256, 256, K1_LDS), ('outproj_kernel', 256, 256, K2_LDS)]
    kernels = [('stats_kernel', gen_k0(cfg), 64, 64), (NAME + '_kernel', gen_k1(cfg), 512, 256), ('outproj_kernel', gen_k2(cfg), 512, 256)]
    if cfg.amp:
        launches.append(('amp_kernel', 1, 64, 0)); kernels.append(('amp_kernel', gen_amp(cfg), 8, 8))
    return header + build_file(launches, kernels)

if __name__ == '__main__':
    out = sys.argv[1]
    kw = {}
    for x in sys.argv[2:]:
        k, v = x.split('='); kw[k] = eval(v)
    open(out, 'w').write(build(Cfg(**kw), HEADER))
```

```python
import sys, struct, math
from asmlib import *
from sched import Stream
import hazard

NAME = 'parallel_sum__sliding_local_dilated__dense_activation_gelu__prompt'
WS_BYTES = 268435456
WS_RSTD = 0
WS_NMR = 8192
WS_HFLAG = 0x10000
WS_XFLAG = 0x20000
WS_H = 1 << 20
WS_P = 32 << 20
WS_TS = 250 << 20
SPIN_MAX = 0x20000

def f32(x):
    return '0x%08x' % struct.unpack('<I', struct.pack('<f', x))[0]
def vr(b, n=4, f='v'):
    return '%s[%d:%d]' % (f, b, b + n - 1) if n > 1 else '%s%d' % (f, b)
def ar(b, n=4):
    return vr(b, n, 'a')

class Cfg:
    rot = 4
    stamps = False
    amp = None
    aslist = False
    order = 0
    def __init__(self, **kw):
        for k, v in kw.items(): setattr(self, k, v)

STAMPS = ['start', 'data0', 'g1 end', 'attn st', 'gelu end', 'g2 s4', 'g2 end', 'stored', 'flagged', 'end']
def stamp(a, cfg, idx):
    if not cfg.stamps: return
    a.e('s_memrealtime s[92:93]\ns_memtime s[94:95]\ns_waitcnt lgkmcnt(0)')
    a.e('v_accvgpr_write_b32 a%d, s92\nv_accvgpr_write_b32 a%d, s94' % (224 + 2 * idx, 225 + 2 * idx))
def stamp_flush(a, cfg):
    if not cfg.stamps: return
    a.e('s_lshl_b32 s96, s2, 2\ns_add_u32 s96, s96, s28\ns_lshl_b32 s96, s96, 7')
    a.e('s_add_u32 s96, s96, %d' % WS_TS)
    a.e('s_mov_b64 exec, 1')
    a.e('v_mov_b32 v1, 0')
    for idx in range(len(STAMPS)):
        a.e('buffer_store_dwordx2 %s, v1, s[20:23], s96 offen offset:%d' % (ar(224 + 2 * idx, 2), idx * 8))

def allreduce64(op, x, t):
    L = []
    d = 'row_mask:0xf bank_mask:0xf'
    for m in ('quad_perm:[1,0,3,2]', 'quad_perm:[2,3,0,1]', 'row_half_mirror', 'row_mirror'):
        for xx in x:
            L.append('%s_dpp v%d, v%d, v%d %s %s' % (op, xx, xx, xx, m, d))
    for sw in ('v_permlane16_swap_b32', 'v_permlane32_swap_b32'):
        for xx, tt in zip(x, t): L.append('v_mov_b32 v%d, v%d' % (tt, xx))
        for xx, tt in zip(x, t): L.append('%s v%d, v%d' % (sw, xx, tt))
        for xx, tt in zip(x, t): L.append('%s v%d, v%d, v%d' % (op, xx, xx, tt))
    return L

def pk(op, d, *src, sel=None, selhi=None):
    s = 'v_pk_%s_f32 %s, %s' % (op, vr(d, 2), ', '.join(x if isinstance(x, str) else vr(x, 2) for x in src))
    if sel is not None: s += ' op_sel:[%s]' % ','.join(map(str, sel))
    if selhi is not None: s += ' op_sel_hi:[%s]' % ','.join(map(str, selhi))
    return s

P_X, P_WQKV, P_WO, P_W1, P_B1, P_W2, P_B2, P_OUT, P_DBG, P_WS = 64, 66, 68, 72, 74, 76, 78, 80, 82, 84

XS = 32768
WB = 65536
WSLOT = 28688
W_FFN = 12288
W_HALO = 26624
W_ONES = 28672
EX = WB + 3 * WSLOT
EX_B1 = 832
EX_ST = 1280
EX_KV = 3840
LDS_BYTES = 163840
assert EX + EX_KV + 8192 <= LDS_BYTES
ACC1 = 48
def acc1(t, i): return ACC1 + (t * 4 + i) * 4
def xa(buf, i, s): return buf * 32 + (i * 2 + s) * 4
def ha(s): return 64 + s * 4
def wa(t, s): return 72 + t * 8 + s * 4
EXA = 176
EXTRAS = [[2, 6, 7, 12], [3, 8, 9], [4, 10, 11], [5, 0, 1]]
ORDERS = [[(0, 0), (0, 1), (1, 1), (1, 0), (2, 0), (2, 1), (3, 1), (3, 0)],
          [(0, 0), (1, 0), (2, 0), (3, 0), (3, 1), (2, 1), (1, 1), (0, 1)]]

def k1_wread(t, s, j4):
    d = wa(t, s) + 2 * j4
    if t < 6:
        return 'ds_read_b64_tr_b16 %s, v%d offset:%d' % (ar(d, 2), 14 + (t & 1), t * 32 + j4 * 768 + s * 6144)
    return 'ds_read_b64_tr_b16 %s, v16 offset:%d' % (ar(d, 2), W_FFN + (t - 6) * 32 + j4 * 1792 + s * 7168)
def k1_xread(buf, slot, i, s):
    return 'ds_read_b128 %s, v%d offset:%d' % (ar(xa(buf, i, s)), 10 + s, slot * XS + i * 2048)
def k1_mfma(t, d, df, x, w):
    if t in (4, 5): A, B = x, w
    else: A, B = w, x
    return 'v_mfma_f32_16x16x32_bf16 %s, %s, %s, %s' % (vr(d, 4, df), ar(A), ar(B), vr(d, 4, df))

def k1_dmas(w, xslot, wslot=None):
    Lw = []; Lx = []
    for ii in range(3):
        su = 's_add_u32 m0, s34, %d' % ((3 * w + ii) * 1024) if w is not None else 's_add_u32 m0, s46, %d' % (WB + wslot * WSLOT + ii * 1024)
        Lw.append((su, 'buffer_load_dwordx4 v%d, s[12:15], s32 offen lds' % (3 + ii)))
    for ii in range(4):
        su = 's_add_u32 m0, s34, %d' % (W_FFN + (4 * w + ii) * 1024) if w is not None else 's_add_u32 m0, s47, %d' % (WB + wslot * WSLOT + W_FFN + ii * 1024)
        if ii >= 2 and w in (None, 3):
            Lw.append((su, 'buffer_load_dwordx4 v%d, s[24:27], s40 offen lds' % (6 + ii)))
        else:
            Lw.append((su, 'buffer_load_dwordx4 v%d, s[16:19], s33 offen lds' % (6 + ii)))
    for i in range(8):
        su = 's_mov_b32 m0, %d' % (xslot * XS + w * 8192 + i * 1024) if w is not None else 's_add_u32 m0, s39, %d' % (xslot * XS + i * 1024)
        if i >= 2:
            if i % 2 == 0: su += '\ns_add_u32 s37, s31, s%d' % (42 + i // 2)
            so = 's37'
        else: so = 's31'
        Lx.append((su, 'buffer_load_dwordx4 v%d, s[8:11], %s offen lds' % (1 + (i & 1), so)))
    return Lw, Lx

def k1_kcalc(cfg):
    if cfg.rot:
        W = cfg.rot
        s = 's_add_u32 s38, s36, s41\ns_and_b32 s38, s38, %d\ns_andn2_b32 s37, s36, %d\ns_or_b32 s38, s38, s37\n' % (W - 1, W - 1)
        k = 's38'
    else:
        s = ''; k = 's36'
    s += 's_lshl_b32 s31, %s, 7\ns_mul_i32 s32, %s, %d\ns_mul_i32 s33, %s, %d' % (k, k, 64 * 6144, k, 64 * 7168)
    return s.split('\n')

def k1_step(S, cfg, w, par):
    order = ORDERS[cfg.order]
    ex_at = {}
    for e, t in enumerate(EXTRAS[w]):
        ex_at.setdefault(t if t >= 2 else t + 7, []).append((e, t))
    mf = []; wstart = []
    for t in range(13):
        wstart.append(len(mf))
        for (i, s) in order:
            mf.append(k1_mfma(t, acc1(t, i), 'v', xa(par, i, s), wa(t, s)))
        for (e, te) in ex_at.get(t, []):
            for s in (0, 1):
                mf.append(k1_mfma(te, EXA + 4 * e, 'a', ha(s), wa(te, s)))
    n = len(mf)
    fill = [[] for _ in range(n)]
    for t in range(13):
        tt = (t + 2) % 13
        rd = [k1_wread(tt, s, j4) for s in (0, 1) for j4 in (0, 1)]
        if t < 11:
            for k, r in enumerate(rd): fill[wstart[t] + k].append(r)
        else:
            xs = order[:4] if t == 11 else order[4:]
            seq = rd + [k1_xread(1 - par, 1 - par, i, s) for (i, s) in xs]
            for k, r in enumerate(seq): fill[wstart[t] + k].append(r)
    fill[wstart[0] + 4].append('ds_read_b128 %s, v12' % ar(ha(0)))
    fill[wstart[0] + 5].append('ds_read_b128 %s, v13' % ar(ha(1)))
    fill[wstart[1] + 4].append('s_cmp_eq_u32 s34, %d\ns_cselect_b32 s35, %d, s42' % (WB + WSLOT, -2 * WSLOT & 0xffffffff))
    fill[wstart[2] + 4].append('v_add_u32 v12, s35, v12')
    fill[wstart[2] + 5].append('v_add_u32 v13, s35, v13')
    fill[wstart[10] + 4].append('v_add_u32 v14, s35, v14')
    fill[wstart[10] + 5].append('v_add_u32 v15, s35, v15')
    fill[wstart[10] + 6].append('v_add_u32 v16, s35, v16')
    Lw, Lx = k1_dmas(w, par)
    dm = Lw + Lx
    for k, (su, ld) in enumerate(dm):
        p = 3 + (k * (n - 10)) // 15
        fill[p].append(su)
        fill[p + 1].append(('DMA', ld))
    if w == 0 and par == 1:
        fill[1].append(('DMA', 'buffer_atomic_add v23, v24, s[48:51], 0 offen sc1'))
        fill[2].append('v_mov_b32 v24, -16')
    last = 3 + (14 * (n - 10)) // 15 + 1
    kc = ['s_add_u32 s36, s36, 1'] + k1_kcalc(cfg)
    kc += ['s_add_u32 s34, s34, %d' % WSLOT, 's_cmp_eq_u32 s34, %d\ns_cselect_b32 s34, %d, s34' % (WB + 3 * WSLOT, WB)]
    if par == 0:
        x = 's_cmp_eq_u32 s36, 17\n'
        if w == 3: x += 's_cselect_b32 s40, s57, s31\n'
        kc += [x + 's_cselect_b32 s31, s56, s31\ns_cselect_b32 s33, s57, s33']
    elif w == 3:
        kc += ['s_mov_b32 s40, s31']
    p = last + 1; k = 0
    room = n - p
    per = (len(kc) + room - 1) // room
    while k < len(kc):
        for x in kc[k:k + per]: fill[p].append(x)
        k += per; p += 1
    tagn = ('d', par)
    for k in range(n):
        if k == wstart[11]:
            S.wait_tag(lambda t: t != tagn, lg=0)
            S.emit('s_barrier')
        S.emit(mf[k])
        for x in fill[k]:
            if isinstance(x, tuple): S.emit(x[1], tag=tagn)
            else: S.emit(x)

ACC2 = 128
def acc2(t, i): return ACC2 + (t * 4 + i) * 4
def aa(buf, i, s): return buf * 32 + (i * 2 + s) * 4
def wb(t, s): return 96 + t * 8 + s * 4
VA = 48
VT = 52
VP = 76
RB = 80
SLOT5 = WB + 2 * WSLOT + W_FFN
def k2_slot(sl):
    if sl < 4:
        o = (sl >> 1) * XS + (sl & 1) * 4096
        return (0, o, 8192, 's39', o)
    if sl == 4: return (1, WSLOT + W_FFN, 4096, 's47', WB + WSLOT + W_FFN)
    if sl == 5: return (2, 0, 4096, 's47', SLOT5)
    return (1, (sl - 6) * 16384, 4096, 's47', WB + (sl - 6) * 16384)
def k2_wread(j, t, s, j4):
    bs, o, st, _, _ = k2_slot(j % 8)
    return 'ds_read_b64_tr_b16 %s, v%d offset:%d' % (ar(wb(t, s) + 2 * j4, 2), VT + 8 * bs + t, o + (2 * s + j4) * st)
def k2_wdma(j):
    _, _, _, sg, c = k2_slot(j % 8)
    pre = ['s_add_u32 s60, s60, 1', 's_cmp_eq_u32 s60, 14\ns_cselect_b32 s60, 0, s60', 's_lshl_b32 s32, s60, 17\ns_add_u32 s32, s32, s59', 's_add_u32 s33, s32, 16384']
    L = []
    for ii in range(4):
        L.append(('s_add_u32 m0, %s, %d' % (sg, c + ii * 1024),
                  'buffer_load_dwordx4 v%d, s[16:19], %s offen lds' % (20 + (ii & 1), 's32' if ii < 2 else 's33')))
    return pre, L
def k2_aload(j, order):
    if j < 4: pre = ['s_mov_b32 s31, %d' % (j * 2048)]
    elif j == 4: pre = ['s_lshl_b32 s31, s61, 11\ns_add_u32 s31, s31, 8192']
    else: pre = ['s_add_u32 s31, s31, 2048', 's_cmp_eq_u32 s31, %d\ns_cselect_b32 s31, 8192, s31' % (18 * 2048)]
    L = ['buffer_load_dwordx4 %s, v%d, s[20:23], s31 offen offset:%d sc1' % (ar(aa(j % 3, i, s)), VA + i, s * 1024) for (i, s) in order]
    return pre, L

def poll_check(S, a, name, level, soff, nl):
    S.emit('v_cmp_gt_u32 vcc, %d, v%d' % (level, VP))
    S.emit('s_cmp_eq_u64 vcc, 0\ns_cbranch_scc1 %s_ok' % name)
    a.e('s_mov_b32 s3, 0')
    a.label(name + '_spin')
    a.e('buffer_load_dword v%d, v%d, s[20:23], %s offen sc1' % (VP, VP + 1, soff))
    a.e('s_add_u32 s3, s3, 1\ns_waitcnt vmcnt(0)')
    a.e('v_cmp_gt_u32 vcc, %d, v%d' % (level, VP))
    a.e('s_cmp_eq_u64 vcc, 0\ns_cbranch_scc1 %s_ok' % name)
    a.e('s_cmp_lt_u32 s3, %d\ns_cbranch_scc1 %s_spin' % (SPIN_MAX, name))
    a.label(name + '_ok')

def gen(cfg):
    a = Asm()
    a.e('s_cmp_ge_u32 s2, 256\ns_cbranch_scc1 L_end')
    a.e('s_load_dwordx16 s[64:79], s[0:1], 0\ns_load_dwordx4 s[80:83], s[0:1], 64\ns_load_dwordx2 s[84:85], s[0:1], 80')
    if cfg.stamps: a.e('s_memrealtime s[92:93]\ns_memtime s[94:95]')
    a.e('v_lshrrev_b32 v17, 6, v0\nv_and_b32 v0, 63, v0')
    a.e('v_readfirstlane_b32 s28, v17')
    a.e('s_and_b32 s29, s2, 1\ns_lshl_b32 s29, s29, 2\ns_lshr_b32 s3, s2, 6\ns_add_u32 s29, s29, s3')
    a.e('s_bfe_u32 s62, s2, 0x20001\ns_lshl_b32 s30, s62, 3\ns_bfe_u32 s63, s2, 0x30003\ns_add_u32 s30, s30, s63')
    a.e('s_add_u32 s41, s29, s30')
    a.e('s_lshl_b32 s3, s29, 8\ns_lshl_b32 s4, s28, 6\ns_add_u32 s54, s3, s4')
    a.e('s_sub_u32 s5, s3, 16\ns_max_i32 s55, s5, 0')
    a.e('s_lshl_b32 s4, s30, 3\ns_add_u32 s3, s3, s4\ns_lshl_b32 s4, s28, 1\ns_add_u32 s58, s3, s4')
    a.e('s_lshl_b32 s6, s58, 11')
    a.e('s_mul_i32 s46, s28, 3072\ns_lshl_b32 s47, s28, 12\ns_lshl_b32 s39, s28, 13')
    a.e('s_mov_b32 s36, 0\ns_mov_b32 s34, %d\ns_mov_b32 s42, %d' % (WB + 2 * WSLOT, WSLOT))
    a.e('s_mov_b32 s43, 0x8000\ns_mov_b32 s44, 0x10000\ns_mov_b32 s45, 0x18000')
    for x in k1_kcalc(cfg): a.e(x)
    a.e('v_lshlrev_b32 v25, 4, v0')
    a.e('v_lshrrev_b32 v18, 3, v0')
    a.e('v_lshrrev_b32 v19, 4, v0')
    a.e('v_and_b32 v20, 7, v0')
    a.e('v_xor_b32 v21, v20, v19')
    a.e('v_xor_b32 v22, 4, v21')
    a.e('v_add_u32 v23, s54, v18')
    a.e('v_lshlrev_b32 v23, 11, v23')
    a.e('v_lshl_add_u32 v1, v21, 4, v23')
    a.e('v_lshl_add_u32 v2, v22, 4, v23')
    a.e('v_add_u32 v2, 0x4000, v2')
    a.e('s_waitcnt lgkmcnt(0)')
    if cfg.stamps: a.e('v_accvgpr_write_b32 a224, s92\nv_accvgpr_write_b32 a225, s94')
    a.srd(8, P_X, 2048 * 2048)
    S = Stream(a)
    for k in range(4):
        S.emit('buffer_load_dwordx4 %s, v25, s[8:11], s6 offen offset:%d' % (vr(48 + 4 * k), k * 1024))
    Lw0, Lx0 = k1_dmas(None, 0, 0)
    for su, ld in Lx0[:4]:
        S.emit(su); S.emit(ld, tag=('p', 0))
    a.srd(12, P_WQKV, 1024 * 6144)
    a.srd(16, P_W1, 1024 * 7168)
    a.srd(20, P_WS, WS_BYTES)
    a.srd(48, P_DBG, 256)
    a.srd(4, P_B1, 7168)
    a.e('s_cmp_eq_u32 s28, 3\ns_cselect_b32 s24, s8, s16\ns_cselect_b32 s25, s9, s17\ns_cselect_b32 s26, s10, s18\ns_cselect_b32 s40, s31, s33\ns_mov_b32 s27, 0x00020000')
    a.e('s_and_b32 s52, s30, 1\ns_lshl_b32 s52, s52, 1\ns_mul_i32 s53, s30, 224')
    S.emit('v_lshrrev_b32 v26, 2, v0\nv_add_u32 v26, s52, v26\nv_subrev_u32 v27, 14, v26\nv_min_u32 v26, v26, v27')
    S.emit('v_and_b32 v27, 3, v0\nv_lshlrev_b32 v27, 2, v27\nv_lshl_add_u32 v26, v26, 4, v27')
    S.emit('buffer_load_dword v44, v26, s[4:7], s53 offen')
    S.emit('s_mul_i32 s3, s28, 192\ns_lshl_b32 s38, s30, 6')
    for ii in range(3):
        S.emit('v_add_u32 v23, s3, v0')
        if ii: S.emit('v_add_u32 v23, %d, v23' % (64 * ii))
        S.emit('v_mul_u32_u24 v24, 5462, v23\nv_lshrrev_b32 v24, 16, v24')
        S.emit('v_mul_u32_u24 v25, 12, v24\nv_sub_u32 v25, v23, v25')
        S.emit('v_lshrrev_b32 v26, 2, v24\nv_and_b32 v26, 2, v26\nv_xor_b32 v25, v25, v26')
        S.emit('v_lshrrev_b32 v26, 2, v25\nv_and_b32 v25, 3, v25')
        S.emit('v_mul_u32_u24 v24, 6144, v24')
        S.emit('v_lshl_add_u32 v24, v26, 11, v24\nv_lshl_add_u32 v24, v25, 4, v24')
        S.emit('v_add_u32 v%d, s38, v24' % (3 + ii))
    S.emit('s_lshl_b32 s3, s28, 8')
    for ii in range(4):
        S.emit('v_add_u32 v23, s3, v0')
        if ii: S.emit('v_add_u32 v23, %d, v23' % (64 * ii))
        S.emit('v_mul_u32_u24 v24, 4682, v23\nv_lshrrev_b32 v24, 16, v24')
        S.emit('v_mul_u32_u24 v25, 14, v24\nv_sub_u32 v25, v23, v25')
        S.emit('v_add_u32 v25, s52, v25\nv_subrev_u32 v26, 14, v25\nv_min_u32 v25, v25, v26')
        S.emit('v_and_b32 v26, 0x33, v24\nv_and_b32 v27, 4, v24\nv_lshl_add_u32 v26, v27, 1, v26')
        S.emit('v_and_b32 v27, 8, v24\nv_lshrrev_b32 v27, 1, v27\nv_add_u32 v26, v26, v27')
        S.emit('v_mul_u32_u24 v26, 7168, v26')
        S.emit('v_lshl_add_u32 v26, v25, 4, v26')
        S.emit('v_add_u32 v%d, s53, v26' % (6 + ii))
    S.emit('s_cmp_lg_u32 s28, 3\ns_cbranch_scc1 L_nohalo')
    S.emit('v_add_u32 v23, s55, v18\nv_lshlrev_b32 v23, 11, v23')
    S.emit('v_lshl_add_u32 v8, v21, 4, v23')
    S.emit('v_lshl_add_u32 v9, v22, 4, v23\nv_add_u32 v9, 0x4000, v9')
    a.label('L_nohalo')
    S.emit('v_and_b32 v32, 15, v0')
    S.emit('v_lshrrev_b32 v21, 1, v32\nv_xor_b32 v21, v21, v19')
    S.emit('v_lshlrev_b32 v21, 4, v21\nv_lshl_add_u32 v21, v32, 7, v21')
    S.emit('v_add_u32 v10, s39, v21\nv_xor_b32 v11, 64, v10')
    S.emit('v_add_u32 v12, %d, v21\nv_xor_b32 v13, 64, v12' % (WB + W_HALO))
    S.emit('v_mov_b32 v27, %d\nv_cmp_eq_u32 vcc, 0, v32' % (WB + W_ONES))
    S.emit('v_cndmask_b32 v12, v12, v27, vcc\nv_cndmask_b32 v13, v13, v27, vcc')
    S.emit('v_bfe_u32 v22, v0, 2, 2')
    S.emit('v_and_b32 v23, 3, v0\nv_lshlrev_b32 v23, 3, v23')
    S.emit('v_lshl_add_u32 v24, v19, 3, v22\nv_mul_u32_u24 v24, 192, v24\nv_add_u32 v24, v24, v23')
    S.emit('v_add_u32 v24, %d, v24' % WB)
    S.emit('v_and_b32 v25, 1, v19\nv_lshlrev_b32 v26, 5, v25')
    S.emit('v_add_u32 v14, v24, v26\nv_sub_u32 v15, v24, v26')
    S.emit('v_lshrrev_b32 v26, 1, v19\nv_lshlrev_b32 v26, 4, v26\nv_lshl_add_u32 v26, v25, 2, v26\nv_add_u32 v26, v26, v22')
    S.emit('v_mul_u32_u24 v26, 224, v26\nv_add_u32 v26, v26, v23\nv_add_u32 v16, %d, v26' % WB)
    S.emit('v_mov_b32 v28, 0x3f803f80\nv_mov_b32 v29, v28\nv_mov_b32 v30, v28\nv_mov_b32 v31, v28')
    for k in range(3): S.emit('ds_write_b128 v27, v[28:31] offset:%d' % (k * WSLOT))
    S.emit('s_lshl_b32 s3, s28, 15\ns_lshl_b32 s38, s63, 8\ns_add_u32 s3, s3, s38')
    S.emit('v_lshlrev_b32 v21, 1, v19\nv_xor_b32 v21, v21, v32\nv_xor_b32 v22, 8, v21')
    S.emit('v_lshlrev_b32 v23, 11, v19\nv_add_u32 v23, s3, v23')
    S.emit('v_lshl_add_u32 v20, v21, 4, v23\nv_lshl_add_u32 v21, v22, 4, v23\nv_add_u32 v21, 0x2000, v21')
    S.emit('v_subrev_u32 v22, 20, v0\nv_min_u32 v22, v22, v0')
    S.emit('s_sub_u32 s3, s54, 16\nv_mov_b32 v23, s3\nv_mov_b32 v24, s55\nv_cmp_gt_u32 vcc, 4, v22')
    S.emit('v_cndmask_b32 v23, v23, v24, vcc\nv_lshl_add_u32 v22, v22, 2, v23\nv_lshlrev_b32 v22, 2, v22')
    S.emit('v_add_u32 v23, %d, v22\nv_cmp_gt_u32 vcc, 20, v0' % WS_NMR)
    S.emit('v_cndmask_b32 v22, v23, v22, vcc')
    S.emit('s_lshl_b32 s3, s29, 2\ns_sub_u32 s38, s3, 4\ns_max_i32 s38, s38, 0')
    S.emit('v_mov_b32 v23, s3\nv_mov_b32 v18, s38\nv_cmp_eq_u32 vcc, 0, v0')
    S.emit('v_cndmask_b32 v18, v18, v23, vcc\nv_cndmask_b32 v24, -16, v23, vcc\nv_mov_b32 v23, 1')
    S.emit('s_lshl_b32 s3, s29, 2\ns_add_u32 s3, s3, s62\ns_lshl_b32 s3, s3, 2\ns_add_u32 s3, s3, s28\ns_lshl_b32 s3, s3, 7\ns_add_u32 s86, s3, %d' % WS_HFLAG)
    S.emit('s_lshl_b32 s3, s29, 3\ns_add_u32 s88, s3, s63\ns_lshl_b32 s3, s88, 2\ns_add_u32 s3, s3, s28\ns_lshl_b32 s3, s3, 7\ns_add_u32 s87, s3, %d' % WS_XFLAG)
    S.emit('s_lshl_b32 s3, s63, 2\ns_add_u32 s89, s86, s3\ns_lshl_b32 s3, s62, 2\ns_add_u32 s90, s87, s3')
    for r in range(100, 256, 2): S.emit('v_mov_b64 %s, 0' % vr(r, 2))
    for r in range(EXA, EXA + 16): S.emit('v_accvgpr_write_b32 a%d, 0' % r)
    st = []
    for k in range(16):
        st.append('v_lshlrev_b32 v%d, 16, v%d' % (64 + 2 * k, 48 + k))
        st.append('v_and_b32 v%d, 0xffff0000, v%d' % (65 + 2 * k, 48 + k))
    for k in range(0, 8, 2):
        for r in range(2): st.append(pk('add', 48 + 8 * r + k, 64 + 16 * r + k, 72 + 16 * r + k))
    for k in (0, 2):
        for r in range(2): st.append(pk('add', 48 + 8 * r + k, 48 + 8 * r + k, 52 + 8 * r + k))
    for r in range(2): st.append(pk('add', 48 + 8 * r, 48 + 8 * r, 50 + 8 * r))
    for r in range(2): st.append('v_add_f32 v%d, v%d, v%d' % (34 + r, 48 + 8 * r, 49 + 8 * r))
    st += allreduce64('v_add_f32', [34, 35], [36, 37])
    for r in range(2): st.append('v_mul_f32 v%d, %s, v%d' % (34 + r, f32(-1.0 / 1024), 34 + r))
    for k in range(0, 16, 2):
        for r in range(2): st.append(pk('add', 64 + 16 * r + k, 64 + 16 * r + k, 34, sel=[0, r], selhi=[1, r]))
    for r in range(2): st.append(pk('mul', 48 + 2 * r, 64 + 16 * r, 64 + 16 * r))
    for k in range(2, 16, 2):
        for r in range(2): st.append(pk('fma', 48 + 2 * r, 64 + 16 * r + k, 64 + 16 * r + k, 48 + 2 * r))
    for r in range(2): st.append('v_add_f32 v%d, v%d, v%d' % (38 + r, 48 + 2 * r, 49 + 2 * r))
    st += allreduce64('v_add_f32', [38, 39], [36, 37])
    fin = [[], []]
    for r in range(2):
        m, v, t = 34 + r, 38 + r, 36 + r
        fin[r] = ['v_mul_f32 v%d, %s, v%d' % (v, f32(1.0 / 1024), v),
                  'v_cvt_pk_bf16_f32 v%d, v%d, v%d' % (t, m, v),
                  'v_lshlrev_b32 v%d, 16, v%d' % (m, t),
                  'v_and_b32 v%d, 0xffff0000, v%d' % (v, t),
                  'v_add_f32 v%d, %s, v%d' % (v, f32(1e-5), v),
                  'v_cvt_pk_bf16_f32 v%d, v%d, v%d' % (t, v, v),
                  'v_lshlrev_b32 v%d, 16, v%d' % (t, t),
                  'v_sqrt_f32 v%d, v%d' % (t, t),
                  'v_cvt_pk_bf16_f32 v%d, v%d, v%d' % (t, t, t),
                  'v_lshlrev_b32 v%d, 16, v%d' % (t, t),
                  'v_rcp_f32 v%d, v%d' % (40 + r, t),
                  'v_mul_f32 v%d, v%d, v%d' % (42 + r, m, 40 + r)]
    for x, y in zip(*fin): st += [x, y]
    rest = Lx0[4:] + Lw0
    gap = len(st) // (len(rest) + 1)
    S.emit(st[0])
    k = 0
    for idx, x in enumerate(st[1:]):
        if idx % gap == 0 and k < len(rest):
            S.emit(rest[k][0]); S.emit(x); S.emit(rest[k][1], tag=('p', 0)); k += 1
        else: S.emit(x)
    assert k == len(rest)
    S.emit('v_lshlrev_b32 v26, 16, v44\nv_and_b32 v27, 0xffff0000, v44\nv_lshlrev_b32 v25, 3, v0\nv_add_u32 v25, %d, v25' % (EX + EX_B1))
    S.emit('s_bfm_b64 exec, 56, 0\nds_write_b64 v25, v[26:27]')
    S.emit('s_lshl_b32 s3, s58, 2\ns_add_u32 s38, s3, %d\nv_mov_b32 v25, 0\ns_mov_b64 exec, 1' % WS_NMR)
    S.emit('buffer_store_dwordx2 v[40:41], v25, s[20:23], s3 offen sc1')
    S.emit('buffer_store_dwordx2 v[42:43], v25, s[20:23], s38 offen sc1')
    S.emit('buffer_store_dword v25, v25, s[20:23], s89 offen sc1')
    S.emit('buffer_store_dword v25, v25, s[20:23], s90 offen sc1')
    S.emit('s_mov_b64 exec, -1')
    S.emit('s_mov_b32 s36, 1')
    for x in k1_kcalc(cfg): S.emit(x)
    S.emit('s_cmp_eq_u32 s28, 3\ns_cselect_b32 s40, s31, s33')
    Lw1, Lx1 = k1_dmas(None, 1, 1)
    zr = list(range(48, 100, 2))
    for su, ld in Lw1 + Lx1:
        S.emit(su)
        for r in zr[:2]: S.emit('v_mov_b64 %s, 0' % vr(r, 2))
        zr = zr[2:]
        S.emit(ld, tag=('p', 1))
    assert not zr
    S.emit('s_mov_b32 s36, 2')
    for x in k1_kcalc(cfg): S.emit(x)
    S.emit('s_mov_b32 s40, s31')
    S.wait_tag(lambda t: t == ('p', 0), lg=0)
    S.emit('s_barrier')
    stamp(a, cfg, 1)
    order = ORDERS[cfg.order]
    for s in (0, 1):
        for j4 in (0, 1): S.emit(k1_wread(0, s, j4))
    for (i, s) in order[:4]: S.emit(k1_xread(0, 0, i, s))
    for s in (0, 1):
        for j4 in (0, 1): S.emit(k1_wread(1, s, j4))
    S.wait(lg=8)
    for (i, s) in order[4:]: S.emit(k1_xread(0, 0, i, s))
    a.e('s_cmp_eq_u32 s28, 1\ns_cbranch_scc1 L_loop1\ns_cmp_eq_u32 s28, 2\ns_cbranch_scc1 L_loop2\ns_cmp_eq_u32 s28, 3\ns_cbranch_scc1 L_loop3')

    for w in range(4):
        S = Stream(a)
        S.mute = True
        k1_step(S, cfg, w, 0); k1_step(S, cfg, w, 1)
        st0 = S.state()
        S.mute = False
        if w: a.raw('.p2align 3')
        a.label('L_loop%d' % w)
        k1_step(S, cfg, w, 0); k1_step(S, cfg, w, 1)
        assert S.state() == st0
        a.e('s_cmp_lt_u32 s36, 14\ns_cbranch_scc1 L_loop%d' % w)
        a.e('s_cmp_gt_u32 s36, 14\ns_cbranch_scc1 L_not14_%d' % w)
        a.e('buffer_load_dword v17, v18, s[48:51], 0 offen sc1\ns_branch L_loop%d' % w)
        a.label('L_not14_%d' % w)
        a.e('s_cmp_gt_u32 s36, 16\ns_cbranch_scc1 L_done%d' % w)
        a.e('s_mov_b32 s3, 0')
        a.label('L_st_spin%d' % w)
        a.e('v_cmp_gt_u32 vcc, 32, v17')
        a.e('s_cmp_eq_u64 vcc, 0\ns_cbranch_scc1 L_st_ok%d' % w)
        a.e('buffer_load_dword v17, v18, s[48:51], 0 offen sc1\ns_add_u32 s3, s3, 1\ns_waitcnt vmcnt(0)')
        a.e('s_cmp_lt_u32 s3, %d\ns_cbranch_scc1 L_st_spin%d' % (SPIN_MAX, w))
        a.label('L_st_ok%d' % w)
        a.e('s_mov_b32 m0, %d\ns_bfm_b64 exec, 40, 0' % (EX + EX_ST + w * 640))
        a.e('buffer_load_dwordx4 v22, s[20:23], 0 offen sc1 lds')
        a.e('s_mov_b64 exec, -1')
        a.e('s_mov_b32 s8, s%d\ns_and_b32 s9, s%d, 0xffff\ns_mov_b32 s10, %d' % (P_WO, P_WO + 1, 1024 * 2048))
        a.e('s_mov_b32 s14, 0')
        a.e('s_mov_b32 s16, s%d\ns_and_b32 s17, s%d, 0xffff\ns_mov_b32 s18, %d' % (P_W2, P_W2 + 1, 3584 * 2048))
        if w == 3: a.e('s_mov_b32 s24, s16\ns_mov_b32 s25, s17\ns_mov_b32 s26, s18')
        a.e('v_mov_b32 v1, v20\nv_mov_b32 v2, v21\nv_mov_b32 v6, v20\nv_mov_b32 v7, v21\nv_add_u32 v8, 0x4000, v20\nv_add_u32 v9, 0x4000, v21')
        a.e('s_mov_b32 s43, 16384\ns_mov_b32 s44, 131072\ns_mov_b32 s45, 147456')
        a.e('s_lshl_b32 s31, s62, 19\ns_add_u32 s56, s31, %d' % (2 << 17))
        a.e('s_and_b32 s61, s29, 3\ns_mul_i32 s61, s61, 7\ns_lshr_b32 s61, s61, 1')
        a.e('s_mul_i32 s59, s62, %d\ns_lshl_b32 s33, s61, 17\ns_add_u32 s33, s33, s59\ns_add_u32 s57, s33, %d' % (896 * 2048, 1 << 17))
        a.e('s_add_u32 s60, s61, 1\ns_mov_b32 s40, s33')
        a.e('s_branch L_loop%d' % w)
        a.label('L_done%d' % w)
        stamp(a, cfg, 2)
        S.emit('v_lshlrev_b32 v22, 4, v19\nv_add_u32 v1, %d, v22' % EX)
        S.emit('v_and_b32 v5, 15, v0\nv_lshlrev_b32 v18, 2, v5\nv_add_u32 v2, %d, v18' % EX)
        S.emit('v_add_u32 v18, %d, v18\nv_add_u32 v22, %d, v22' % (EX + EX_ST + w * 640, EX + EX_ST + w * 640))
        S.emit('v_lshlrev_b32 v3, 4, v0')
        S.emit('v_add_u32 v4, %d, v3' % (EX + EX_KV))
        S.emit('s_mov_b32 exec_lo, 0x00010001\ns_mov_b32 exec_hi, 0x00010001')
        for e, t in enumerate(EXTRAS[w]):
            if t not in (4, 5): S.emit('ds_write_b128 v1, %s offset:%d' % (ar(EXA + 4 * e), t * 64))
        for e, t in enumerate(EXTRAS[w]):
            if t in (4, 5):
                S.emit('s_mov_b64 exec, 0xffff')
                S.emit('ds_write_b32 v2, a%d offset:%d' % (EXA + 4 * e, t * 64))
        S.emit('s_mov_b64 exec, -1')
        t = EXTRAS[w][0]
        for i in range(4): S.emit('ds_read2_b32 %s, v18 offset0:%d offset1:%d' % (vr(6 + 2 * i, 2), 16 * (i + 1), 80 + 16 * (i + 1)))
        if t < 4: S.emit('ds_read2_b32 v[32:33], v18 offset0:0 offset1:80')
        else: S.emit('ds_read_b128 v[32:35], v22\nds_read_b128 v[36:39], v22 offset:320')
        for r in range(4): S.emit('v_accvgpr_read_b32 v%d, a%d' % (44 + r, EXA + r))
        S.wait(lg=0)
        S.emit('s_barrier')
        if t < 4:
            S.emit('ds_read_b128 v[40:43], v1 offset:%d' % (t * 64))
            for h in (0, 2): S.emit(pk('mul', 40 + h, 32, 40 + h, sel=[1, 0], selhi=[1, 1]))
            for h in (0, 2): S.emit(pk('fma', 44 + h, 32, 44 + h, 40 + h, sel=[0, 0, 0], selhi=[0, 1, 1]))
        else:
            S.emit('ds_read_b32 v40, v2 offset:%d' % (t * 64))
            for h in (0, 2): S.emit(pk('mul', 36 + h, 36 + h, 40, sel=[0, 0], selhi=[1, 0]))
            for h in (0, 2): S.emit(pk('fma', 44 + h, 32 + h, 44 + h, 36 + h))
        S.emit('v_cvt_pk_bf16_f32 v44, v44, v45\nv_cvt_pk_bf16_f32 v45, v46, v47')
        S.emit('ds_write_b64 v4, v[44:45] offset:%d' % ((0 if t < 4 else 1024) + 8 * (t & 1)))
        if w < 3: a.e('s_branch L_epi')

    a.label('L_epi')
    S = Stream(a)
    S.ds = [set()]
    S.vm = [(('d', 1), set())] * 16
    RN = 6; CC = 14; CS = 24; T = 40
    for t in (2, 3, 0, 1): S.emit('ds_read_b128 %s, v1 offset:%d' % (vr(CS + 4 * t), t * 64))
    S.emit('ds_read_b32 v16, v2 offset:256\nds_read_b32 v17, v2 offset:320')
    c1 = -2.0 * math.sqrt(2.0 / math.pi) * math.log2(math.e)
    S.emit('v_mov_b32 v%d, %s\nv_mov_b32 v%d, %s' % (CC, f32(c1), CC + 1, f32(c1 * 0.044715)))
    S.emit('s_lshl_b32 s3, s28, 11\nv_add_u32 v4, s3, v4')
    VS = [acc1(3, 0), acc1(1, 0)]
    for t0 in (2, 0):
        for i in range(4):
            for h in range(4):
                S.emit(pk('mul', T + 2 * h, RN + 2 * i, CS + 4 * t0 + 2 * h, sel=[1, 0], selhi=[1, 1]))
            for h in range(4):
                r = acc1(t0 + (h >> 1), i) + 2 * (h & 1)
                S.emit(pk('fma', T + 2 * h, RN + 2 * i, r, T + 2 * h, sel=[0, 0, 0], selhi=[0, 1, 1]))
            for h in range(4):
                S.emit('v_cvt_pk_bf16_f32 v%d, v%d, v%d' % (acc1(t0, i) + h, T + 2 * h, T + 2 * h + 1))
        if t0 == 2:
            S.emit('ds_read_b128 %s, v22 offset:%d\nds_read_b128 %s, v22 offset:%d' % (vr(CS + 8), 64 * 4, vr(CS + 12), 320 + 64 * 4))
    for n, i in enumerate((3, 0, 1, 2)):
        b = CS + 8 * ((n + 1) & 1)
        if n < 3:
            i2 = (3, 0, 1, 2)[n + 1]; b2 = CS + 8 * (n & 1)
            S.emit('ds_read_b128 %s, v22 offset:%d\nds_read_b128 %s, v22 offset:%d' % (vr(b2), 64 * (i2 + 1), vr(b2 + 4), 320 + 64 * (i2 + 1)))
        for h in range(4):
            tv = h >> 1
            S.emit(pk('mul', T + 2 * h, b + 4 + 2 * (h & 1), 16, sel=[0, tv], selhi=[1, tv]))
        for h in range(4):
            S.emit(pk('fma', T + 2 * h, b + 2 * (h & 1), acc1(4 + (h >> 1), i) + 2 * (h & 1), T + 2 * h))
        for h in range(4):
            S.emit('v_cvt_pk_bf16_f32 v%d, v%d, v%d' % (VS[h >> 1] + 2 * (i + 1) + (h & 1), T + 2 * h, T + 2 * h + 1))
        if n == 0:
            S.emit('s_cmp_eq_u32 s28, 3\ns_cselect_b64 exec, 0, -1')
            S.emit('ds_write_b128 v4, %s offset:2048' % vr(acc1(2, 3)))
            S.emit('ds_write_b64 v4, %s offset:3072' % vr(VS[0] + 8, 2))
            S.emit('ds_write_b64 v4, %s offset:3080' % vr(VS[1] + 8, 2))
            S.emit('s_mov_b64 exec, -1')
    S.emit('s_lshr_b32 s91, s54, 4\ns_mul_i32 s3, s91, 144\ns_mul_i32 s4, s62, 36\ns_add_u32 s3, s3, s4')
    S.emit('s_add_u32 s56, s3, s63\ns_lshl_b32 s56, s56, 10\ns_add_u32 s56, s56, %d' % WS_H)
    S.emit('s_lshr_b32 s4, s63, 1\ns_mul_i32 s4, s4, 7\ns_add_u32 s3, s3, s4\ns_add_u32 s3, s3, 8\ns_lshl_b32 s3, s3, 10\ns_add_u32 s3, s3, %d' % WS_H)
    S.emit('s_and_b32 s4, s30, 1\ns_lshl_b32 s5, s4, 12\ns_add_u32 s57, s3, s5')
    S.emit('s_lshl_b32 s5, s4, 3\ns_add_u32 s58, s3, s5\ns_add_u32 s58, s58, 3072')
    MK = CS; KP = 32
    S.emit('v_and_b32 v16, 1, v0\nv_lshl_add_u32 v17, v19, 2, v16')
    S.emit('v_cmp_eq_u32 s[6:7], 1, v16\nv_cmp_le_u32 s[52:53], v17, v5\nv_add_u32 v17, 2, v17\nv_cmp_le_u32 s[4:5], v17, v5')
    S.emit('v_mov_b32 v16, 0xffff\nv_mov_b32 v17, 0xffff0000\nv_cndmask_b32 v16, v16, v17, s[6:7]')
    S.emit('v_cndmask_b32 v%d, 0, v16, s[52:53]\nv_cndmask_b32 v%d, v16, 0, s[52:53]' % (MK, MK + 1))
    S.emit('v_cndmask_b32 v%d, 0, v16, s[4:5]\nv_cndmask_b32 v%d, v16, 0, s[4:5]' % (MK + 2, MK + 3))
    S.emit('s_cmp_eq_u32 s54, 0\ns_cselect_b32 s3, %s, 0' % f32(-1e30))
    for r in range(4): S.emit('v_mov_b32 v%d, s3' % (28 + r))
    SC = lambda i: acc1(4, i)
    SP = lambda i: acc1(5, i)
    S.wait(vc=0, lg=0)
    S.emit('s_barrier')
    S.emit('ds_read_b128 %s, v4' % vr(KP))
    S.emit('ds_read_b64 %s, v4 offset:1024' % vr(VS[0], 2))
    S.emit('ds_read_b64 %s, v4 offset:1032' % vr(VS[1], 2))
    I4 = (1, 2, 3, 0)
    for i in I4:
        S.emit('v_mfma_f32_16x16x32_bf16 %s, %s, %s, 0' % (vr(SC(i)), vr(acc1(2, i)), vr(acc1(0, i))))
        kp = KP if i == 0 else acc1(2, i - 1)
        S.emit('v_mfma_f32_16x16x32_bf16 %s, %s, %s, %s' % (vr(SP(i)), vr(kp), vr(acc1(0, i)), vr(28) if i == 0 else '0'))
    wq = []
    for j in (6, 7):
        pre, L = k2_wdma(j)
        for k, (su, ld) in enumerate(L): wq.append((('\n'.join(pre) + '\n' if k == 0 else '') + su, ld, ('w', j)))
    def wnext():
        if wq:
            su, ld, tg = wq.pop(0)
            S.emit(su); S.emit(ld, tag=tg)
    for i in I4:
        c, p = SC(i), SP(i)
        S.emit('v_cndmask_b32 v%d, v%d, v%d, s[6:7]' % (c, c, c + 1))
        S.emit('v_cndmask_b32 v%d, v%d, v%d, s[6:7]' % (c + 2, c + 2, c + 3))
        S.emit('v_cndmask_b32 v%d, v%d, v%d, s[6:7]' % (p, p, p + 1))
        S.emit('v_cndmask_b32 v%d, v%d, v%d, s[6:7]' % (p + 2, p + 2, p + 3))
        S.emit('v_cndmask_b32 v%d, v%d, v%d, s[52:53]' % (c, p, c))
        S.emit('v_cndmask_b32 v%d, v%d, v%d, s[4:5]' % (c + 1, p + 2, c + 2))
        S.emit('v_max_f32 v%d, v%d, v%d' % (c + 2, c, c + 1))
        wnext()
    for sw in ('v_permlane16_swap_b32', 'v_permlane32_swap_b32'):
        for i in I4: S.emit('v_mov_b32 v%d, v%d' % (SC(i) + 3, SC(i) + 2))
        for i in I4: S.emit('%s v%d, v%d' % (sw, SC(i) + 2, SC(i) + 3))
        for i in I4: S.emit('v_max_f32 v%d, v%d, v%d' % (SC(i) + 2, SC(i) + 2, SC(i) + 3))
        wnext()
    S.emit('s_mov_b32 s3, %s' % f32(32 ** -0.5 * math.log2(math.e)))
    for i in I4:
        c = SC(i)
        S.emit('v_sub_f32 v%d, v%d, v%d\nv_sub_f32 v%d, v%d, v%d' % (c, c, c + 2, c + 1, c + 1, c + 2))
        S.emit('v_mul_f32 v%d, s3, v%d\nv_mul_f32 v%d, s3, v%d' % (c, c, c + 1, c + 1))
    wnext()
    for i in I4:
        c = SC(i)
        S.emit('v_exp_f32 v%d, v%d\nv_exp_f32 v%d, v%d' % (c, c, c + 1, c + 1))
    wnext()
    assert not wq
    for i in I4: S.emit('v_add_f32 v%d, v%d, v%d' % (SC(i) + 2, SC(i), SC(i) + 1))
    for sw in ('v_permlane16_swap_b32', 'v_permlane32_swap_b32'):
        for i in I4: S.emit('v_mov_b32 v%d, v%d' % (SC(i) + 3, SC(i) + 2))
        for i in I4: S.emit('%s v%d, v%d' % (sw, SC(i) + 2, SC(i) + 3))
        for i in I4: S.emit('v_add_f32 v%d, v%d, v%d' % (SC(i) + 2, SC(i) + 2, SC(i) + 3))
    for i in I4: S.emit('v_rcp_f32 v%d, v%d' % (SC(i) + 2, SC(i) + 2))
    for i in I4:
        c, p = SC(i), SP(i)
        S.emit('v_mul_f32 v%d, v%d, v%d\nv_mul_f32 v%d, v%d, v%d' % (c, c, c + 2, c + 1, c + 1, c + 2))
        S.emit('v_cvt_pk_bf16_f32 v%d, v%d, v%d\nv_cvt_pk_bf16_f32 v%d, v%d, v%d' % (c, c, c, c + 1, c + 1, c + 1))
        S.emit('v_and_b32 v%d, v%d, v%d\nv_and_b32 v%d, v%d, v%d' % (p, c, MK + 1, p + 1, c + 1, MK + 3))
        S.emit('v_and_b32 v%d, v%d, v%d\nv_and_b32 v%d, v%d, v%d' % (p + 2, c, MK, p + 3, c + 1, MK + 2))
    for i in I4:
        S.emit('v_mfma_f32_16x16x32_bf16 %s, %s, %s, 0' % (vr(acc1(0, i)), vr(VS[0] + 2 * i), vr(SP(i))))
        S.emit('v_mfma_f32_16x16x32_bf16 %s, %s, %s, 0' % (vr(SC(i)), vr(VS[1] + 2 * i), vr(SP(i))))
    def colconst(fs):
        for k, f in enumerate(fs):
            S.emit('ds_read_b128 %s, v1 offset:%d' % (vr(CS + 4 * k), (6 + f) * 64))
            S.emit('ds_read_b128 %s, v1 offset:%d' % (vr(CS + 8 + 4 * k), EX_B1 + f * 64))
    colconst([0, 1])
    for i in I4:
        o = acc1(0, i)
        S.emit('v_cvt_pk_bf16_f32 v%d, v%d, v%d\nv_cvt_pk_bf16_f32 v%d, v%d, v%d' % (o, o, o + 1, o + 1, o + 2, o + 3))
        c = SC(i)
        S.emit('v_cvt_pk_bf16_f32 v%d, v%d, v%d\nv_cvt_pk_bf16_f32 v%d, v%d, v%d' % (o + 2, c, c + 1, o + 3, c + 2, c + 3))
        S.emit('s_add_u32 s3, s56, %d' % (i * 144 * 1024))
        S.emit('buffer_store_dwordx4 %s, v3, s[20:23], s3 offen sc1' % vr(o), tag='o')
    stamp(a, cfg, 3)
    S.emit('v_and_b32 v%d, 7, v0\nv_lshlrev_b32 v%d, 2, v%d' % (VP + 1, VP + 1, VP + 1))
    S.emit('v_mov_b32 v%d, 1\nv_cmp_eq_u32 vcc, 0, v0' % (VP + 2))
    S.emit('v_bfe_u32 v16, v0, 2, 3\nv_bfrev_b32 v17, 1')
    S.emit('v_cndmask_b32 v%d, v17, v0, vcc' % (VP + 3))
    S.emit('v_lshrrev_b32 v17, 2, v0\nv_lshlrev_b32 v17, 8, v17')
    S.emit('v_and_b32 v23, 3, v0\nv_lshl_add_u32 v17, v23, 3, v17')
    for t in reversed(range(8)):
        S.emit('v_xor_b32 v23, %d, v16\nv_lshl_add_u32 v23, v23, 5, v17' % t)
        S.emit('v_add_u32 v%d, %d, v23\nv_add_u32 v%d, %d, v23\nv_mov_b32 v%d, v23' % (VT + 16 + t, SLOT5, VT + 8 + t, WB, VT + t))
    S.emit('s_mul_i32 s5, s62, 36')
    for i in range(4):
        S.emit('s_add_u32 s4, s62, %d\ns_and_b32 s4, s4, 3\ns_add_u32 s4, s4, s91' % i)
        if i == 0: S.emit('s_lshl_b32 s3, s4, 15\ns_lshl_b32 s38, s63, 8\ns_add_u32 s35, s3, s38')
        S.emit('s_mul_i32 s4, s4, 144\ns_add_u32 s4, s4, s5\ns_lshl_b32 s4, s4, 10\ns_add_u32 s4, s4, %d' % WS_H)
        S.emit('v_add_u32 v%d, s4, v3' % (VA + i))
    def gelu(quads, i, mid=None):
        n = len(quads) * 2
        P = [(q[0] + 2 * h, q[1] + 2 * h, q[2] + 2 * h) for q in quads for h in range(2)]
        for k, (x, cs, b) in enumerate(P): S.emit(pk('fma', T + 2 * k, RN + 2 * i, cs, b, sel=[1, 0, 0], selhi=[1, 1, 1]))
        if mid: mid()
        for k, (x, cs, b) in enumerate(P): S.emit(pk('fma', x, RN + 2 * i, x, T + 2 * k, sel=[0, 0, 0], selhi=[0, 1, 1]))
        for k, (x, cs, b) in enumerate(P): S.emit(pk('mul', T + 2 * k, x, x))
        for k, (x, cs, b) in enumerate(P): S.emit(pk('fma', T + 2 * k, T + 2 * k, CC, CC, sel=[0, 1, 0], selhi=[1, 1, 0]))
        for k, (x, cs, b) in enumerate(P): S.emit(pk('mul', T + 2 * k, T + 2 * k, x))
        for k in range(2 * n): S.emit('v_exp_f32 v%d, v%d' % (T + k, T + k))
        for k in range(n): S.emit(pk('add', T + 2 * k, T + 2 * k, '1.0', selhi=[1, 0]))
        for k in range(2 * n): S.emit('v_rcp_f32 v%d, v%d' % (T + k, T + k))
        for k, (x, cs, b) in enumerate(P): S.emit(pk('mul', T + 2 * k, T + 2 * k, x))
        for k in range(n): S.emit('v_cvt_pk_bf16_f32 v%d, v%d, v%d' % (quads[0][0] + k, T + 2 * k, T + 2 * k + 1))
    FS = [[0, 1], [2, 3], [4, 5], [6]]
    aq = []
    for fp in range(4):
        fs = FS[fp]
        for i in range(4):
            mid = (lambda: colconst(FS[fp + 1])) if (i == 3 and fp < 3) else None
            gelu([(acc1(6 + f, i), CS + 4 * k, CS + 8 + 4 * k) for k, f in enumerate(fs)], i, mid)
            if fp < 3:
                S.emit('s_add_u32 s3, s57, %d' % (i * 144 * 1024 + fp * 1024))
                S.emit('buffer_store_dwordx4 %s, v3, s[20:23], s3 offen sc1' % vr(acc1(6 + fs[0], i)), tag='h')
            else:
                S.emit('s_add_u32 s3, s58, %d' % (i * 144 * 1024))
                S.emit('buffer_store_dwordx2 %s, v3, s[20:23], s3 offen sc1' % vr(acc1(12, i), 2), tag='h')
            if (fp, i) == cfg_at(cfg, 'oflag', (0, 3)):
                S.wait_tag(lambda t: t == 'o')
                S.emit('buffer_store_dword v%d, v%d, s[20:23], s89 offen sc1' % (VP + 2, VP + 3), tag='f')
                S.emit('v_mov_b32 v%d, 2' % (VP + 2))
            if (fp, i) == cfg_at(cfg, 'opoll', (1, 3)):
                S.emit('buffer_load_dword v%d, v%d, s[20:23], s86 offen sc1' % (VP, VP + 1))
            if (fp, i) == cfg_at(cfg, 'ocheck', (2, 2)):
                poll_check(S, a, 'L_po', 1, 's86', 8)
                for j in (0, 1):
                    pre, L = k2_aload(j, order)
                    aq += [('\n'.join(pre) + '\n' if k == 0 else '') + x for k, x in enumerate(L)]
            for x in aq[:4]: S.emit(x, tag='a')
            aq = aq[4:]
            if (fp, i) == (3, 1):
                for t in (0, 1):
                    for s in (0, 1):
                        for j4 in (0, 1): S.emit(k2_wread(0, t, s, j4))
    for x in aq: S.emit(x, tag='a')
    stamp(a, cfg, 4)

    a.srd(8, P_X, 2048 * 2048)
    a.srd(12, P_B2, 2048)
    a.srd(24, P_OUT, 2048 * 2048)
    XR = 24; BR = 4; VO = 40
    BARS = {2: None, 4: 7, 6: 9, 8: 11, 10: 13, 13: 17}
    for j in range(18):
        mf = []
        for t in range(8):
            for n, (i, s) in enumerate(order):
                d = acc2(t, i)
                first = j == 0 and not any(i2 == i for (i2, s2) in order[:n])
                mf.append('v_mfma_f32_16x16x32_bf16 %s, %s, %s, %s' % (vr(d), ar(wb(t, s)), ar(aa(j % 3, i, s)), '0' if first else vr(d)))
        fill = [[] for _ in range(64)]
        pre_ = [[] for _ in range(64)]
        for t in range(8):
            jj = j if t < 6 else j + 1
            if jj < 18:
                for k, (s, j4) in enumerate(((0, 0), (0, 1), (1, 0), (1, 1))):
                    fill[8 * t + k].append(k2_wread(jj, (t + 2) % 8, s, j4))
        ops = []
        if 2 <= j < 12:
            pre, L = k2_wdma(j + 6)
            for k, x in enumerate(pre): fill[k].append(x)
            ops += [(su, ld, ('w', j + 6)) for su, ld in L]
        if j + 2 < 18:
            pre, L = k2_aload(j + 2, order)
            for k, x in enumerate(pre): fill[4 + k].append(x)
            ops += [(None, ld, 'a') for ld in L]
        p0 = 7
        if j == 2: p0 = 12
        for k, (su, ld, tg) in enumerate(ops):
            p = p0 + (k * (62 - p0)) // len(ops)
            if su: fill[p].append(su)
            fill[p + 1].append((tg, ld))
        if j in BARS: pre_[6].append('BAR')
        if j == 0: pre_[60].append('HFLAG')
        if j == 1: fill[44].append((None, 'buffer_load_dword v%d, v%d, s[20:23], s86 offen sc1' % (VP, VP + 1)))
        if j == 2: pre_[p0 + (4 * (62 - p0)) // len(ops)].append('HCHECK')
        if j == 11:
            fill[20].append('v_lshrrev_b32 v41, 4, v0\nv_and_b32 v40, 1, v41')
            fill[21].append('v_lshrrev_b32 v41, 1, v41\nv_lshlrev_b32 v40, 5, v40')
            fill[22].append('v_lshl_add_u32 v41, v41, 4, v40\nv_and_b32 v40, 15, v0')
            fill[23].append('v_lshl_add_u32 v40, v40, 11, v41\ns_lshl_b32 s38, s63, 8')
        if j == 12:
            for tp in range(4):
                fill[10 + 12 * tp].append((None, 'buffer_load_dwordx4 %s, v40, s[8:11], s35 offen offset:%d' % (vr(XR + 4 * tp), tp * 64)))
                fill[16 + 12 * tp].append((None, 'buffer_load_dwordx4 %s, v41, s[12:15], s38 offen offset:%d' % (vr(BR + 4 * tp), tp * 64)))
        if j == 14:
            for tp in range(4):
                for k, b in enumerate((XR, BR)):
                    r = b + 4 * tp
                    fill[20 + 8 * tp + 2 * k].append('v_permlane16_swap_b32 v%d, v%d' % (r, r + 2))
                    fill[21 + 8 * tp + 2 * k].append('v_permlane16_swap_b32 v%d, v%d' % (r + 1, r + 3))
        if j in (15, 16):
            b = XR if j == 15 else BR
            for t in range(8):
                wdw = (t + 4) % 8
                for h in range(2):
                    src = b + 2 * t + h; d = acc2(t, 0) + 2 * h
                    fill[8 * wdw + 4 * h + 0].append('v_lshlrev_b32 v42, 16, v%d' % src)
                    fill[8 * wdw + 4 * h + 1].append('v_add_f32 v%d, v%d, v42' % (d, d))
                    fill[8 * wdw + 4 * h + 2].append('v_and_b32 v42, 0xffff0000, v%d' % src)
                    fill[8 * wdw + 4 * h + 3].append('v_add_f32 v%d, v%d, v42' % (d + 1, d + 1))
        if j == 4: stamp(a, cfg, 5)
        for k in range(64):
            for x in pre_[k]:
                if x == 'BAR':
                    lim = BARS[j]
                    if lim is not None: S.wait_tag(lambda t: isinstance(t, tuple) and t[0] == 'w' and t[1] <= lim)
                    S.emit('s_barrier')
                elif x == 'HFLAG':
                    S.wait_tag(lambda t: t == 'h')
                    S.emit('buffer_store_dword v%d, v%d, s[20:23], s89 offen sc1' % (VP + 2, VP + 3), tag='f')
                elif x == 'HCHECK':
                    poll_check(S, a, 'L_ph', 2, 's86', 8)
            S.emit(mf[k])
            for x in fill[k]:
                if isinstance(x, tuple): S.emit(x[1], tag=x[0])
                else: S.emit(x)
    stamp(a, cfg, 6)
    S.emit('s_mul_i32 s3, s88, %d\ns_add_u32 s3, s3, s47\ns_add_u32 s3, s3, %d' % (12 * 16384, WS_P))
    for i in range(1, 4):
        S.emit('s_add_u32 s4, s62, %d\ns_and_b32 s4, s4, 3\ns_mul_i32 s4, s4, %d\ns_add_u32 s4, s4, s3\ns_add_u32 s4, s4, %d' % (i, 3 * 16384, (i - 1) * 16384))
        for tp in range(4):
            d0, d1 = acc2(2 * tp, i), acc2(2 * tp + 1, i)
            S.emit('v_cvt_pk_bf16_f32 v%d, v%d, v%d\nv_cvt_pk_bf16_f32 v%d, v%d, v%d' % (d0, d0, d0 + 1, d0 + 1, d0 + 2, d0 + 3))
            S.emit('v_cvt_pk_bf16_f32 v%d, v%d, v%d\nv_cvt_pk_bf16_f32 v%d, v%d, v%d' % (d0 + 2, d1, d1 + 1, d0 + 3, d1 + 2, d1 + 3))
            S.emit('buffer_store_dwordx4 %s, v3, s[20:23], s4 offen offset:%d sc1' % (vr(d0), tp * 1024))
    S.emit('s_mul_i32 s4, s62, %d\ns_add_u32 s52, s3, s4' % (3 * 16384))
    S.emit('v_and_b32 v%d, 12, v%d' % (VP + 1, VP + 1))
    S.wait(vc=0)
    stamp(a, cfg, 7)
    S.emit('buffer_store_dword v%d, v%d, s[20:23], s90 offen sc1' % (VP + 2, VP + 3))
    S.emit('buffer_load_dword v%d, v%d, s[20:23], s87 offen sc1' % (VP, VP + 1))
    poll_check(S, a, 'L_px', 1, 's87', 4)
    stamp(a, cfg, 8)
    S.emit('s_add_u32 s53, s52, 16384\ns_add_u32 s4, s52, 32768')
    for tp in range(4):
        for jx, so in enumerate(('s52', 's53', 's4')):
            S.emit('buffer_load_dwordx4 %s, v3, s[20:23], %s offen offset:%d sc1' % (vr(RB + (tp * 3 + jx) * 4), so, tp * 1024))
    for tp in range(4):
        for jx in range(3):
            r = RB + (tp * 3 + jx) * 4
            for h in range(4):
                S.emit('v_lshlrev_b32 v%d, 16, v%d\nv_and_b32 v%d, 0xffff0000, v%d' % (4 + 2 * h, r + h, 5 + 2 * h, r + h))
            for h in range(4):
                d = acc2(2 * tp + (h >> 1), 0) + 2 * (h & 1)
                S.emit(pk('add', d, d, 4 + 2 * h))
        d0, d1 = acc2(2 * tp, 0), acc2(2 * tp + 1, 0)
        S.emit('v_cvt_pk_bf16_f32 v%d, v%d, v%d\nv_cvt_pk_bf16_f32 v%d, v%d, v%d' % (d0, d0, d0 + 1, d0 + 1, d0 + 2, d0 + 3))
        S.emit('v_cvt_pk_bf16_f32 v%d, v%d, v%d\nv_cvt_pk_bf16_f32 v%d, v%d, v%d' % (d0 + 2, d1, d1 + 1, d0 + 3, d1 + 2, d1 + 3))
        S.emit('v_permlane16_swap_b32 v%d, v%d\nv_permlane16_swap_b32 v%d, v%d' % (d0, d0 + 2, d0 + 1, d0 + 3))
        S.emit('buffer_store_dwordx4 %s, v40, s[24:27], s35 offen offset:%d' % (vr(d0), tp * 64))
    if cfg.stamps:
        a.e('s_waitcnt vmcnt(0)')
        stamp(a, cfg, 9)
    stamp_flush(a, cfg)
    a.label('L_end')
    a.e('s_endpgm')
    return hazard.fix(a.text())

def cfg_at(cfg, key, default):
    return tuple(getattr(cfg, key, default))

def build(cfg, header=''):
    body = gen(cfg)
    txt = build_file([(NAME + '_kernel', 256, 256, LDS_BYTES)], [(NAME + '_kernel', body, 512, 256)])
    if not cfg.aslist:
        txt = txt.replace('; @launch kernel=%s_kernel grid' % NAME, '; @launch grid')
    return header + txt

if __name__ == '__main__':
    HEADER = open('cdna_kernels/%s.s.ref' % NAME).read().split('; Override launch')[0]
    out = sys.argv[1]
    kw = {}
    for x in sys.argv[2:]:
        k, v = x.split('='); kw[k] = eval(v)
    open(out, 'w').write(build(Cfg(**kw), HEADER))
```

```python
import sys, struct, math
from asmlib import *
from sched import Stream
import hazard

NAME = 'parallel_sum__sliding_local_dilated__dense_activation_gelu__prompt'
WS_BYTES = 268435456
WS_RSTD = 0
WS_NMR = 8192
WS_HFLAG = 0x10000
WS_XFLAG = 0x20000
WS_H = 1 << 20
WS_P = 32 << 20
WS_TS = 250 << 20
SPIN_MAX = 0x20000

def f32(x):
    return '0x%08x' % struct.unpack('<I', struct.pack('<f', x))[0]
def vr(b, n=4, f='v'):
    return '%s[%d:%d]' % (f, b, b + n - 1) if n > 1 else '%s%d' % (f, b)
def ar(b, n=4):
    return vr(b, n, 'a')

class Cfg:
    rot = 4
    stamps = False
    amp = None
    aslist = False
    order = 0
    hst = 'sc1'
    nosingle = False
    dmix = 1
    dplace = 1
    wofs = 1
    lstamps = False
    def __init__(self, **kw):
        for k, v in kw.items(): setattr(self, k, v)

STAMPS = ['start', 'karg', 'setup', 'rows', 'iss0', 'iss1', 'data0', 'g1 end', 'pre bar2', 'bar2', 'attn st', 'pre oflag', 'oflag', 'pre ochk', 'ochk', 'gelu end', 'pre hflag', 'hflag', 'pre hchk', 'hchk', 'g2 s4', 'g2 end', 'stored', 'flagged', 'end']
TSA = 192
def stamp(a, cfg, name):
    if not cfg.stamps: return
    idx = STAMPS.index(name)
    a.e('s_memrealtime s[92:93]\ns_memtime s[94:95]\ns_waitcnt lgkmcnt(0)')
    a.e('v_accvgpr_write_b32 a%d, s92\nv_accvgpr_write_b32 a%d, s94' % (TSA + 2 * idx, TSA + 1 + 2 * idx))
def stamp_flush(a, cfg):
    if not cfg.stamps: return
    a.e('s_lshl_b32 s96, s2, 2\ns_add_u32 s96, s96, s28\ns_lshl_b32 s96, s96, 8')
    a.e('s_add_u32 s96, s96, %d' % WS_TS)
    if cfg.lstamps:
        a.e('s_add_u32 s95, s96, 0x100000\nv_lshlrev_b32 v1, 2, v0\nbuffer_store_dword a250, v1, s[20:23], s95 offen')
    a.e('s_mov_b64 exec, 1')
    a.e('v_mov_b32 v1, 0')
    for idx in range(len(STAMPS)):
        a.e('buffer_store_dwordx2 %s, v1, s[20:23], s96 offen offset:%d' % (ar(TSA + 2 * idx, 2), idx * 8))

def allreduce64(op, x, t):
    L = []
    d = 'row_mask:0xf bank_mask:0xf'
    for m in ('quad_perm:[1,0,3,2]', 'quad_perm:[2,3,0,1]', 'row_half_mirror', 'row_mirror'):
        for xx in x:
            L.append('%s_dpp v%d, v%d, v%d %s %s' % (op, xx, xx, xx, m, d))
    for sw in ('v_permlane16_swap_b32', 'v_permlane32_swap_b32'):
        for xx, tt in zip(x, t): L.append('v_mov_b32 v%d, v%d' % (tt, xx))
        for xx, tt in zip(x, t): L.append('%s v%d, v%d' % (sw, xx, tt))
        for xx, tt in zip(x, t): L.append('%s v%d, v%d, v%d' % (op, xx, xx, tt))
    return L

def pk(op, d, *src, sel=None, selhi=None):
    s = 'v_pk_%s_f32 %s, %s' % (op, vr(d, 2), ', '.join(x if isinstance(x, str) else vr(x, 2) for x in src))
    if sel is not None: s += ' op_sel:[%s]' % ','.join(map(str, sel))
    if selhi is not None: s += ' op_sel_hi:[%s]' % ','.join(map(str, selhi))
    return s

P_X, P_WQKV, P_WO, P_W1, P_B1, P_W2, P_B2, P_OUT, P_DBG, P_WS = 64, 66, 68, 72, 74, 76, 78, 80, 82, 84

XS = 32768
WB = 65536
WSLOT = 28688
W_FFN = 12288
W_HALO = 26624
W_ONES = 28672
EX = WB + 3 * WSLOT
EX_B1 = 832
EX_ST = 1280
EX_KV = 3840
LDS_BYTES = 163840
assert EX + EX_KV + 8192 <= LDS_BYTES
ACC1 = 48
def acc1(t, i): return ACC1 + (t * 4 + i) * 4
def xa(buf, i, s): return buf * 32 + (i * 2 + s) * 4
def ha(s): return 64 + s * 4
def wa(t, s): return 72 + t * 8 + s * 4
EXA = 176
EXTRAS = [[2, 6, 7, 12], [3, 8, 9], [4, 10, 11], [5, 0, 1]]
ORDERS = [[(0, 0), (0, 1), (1, 1), (1, 0), (2, 0), (2, 1), (3, 1), (3, 0)],
          [(0, 0), (1, 0), (2, 0), (3, 0), (3, 1), (2, 1), (1, 1), (0, 1)]]

def k1_wread(t, s, j4):
    d = wa(t, s) + 2 * j4
    if t < 6:
        return 'ds_read_b64_tr_b16 %s, v%d offset:%d' % (ar(d, 2), 14 + (t & 1), t * 32 + j4 * 768 + s * 6144)
    return 'ds_read_b64_tr_b16 %s, v16 offset:%d' % (ar(d, 2), W_FFN + (t - 6) * 32 + j4 * 1792 + s * 7168)
def k1_xread(buf, slot, i, s):
    return 'ds_read_b128 %s, v%d offset:%d' % (ar(xa(buf, i, s)), 10 + s, slot * XS + i * 2048)
def k1_mfma(t, d, df, x, w):
    if t in (4, 5): A, B = x, w
    else: A, B = w, x
    return 'v_mfma_f32_16x16x32_bf16 %s, %s, %s, %s' % (vr(d, 4, df), ar(A), ar(B), vr(d, 4, df))

def k1_dmas(w, xslot, wslot=None):
    Lw = []; Lx = []
    for ii in range(3):
        su = 's_add_u32 m0, s34, %d' % ((3 * w + ii) * 1024) if w is not None else 's_add_u32 m0, s46, %d' % (WB + wslot * WSLOT + ii * 1024)
        Lw.append((su, 'buffer_load_dwordx4 v%d, s[12:15], s32 offen lds' % (3 + ii)))
    for ii in range(4):
        su = 's_add_u32 m0, s34, %d' % (W_FFN + (4 * w + ii) * 1024) if w is not None else 's_add_u32 m0, s47, %d' % (WB + wslot * WSLOT + W_FFN + ii * 1024)
        if ii >= 2 and w in (None, 3):
            Lw.append((su, 'buffer_load_dwordx4 v%d, s[24:27], s40 offen lds' % (6 + ii)))
        else:
            Lw.append((su, 'buffer_load_dwordx4 v%d, s[16:19], s33 offen lds' % (6 + ii)))
    for i in range(8):
        su = 's_mov_b32 m0, %d' % (xslot * XS + w * 8192 + i * 1024) if w is not None else 's_add_u32 m0, s39, %d' % (xslot * XS + i * 1024)
        if i >= 2:
            if i % 2 == 0: su += '\ns_add_u32 s37, s31, s%d' % (42 + i // 2)
            so = 's37'
        else: so = 's31'
        Lx.append((su, 'buffer_load_dwordx4 v%d, s[8:11], %s offen lds' % (1 + (i & 1), so)))
    return Lw, Lx

def k1_kcalc(cfg):
    if cfg.rot:
        W = cfg.rot
        s = 's_add_u32 s38, s36, s41\ns_and_b32 s38, s38, %d\ns_andn2_b32 s37, s36, %d\ns_or_b32 s38, s38, s37\n' % (W - 1, W - 1)
        if cfg.wofs: s += 's_xor_b32 s38, s38, s97\n'
        k = 's38'
    else:
        s = ''; k = 's36'
    s += 's_lshl_b32 s31, %s, 7\ns_mul_i32 s32, %s, %d\ns_mul_i32 s33, %s, %d' % (k, k, 64 * 6144, k, 64 * 7168)
    return s.split('\n')

def k1_step(S, cfg, w, par):
    order = ORDERS[cfg.order]
    ex_at = {}
    for e, t in enumerate(EXTRAS[w]):
        ex_at.setdefault(t if t >= 2 else t + 7, []).append((e, t))
    mf = []; wstart = []
    for t in range(13):
        wstart.append(len(mf))
        for (i, s) in order:
            mf.append(k1_mfma(t, acc1(t, i), 'v', xa(par, i, s), wa(t, s)))
        for (e, te) in ex_at.get(t, []):
            for s in (0, 1):
                mf.append(k1_mfma(te, EXA + 4 * e, 'a', ha(s), wa(te, s)))
    n = len(mf)
    fill = [[] for _ in range(n)]
    for t in range(13):
        tt = (t + 2) % 13
        rd = [k1_wread(tt, s, j4) for s in (0, 1) for j4 in (0, 1)]
        if t < 11:
            for k, r in enumerate(rd): fill[wstart[t] + k].append(r)
        else:
            xs = order[:4] if t == 11 else order[4:]
            seq = rd + [k1_xread(1 - par, 1 - par, i, s) for (i, s) in xs]
            for k, r in enumerate(seq): fill[wstart[t] + k].append(r)
    fill[wstart[0] + 4].append('ds_read_b128 %s, v12' % ar(ha(0)))
    fill[wstart[0] + 5].append('ds_read_b128 %s, v13' % ar(ha(1)))
    fill[wstart[1] + 4].append('s_cmp_eq_u32 s34, %d\ns_cselect_b32 s35, %d, s42' % (WB + WSLOT, -2 * WSLOT & 0xffffffff))
    fill[wstart[2] + 4].append('v_add_u32 v12, s35, v12')
    fill[wstart[2] + 5].append('v_add_u32 v13, s35, v13')
    fill[wstart[10] + 4].append('v_add_u32 v14, s35, v14')
    fill[wstart[10] + 5].append('v_add_u32 v15, s35, v15')
    fill[wstart[10] + 6].append('v_add_u32 v16, s35, v16')
    Lw, Lx = k1_dmas(w, par)
    dm = Lw + Lx
    if cfg.dmix:
        q, f, x = Lw[:3], Lw[3:], Lx
        dm = [q[0], x[0], f[0], x[1], f[1], x[2], q[1], x[3], f[2], x[4], f[3], x[5], q[2], x[6], x[7]]
    if cfg.dplace == 0:
        pos = [3 + (k * (n - 10)) // 15 for k in range(15)]
    else:
        o = cfg.dplace - 1
        two = (2, 4, 7, 9)
        pos = []
        for t in range(11):
            if t in two: pos += [wstart[t] + 3 + o, wstart[t] + 5 + o]
            else: pos += [wstart[t] + 5 + o]
    for k, (su, ld) in enumerate(dm):
        p = pos[k]
        fill[p].append(su)
        fill[p + 1].append(('DMA', ld))
    if w == 0 and par == 1:
        fill[0].append('s_cmp_eq_u32 s36, s98\ns_cselect_b32 s50, 256, 0')
        fill[1].append(('DMA', 'buffer_atomic_add v23, v24, s[48:51], 0 offen sc1'))
    last = pos[14] + 1
    kc = ['s_add_u32 s36, s36, 1'] + k1_kcalc(cfg)
    kc += ['s_add_u32 s34, s34, %d' % WSLOT, 's_cmp_eq_u32 s34, %d\ns_cselect_b32 s34, %d, s34' % (WB + 3 * WSLOT, WB)]
    if par == 0:
        x = 's_cmp_eq_u32 s36, 17\n'
        if w == 3: x += 's_cselect_b32 s40, s57, s31\n'
        kc += [x + 's_cselect_b32 s31, s56, s31\ns_cselect_b32 s33, s57, s33']
    elif w == 3:
        kc += ['s_mov_b32 s40, s31']
    p = last + 1; k = 0
    room = n - p
    per = (len(kc) + room - 1) // room
    while k < len(kc):
        for x in kc[k:k + per]: fill[p].append(x)
        k += per; p += 1
    tagn = ('d', par)
    for k in range(n):
        if k == wstart[11]:
            S.wait_tag(lambda t: t != tagn, lg=0)
            S.emit('s_barrier')
        S.emit(mf[k])
        for x in fill[k]:
            if isinstance(x, tuple): S.emit(x[1], tag=tagn)
            else: S.emit(x)

ACC2 = 128
def acc2(t, i): return ACC2 + (t * 4 + i) * 4
def aa(buf, i, s): return buf * 32 + (i * 2 + s) * 4
def wb(t, s): return 96 + t * 8 + s * 4
VA = 48
VT = 52
VP = 76
RB = 80
SLOT5 = WB + 2 * WSLOT + W_FFN
def k2_slot(sl):
    if sl < 4:
        o = (sl >> 1) * XS + (sl & 1) * 4096
        return (0, o, 8192, 's39', o)
    if sl == 4: return (1, WSLOT + W_FFN, 4096, 's47', WB + WSLOT + W_FFN)
    if sl == 5: return (2, 0, 4096, 's47', SLOT5)
    return (1, (sl - 6) * 16384, 4096, 's47', WB + (sl - 6) * 16384)
def k2_wread(j, t, s, j4):
    bs, o, st, _, _ = k2_slot(j % 8)
    return 'ds_read_b64_tr_b16 %s, v%d offset:%d' % (ar(wb(t, s) + 2 * j4, 2), VT + 8 * bs + t, o + (2 * s + j4) * st)
def k2_wdma(j):
    _, _, _, sg, c = k2_slot(j % 8)
    pre = ['s_add_u32 s60, s60, 1', 's_cmp_eq_u32 s60, 14\ns_cselect_b32 s60, 0, s60', 's_lshl_b32 s32, s60, 17\ns_add_u32 s32, s32, s59', 's_add_u32 s33, s32, 16384']
    L = []
    for ii in range(4):
        L.append(('s_add_u32 m0, %s, %d' % (sg, c + ii * 1024),
                  'buffer_load_dwordx4 v%d, s[16:19], %s offen lds' % (20 + (ii & 1), 's32' if ii < 2 else 's33')))
    return pre, L
def k2_aload(j, order):
    if j < 4: pre = ['s_mov_b32 s31, %d' % (j * 2048)]
    elif j == 4: pre = ['s_lshl_b32 s31, s61, 11\ns_add_u32 s31, s31, 8192']
    else: pre = ['s_add_u32 s31, s31, 2048', 's_cmp_eq_u32 s31, %d\ns_cselect_b32 s31, 8192, s31' % (18 * 2048)]
    L = ['buffer_load_dwordx4 %s, v%d, s[20:23], s31 offen offset:%d sc1' % (ar(aa(j % 3, i, s)), VA + i, s * 1024) for (i, s) in order]
    return pre, L

def poll_check(S, a, name, level, soff, nl):
    S.emit('v_cmp_gt_u32 vcc, %d, v%d' % (level, VP))
    S.emit('s_cmp_eq_u64 vcc, 0\ns_cbranch_scc1 %s_ok' % name)
    a.e('s_mov_b32 s3, 0')
    a.label(name + '_spin')
    a.e('buffer_load_dword v%d, v%d, s[20:23], %s offen sc1' % (VP, VP + 1, soff))
    a.e('s_add_u32 s3, s3, 1\ns_waitcnt vmcnt(0)')
    a.e('v_cmp_gt_u32 vcc, %d, v%d' % (level, VP))
    a.e('s_cmp_eq_u64 vcc, 0\ns_cbranch_scc1 %s_ok' % name)
    a.e('s_cmp_lt_u32 s3, %d\ns_cbranch_scc1 %s_spin' % (SPIN_MAX, name))
    a.label(name + '_ok')

def gen(cfg):
    a = Asm()
    a.e('s_cmp_ge_u32 s2, 256\ns_cbranch_scc1 L_end')
    a.e('s_load_dwordx16 s[64:79], s[0:1], 0\ns_load_dwordx4 s[80:83], s[0:1], 64\ns_load_dwordx2 s[84:85], s[0:1], 80')
    if cfg.stamps: a.e('s_memrealtime s[92:93]\ns_memtime s[94:95]')
    a.e('v_lshrrev_b32 v17, 6, v0\nv_and_b32 v0, 63, v0')
    a.e('v_readfirstlane_b32 s28, v17')
    a.e('s_and_b32 s29, s2, 1\ns_lshl_b32 s29, s29, 2\ns_lshr_b32 s3, s2, 6\ns_add_u32 s29, s29, s3')
    a.e('s_bfe_u32 s62, s2, 0x20001\ns_lshl_b32 s30, s62, 3\ns_bfe_u32 s63, s2, 0x30003\ns_add_u32 s30, s30, s63')
    a.e('s_add_u32 s41, s29, s30')
    if cfg.wofs == 1: a.e('s_and_b32 s97, s29, 4\ns_lshl_b32 s97, s97, 1')
    if cfg.wofs == 2: a.e('s_lshr_b32 s97, s29, 2\ns_lshl_b32 s97, s97, 1\ns_add_u32 s97, s97, s62\ns_and_b32 s97, s97, 3\ns_lshl_b32 s97, s97, 2')
    a.e('s_lshl_b32 s3, s29, 8\ns_lshl_b32 s4, s28, 6\ns_add_u32 s54, s3, s4')
    a.e('s_sub_u32 s5, s3, 16\ns_max_i32 s55, s5, 0')
    a.e('s_lshl_b32 s4, s30, 3\ns_add_u32 s3, s3, s4\ns_lshl_b32 s4, s28, 1\ns_add_u32 s58, s3, s4')
    a.e('s_lshl_b32 s6, s58, 11')
    a.e('s_mul_i32 s46, s28, 3072\ns_lshl_b32 s47, s28, 12\ns_lshl_b32 s39, s28, 13')
    a.e('s_mov_b32 s36, 0\ns_mov_b32 s34, %d\ns_mov_b32 s42, %d' % (WB + 2 * WSLOT, WSLOT))
    a.e('s_mov_b32 s43, 0x8000\ns_mov_b32 s44, 0x10000\ns_mov_b32 s45, 0x18000')
    for x in k1_kcalc(cfg): a.e(x)
    a.e('v_lshlrev_b32 v25, 4, v0')
    a.e('v_lshrrev_b32 v18, 3, v0')
    a.e('v_lshrrev_b32 v19, 4, v0')
    a.e('v_and_b32 v20, 7, v0')
    a.e('v_xor_b32 v21, v20, v19')
    a.e('v_xor_b32 v22, 4, v21')
    a.e('v_add_u32 v23, s54, v18')
    a.e('v_lshlrev_b32 v23, 11, v23')
    a.e('v_lshl_add_u32 v1, v21, 4, v23')
    a.e('v_lshl_add_u32 v2, v22, 4, v23')
    a.e('v_add_u32 v2, 0x4000, v2')
    a.e('s_waitcnt lgkmcnt(0)')
    if cfg.stamps: a.e('v_accvgpr_write_b32 a192, s92\nv_accvgpr_write_b32 a193, s94')
    stamp(a, cfg, 'karg')
    a.srd(8, P_X, 2048 * 2048)
    S = Stream(a)
    for k in range(4):
        S.emit('buffer_load_dwordx4 %s, v25, s[8:11], s6 offen offset:%d' % (vr(48 + 4 * k), k * 1024))
    Lw0, Lx0 = k1_dmas(None, 0, 0)
    for su, ld in Lx0[:4]:
        S.emit(su); S.emit(ld, tag=('p', 0))
    a.srd(12, P_WQKV, 1024 * 6144)
    a.srd(16, P_W1, 1024 * 7168)
    a.srd(20, P_WS, WS_BYTES)
    a.srd(48, P_DBG, 256)
    a.srd(4, P_B1, 7168)
    a.e('s_cmp_eq_u32 s28, 3\ns_cselect_b32 s24, s8, s16\ns_cselect_b32 s25, s9, s17\ns_cselect_b32 s26, s10, s18\ns_cselect_b32 s40, s31, s33\ns_mov_b32 s27, 0x00020000')
    a.e('s_and_b32 s52, s30, 1\ns_lshl_b32 s52, s52, 1\ns_mul_i32 s53, s30, 224')
    S.emit('v_lshrrev_b32 v26, 2, v0\nv_add_u32 v26, s52, v26\nv_subrev_u32 v27, 14, v26\nv_min_u32 v26, v26, v27')
    S.emit('v_and_b32 v27, 3, v0\nv_lshlrev_b32 v27, 2, v27\nv_lshl_add_u32 v26, v26, 4, v27')
    S.emit('buffer_load_dword v44, v26, s[4:7], s53 offen')
    S.emit('s_mul_i32 s3, s28, 192\ns_lshl_b32 s38, s30, 6')
    for ii in range(3):
        S.emit('v_add_u32 v23, s3, v0')
        if ii: S.emit('v_add_u32 v23, %d, v23' % (64 * ii))
        S.emit('v_mul_u32_u24 v24, 5462, v23\nv_lshrrev_b32 v24, 16, v24')
        S.emit('v_mul_u32_u24 v25, 12, v24\nv_sub_u32 v25, v23, v25')
        S.emit('v_lshrrev_b32 v26, 2, v24\nv_and_b32 v26, 2, v26\nv_xor_b32 v25, v25, v26')
        S.emit('v_lshrrev_b32 v26, 2, v25\nv_and_b32 v25, 3, v25')
        S.emit('v_mul_u32_u24 v24, 6144, v24')
        S.emit('v_lshl_add_u32 v24, v26, 11, v24\nv_lshl_add_u32 v24, v25, 4, v24')
        S.emit('v_add_u32 v%d, s38, v24' % (3 + ii))
    S.emit('s_lshl_b32 s3, s28, 8')
    for ii in range(4):
        S.emit('v_add_u32 v23, s3, v0')
        if ii: S.emit('v_add_u32 v23, %d, v23' % (64 * ii))
        S.emit('v_mul_u32_u24 v24, 4682, v23\nv_lshrrev_b32 v24, 16, v24')
        S.emit('v_mul_u32_u24 v25, 14, v24\nv_sub_u32 v25, v23, v25')
        S.emit('v_add_u32 v25, s52, v25\nv_subrev_u32 v26, 14, v25\nv_min_u32 v25, v25, v26')
        S.emit('v_and_b32 v26, 0x33, v24\nv_and_b32 v27, 4, v24\nv_lshl_add_u32 v26, v27, 1, v26')
        S.emit('v_and_b32 v27, 8, v24\nv_lshrrev_b32 v27, 1, v27\nv_add_u32 v26, v26, v27')
        S.emit('v_mul_u32_u24 v26, 7168, v26')
        S.emit('v_lshl_add_u32 v26, v25, 4, v26')
        S.emit('v_add_u32 v%d, s53, v26' % (6 + ii))
    S.emit('s_cmp_lg_u32 s28, 3\ns_cbranch_scc1 L_nohalo')
    S.emit('v_add_u32 v23, s55, v18\nv_lshlrev_b32 v23, 11, v23')
    S.emit('v_lshl_add_u32 v8, v21, 4, v23')
    S.emit('v_lshl_add_u32 v9, v22, 4, v23\nv_add_u32 v9, 0x4000, v9')
    a.label('L_nohalo')
    S.emit('v_and_b32 v32, 15, v0')
    S.emit('v_lshrrev_b32 v21, 1, v32\nv_xor_b32 v21, v21, v19')
    S.emit('v_lshlrev_b32 v21, 4, v21\nv_lshl_add_u32 v21, v32, 7, v21')
    S.emit('v_add_u32 v10, s39, v21\nv_xor_b32 v11, 64, v10')
    S.emit('v_add_u32 v12, %d, v21\nv_xor_b32 v13, 64, v12' % (WB + W_HALO))
    S.emit('v_mov_b32 v27, %d\nv_cmp_eq_u32 vcc, 0, v32' % (WB + W_ONES))
    S.emit('v_cndmask_b32 v12, v12, v27, vcc\nv_cndmask_b32 v13, v13, v27, vcc')
    S.emit('v_bfe_u32 v22, v0, 2, 2')
    S.emit('v_and_b32 v23, 3, v0\nv_lshlrev_b32 v23, 3, v23')
    S.emit('v_lshl_add_u32 v24, v19, 3, v22\nv_mul_u32_u24 v24, 192, v24\nv_add_u32 v24, v24, v23')
    S.emit('v_add_u32 v24, %d, v24' % WB)
    S.emit('v_and_b32 v25, 1, v19\nv_lshlrev_b32 v26, 5, v25')
    S.emit('v_add_u32 v14, v24, v26\nv_sub_u32 v15, v24, v26')
    S.emit('v_lshrrev_b32 v26, 1, v19\nv_lshlrev_b32 v26, 4, v26\nv_lshl_add_u32 v26, v25, 2, v26\nv_add_u32 v26, v26, v22')
    S.emit('v_mul_u32_u24 v26, 224, v26\nv_add_u32 v26, v26, v23\nv_add_u32 v16, %d, v26' % WB)
    S.emit('v_mov_b32 v28, 0x3f803f80\nv_mov_b32 v29, v28\nv_mov_b32 v30, v28\nv_mov_b32 v31, v28')
    for k in range(3): S.emit('ds_write_b128 v27, v[28:31] offset:%d' % (k * WSLOT))
    S.emit('s_lshl_b32 s3, s28, 15\ns_lshl_b32 s38, s63, 8\ns_add_u32 s3, s3, s38')
    S.emit('v_lshlrev_b32 v21, 1, v19\nv_xor_b32 v21, v21, v32\nv_xor_b32 v22, 8, v21')
    S.emit('v_lshlrev_b32 v23, 11, v19\nv_add_u32 v23, s3, v23')
    S.emit('v_lshl_add_u32 v20, v21, 4, v23\nv_lshl_add_u32 v21, v22, 4, v23\nv_add_u32 v21, 0x2000, v21')
    S.emit('v_subrev_u32 v22, 20, v0\nv_min_u32 v22, v22, v0')
    S.emit('s_sub_u32 s3, s54, 16\nv_mov_b32 v23, s3\nv_mov_b32 v24, s55\nv_cmp_gt_u32 vcc, 4, v22')
    S.emit('v_cndmask_b32 v23, v23, v24, vcc\nv_lshl_add_u32 v22, v22, 2, v23\nv_lshlrev_b32 v22, 2, v22')
    S.emit('v_add_u32 v23, %d, v22\nv_cmp_gt_u32 vcc, 20, v0' % WS_NMR)
    S.emit('v_cndmask_b32 v22, v23, v22, vcc')
    S.emit('s_lshr_b32 s3, s2, 3\ns_mul_i32 s38, s3, 52\ns_lshr_b32 s38, s38, 8\ns_mul_i32 s38, s38, 5\ns_sub_u32 s3, s3, s38\ns_lshl_b32 s3, s3, 1\ns_add_u32 s98, s3, 3')
    S.emit('s_lshl_b32 s3, s29, 5\ns_sub_u32 s38, s3, 32\ns_max_i32 s38, s38, 0')
    S.emit('v_mov_b32 v23, s3\nv_mov_b32 v18, s38\nv_cmp_eq_u32 vcc, 0, v0')
    S.emit('v_cndmask_b32 v18, v18, v23, vcc\nv_cndmask_b32 v24, -16, v23, vcc\nv_mov_b32 v23, 1')
    S.emit('s_lshl_b32 s3, s29, 2\ns_add_u32 s3, s3, s62\ns_lshl_b32 s3, s3, 2\ns_add_u32 s3, s3, s28\ns_lshl_b32 s3, s3, 7\ns_add_u32 s86, s3, %d' % WS_HFLAG)
    S.emit('s_lshl_b32 s3, s29, 3\ns_add_u32 s88, s3, s63\ns_lshl_b32 s3, s88, 2\ns_add_u32 s3, s3, s28\ns_lshl_b32 s3, s3, 7\ns_add_u32 s87, s3, %d' % WS_XFLAG)
    S.emit('s_lshl_b32 s3, s63, 2\ns_add_u32 s89, s86, s3\ns_lshl_b32 s3, s62, 2\ns_add_u32 s90, s87, s3')
    for r in range(100, 256, 2): S.emit('v_mov_b64 %s, 0' % vr(r, 2))
    for r in range(EXA, EXA + 16): S.emit('v_accvgpr_write_b32 a%d, 0' % r)
    st = []
    for k in range(16):
        st.append('v_lshlrev_b32 v%d, 16, v%d' % (64 + 2 * k, 48 + k))
        st.append('v_and_b32 v%d, 0xffff0000, v%d' % (65 + 2 * k, 48 + k))
    for k in range(0, 8, 2):
        for r in range(2): st.append(pk('add', 48 + 8 * r + k, 64 + 16 * r + k, 72 + 16 * r + k))
    for k in (0, 2):
        for r in range(2): st.append(pk('add', 48 + 8 * r + k, 48 + 8 * r + k, 52 + 8 * r + k))
    for r in range(2): st.append(pk('add', 48 + 8 * r, 48 + 8 * r, 50 + 8 * r))
    for r in range(2): st.append('v_add_f32 v%d, v%d, v%d' % (34 + r, 48 + 8 * r, 49 + 8 * r))
    st += allreduce64('v_add_f32', [34, 35], [36, 37])
    for r in range(2): st.append('v_mul_f32 v%d, %s, v%d' % (34 + r, f32(-1.0 / 1024), 34 + r))
    for k in range(0, 16, 2):
        for r in range(2): st.append(pk('add', 64 + 16 * r + k, 64 + 16 * r + k, 34, sel=[0, r], selhi=[1, r]))
    for r in range(2): st.append(pk('mul', 48 + 2 * r, 64 + 16 * r, 64 + 16 * r))
    for k in range(2, 16, 2):
        for r in range(2): st.append(pk('fma', 48 + 2 * r, 64 + 16 * r + k, 64 + 16 * r + k, 48 + 2 * r))
    for r in range(2): st.append('v_add_f32 v%d, v%d, v%d' % (38 + r, 48 + 2 * r, 49 + 2 * r))
    st += allreduce64('v_add_f32', [38, 39], [36, 37])
    fin = [[], []]
    for r in range(2):
        m, v, t = 34 + r, 38 + r, 36 + r
        fin[r] = ['v_mul_f32 v%d, %s, v%d' % (v, f32(1.0 / 1024), v),
                  'v_cvt_pk_bf16_f32 v%d, v%d, v%d' % (t, m, v),
                  'v_lshlrev_b32 v%d, 16, v%d' % (m, t),
                  'v_and_b32 v%d, 0xffff0000, v%d' % (v, t),
                  'v_add_f32 v%d, %s, v%d' % (v, f32(1e-5), v),
                  'v_cvt_pk_bf16_f32 v%d, v%d, v%d' % (t, v, v),
                  'v_lshlrev_b32 v%d, 16, v%d' % (t, t),
                  'v_sqrt_f32 v%d, v%d' % (t, t),
                  'v_cvt_pk_bf16_f32 v%d, v%d, v%d' % (t, t, t),
                  'v_lshlrev_b32 v%d, 16, v%d' % (t, t),
                  'v_rcp_f32 v%d, v%d' % (40 + r, t),
                  'v_mul_f32 v%d, v%d, v%d' % (42 + r, m, 40 + r)]
    for x, y in zip(*fin): st += [x, y]
    rest = Lx0[4:] + Lw0
    gap = len(st) // (len(rest) + 1)
    stamp(a, cfg, 'setup')
    S.emit(st[0])
    stamp(a, cfg, 'rows')
    k = 0
    for idx, x in enumerate(st[1:]):
        if idx % gap == 0 and k < len(rest):
            S.emit(rest[k][0]); S.emit(x); S.emit(rest[k][1], tag=('p', 0)); k += 1
        else: S.emit(x)
    assert k == len(rest)
    stamp(a, cfg, 'iss0')
    S.emit('v_lshlrev_b32 v26, 16, v44\nv_and_b32 v27, 0xffff0000, v44\nv_lshlrev_b32 v25, 3, v0\nv_add_u32 v25, %d, v25' % (EX + EX_B1))
    S.emit('s_bfm_b64 exec, 56, 0\nds_write_b64 v25, v[26:27]')
    S.emit('s_lshl_b32 s3, s58, 2\ns_add_u32 s38, s3, %d\nv_mov_b32 v25, 0\ns_mov_b64 exec, 1' % WS_NMR)
    S.emit('buffer_store_dwordx2 v[40:41], v25, s[20:23], s3 offen sc1')
    S.emit('buffer_store_dwordx2 v[42:43], v25, s[20:23], s38 offen sc1')
    S.emit('buffer_store_dword v25, v25, s[20:23], s89 offen sc1')
    S.emit('buffer_store_dword v25, v25, s[20:23], s90 offen sc1')
    S.emit('s_mov_b64 exec, -1')
    S.emit('s_mov_b32 s36, 1')
    for x in k1_kcalc(cfg): S.emit(x)
    S.emit('s_cmp_eq_u32 s28, 3\ns_cselect_b32 s40, s31, s33')
    Lw1, Lx1 = k1_dmas(None, 1, 1)
    zr = list(range(48, 100, 2))
    for su, ld in Lw1 + Lx1:
        S.emit(su)
        for r in zr[:2]: S.emit('v_mov_b64 %s, 0' % vr(r, 2))
        zr = zr[2:]
        S.emit(ld, tag=('p', 1))
    assert not zr
    stamp(a, cfg, 'iss1')
    S.emit('s_mov_b32 s36, 2')
    for x in k1_kcalc(cfg): S.emit(x)
    S.emit('s_mov_b32 s40, s31')
    S.wait_tag(lambda t: t == ('p', 0), lg=0)
    S.emit('s_barrier')
    stamp(a, cfg, 'data0')
    order = ORDERS[cfg.order]
    for s in (0, 1):
        for j4 in (0, 1): S.emit(k1_wread(0, s, j4))
    for (i, s) in order[:4]: S.emit(k1_xread(0, 0, i, s))
    for s in (0, 1):
        for j4 in (0, 1): S.emit(k1_wread(1, s, j4))
    S.wait(lg=8)
    for (i, s) in order[4:]: S.emit(k1_xread(0, 0, i, s))
    a.e('s_cmp_eq_u32 s28, 1\ns_cbranch_scc1 L_loop1\ns_cmp_eq_u32 s28, 2\ns_cbranch_scc1 L_loop2\ns_cmp_eq_u32 s28, 3\ns_cbranch_scc1 L_loop3')

    for w in range(4):
        S = Stream(a)
        S.mute = True
        k1_step(S, cfg, w, 0); k1_step(S, cfg, w, 1)
        st0 = S.state()
        S.mute = False
        if w: a.raw('.p2align 3')
        a.label('L_loop%d' % w)
        def lstamp():
            if cfg.stamps and cfg.lstamps: a.e('s_memtime s[94:95]\ns_mov_b32 m0, s36\ns_waitcnt lgkmcnt(0)\nv_writelane_b32 v25, s94, m0')
        lstamp()
        k1_step(S, cfg, w, 0); lstamp(); k1_step(S, cfg, w, 1)
        assert S.state() == st0
        a.e('s_cmp_lt_u32 s36, 14\ns_cbranch_scc1 L_loop%d' % w)
        a.e('s_cmp_gt_u32 s36, 14\ns_cbranch_scc1 L_not14_%d' % w)
        a.e('s_mov_b32 s50, 256\nbuffer_load_dword v17, v18, s[48:51], 0 offen sc1\ns_branch L_loop%d' % w)
        a.label('L_not14_%d' % w)
        a.e('s_cmp_gt_u32 s36, 16\ns_cbranch_scc1 L_done%d' % w)
        a.e('s_mov_b32 s3, 0\ns_mov_b32 s50, 256')
        a.label('L_st_spin%d' % w)
        a.e('v_cmp_gt_u32 vcc, 32, v17')
        a.e('s_cmp_eq_u64 vcc, 0\ns_cbranch_scc1 L_st_ok%d' % w)
        a.e('buffer_load_dword v17, v18, s[48:51], 0 offen sc1\ns_add_u32 s3, s3, 1\ns_waitcnt vmcnt(0)')
        a.e('s_cmp_lt_u32 s3, %d\ns_cbranch_scc1 L_st_spin%d' % (SPIN_MAX, w))
        a.label('L_st_ok%d' % w)
        a.e('s_mov_b32 m0, %d\ns_bfm_b64 exec, 40, 0' % (EX + EX_ST + w * 640))
        a.e('buffer_load_dwordx4 v22, s[20:23], 0 offen sc1 lds')
        a.e('s_mov_b64 exec, -1')
        a.e('s_mov_b32 s8, s%d\ns_and_b32 s9, s%d, 0xffff\ns_mov_b32 s10, %d' % (P_WO, P_WO + 1, 1024 * 2048))
        a.e('s_mov_b32 s14, 0')
        a.e('s_mov_b32 s16, s%d\ns_and_b32 s17, s%d, 0xffff\ns_mov_b32 s18, %d' % (P_W2, P_W2 + 1, 3584 * 2048))
        if w == 3: a.e('s_mov_b32 s24, s16\ns_mov_b32 s25, s17\ns_mov_b32 s26, s18')
        a.e('v_mov_b32 v1, v20\nv_mov_b32 v2, v21\nv_mov_b32 v6, v20\nv_mov_b32 v7, v21\nv_add_u32 v8, 0x4000, v20\nv_add_u32 v9, 0x4000, v21')
        a.e('s_mov_b32 s43, 16384\ns_mov_b32 s44, 131072\ns_mov_b32 s45, 147456')
        a.e('s_lshl_b32 s31, s62, 19\ns_add_u32 s56, s31, %d' % (2 << 17))
        a.e('s_and_b32 s61, s29, 3\ns_mul_i32 s61, s61, 7\ns_lshr_b32 s61, s61, 1')
        a.e('s_mul_i32 s59, s62, %d\ns_lshl_b32 s33, s61, 17\ns_add_u32 s33, s33, s59\ns_add_u32 s57, s33, %d' % (896 * 2048, 1 << 17))
        a.e('s_add_u32 s60, s61, 1\ns_mov_b32 s40, s33')
        a.e('s_branch L_loop%d' % w)
        a.label('L_done%d' % w)
        lstamp()
        if cfg.stamps and cfg.lstamps: a.e('v_accvgpr_write_b32 a250, v25')
        stamp(a, cfg, 'g1 end')
        S.emit('v_lshlrev_b32 v22, 4, v19\nv_add_u32 v1, %d, v22' % EX)
        S.emit('v_and_b32 v5, 15, v0\nv_lshlrev_b32 v18, 2, v5\nv_add_u32 v2, %d, v18' % EX)
        S.emit('v_add_u32 v18, %d, v18\nv_add_u32 v22, %d, v22' % (EX + EX_ST + w * 640, EX + EX_ST + w * 640))
        S.emit('v_lshlrev_b32 v3, 4, v0')
        S.emit('v_add_u32 v4, %d, v3' % (EX + EX_KV))
        S.emit('s_mov_b32 exec_lo, 0x00010001\ns_mov_b32 exec_hi, 0x00010001')
        for e, t in enumerate(EXTRAS[w]):
            if t not in (4, 5): S.emit('ds_write_b128 v1, %s offset:%d' % (ar(EXA + 4 * e), t * 64))
        for e, t in enumerate(EXTRAS[w]):
            if t in (4, 5):
                S.emit('s_mov_b64 exec, 0xffff')
                S.emit('ds_write_b32 v2, a%d offset:%d' % (EXA + 4 * e, t * 64))
        S.emit('s_mov_b64 exec, -1')
        t = EXTRAS[w][0]
        for i in range(4): S.emit('ds_read2_b32 %s, v18 offset0:%d offset1:%d' % (vr(6 + 2 * i, 2), 16 * (i + 1), 80 + 16 * (i + 1)))
        if t < 4: S.emit('ds_read2_b32 v[32:33], v18 offset0:0 offset1:80')
        else: S.emit('ds_read_b128 v[32:35], v22\nds_read_b128 v[36:39], v22 offset:320')
        for r in range(4): S.emit('v_accvgpr_read_b32 v%d, a%d' % (44 + r, EXA + r))
        S.wait(lg=0)
        S.emit('s_barrier')
        if t < 4:
            S.emit('ds_read_b128 v[40:43], v1 offset:%d' % (t * 64))
            for h in (0, 2): S.emit(pk('mul', 40 + h, 32, 40 + h, sel=[1, 0], selhi=[1, 1]))
            for h in (0, 2): S.emit(pk('fma', 44 + h, 32, 44 + h, 40 + h, sel=[0, 0, 0], selhi=[0, 1, 1]))
        else:
            S.emit('ds_read_b32 v40, v2 offset:%d' % (t * 64))
            for h in (0, 2): S.emit(pk('mul', 36 + h, 36 + h, 40, sel=[0, 0], selhi=[1, 0]))
            for h in (0, 2): S.emit(pk('fma', 44 + h, 32 + h, 44 + h, 36 + h))
        S.emit('v_cvt_pk_bf16_f32 v44, v44, v45\nv_cvt_pk_bf16_f32 v45, v46, v47')
        S.emit('ds_write_b64 v4, v[44:45] offset:%d' % ((0 if t < 4 else 1024) + 8 * (t & 1)))
        if w < 3: a.e('s_branch L_epi')

    a.label('L_epi')
    S = Stream(a)
    S.ds = [set()]
    S.vm = [(('d', 1), set())] * 16
    RN = 6; CC = 14; CS = 24; T = 40
    for t in (2, 3, 0, 1): S.emit('ds_read_b128 %s, v1 offset:%d' % (vr(CS + 4 * t), t * 64))
    S.emit('ds_read_b32 v16, v2 offset:256\nds_read_b32 v17, v2 offset:320')
    c1 = -2.0 * math.sqrt(2.0 / math.pi) * math.log2(math.e)
    S.emit('v_mov_b32 v%d, %s\nv_mov_b32 v%d, %s' % (CC, f32(c1), CC + 1, f32(c1 * 0.044715)))
    S.emit('s_lshl_b32 s3, s28, 11\nv_add_u32 v4, s3, v4')
    VS = [acc1(3, 0), acc1(1, 0)]
    for t0 in (2, 0):
        for i in range(4):
            for h in range(4):
                S.emit(pk('mul', T + 2 * h, RN + 2 * i, CS + 4 * t0 + 2 * h, sel=[1, 0], selhi=[1, 1]))
            for h in range(4):
                r = acc1(t0 + (h >> 1), i) + 2 * (h & 1)
                S.emit(pk('fma', T + 2 * h, RN + 2 * i, r, T + 2 * h, sel=[0, 0, 0], selhi=[0, 1, 1]))
            for h in range(4):
                S.emit('v_cvt_pk_bf16_f32 v%d, v%d, v%d' % (acc1(t0, i) + h, T + 2 * h, T + 2 * h + 1))
        if t0 == 2:
            S.emit('ds_read_b128 %s, v22 offset:%d\nds_read_b128 %s, v22 offset:%d' % (vr(CS + 8), 64 * 4, vr(CS + 12), 320 + 64 * 4))
    for n, i in enumerate((3, 0, 1, 2)):
        b = CS + 8 * ((n + 1) & 1)
        if n < 3:
            i2 = (3, 0, 1, 2)[n + 1]; b2 = CS + 8 * (n & 1)
            S.emit('ds_read_b128 %s, v22 offset:%d\nds_read_b128 %s, v22 offset:%d' % (vr(b2), 64 * (i2 + 1), vr(b2 + 4), 320 + 64 * (i2 + 1)))
        for h in range(4):
            tv = h >> 1
            S.emit(pk('mul', T + 2 * h, b + 4 + 2 * (h & 1), 16, sel=[0, tv], selhi=[1, tv]))
        for h in range(4):
            S.emit(pk('fma', T + 2 * h, b + 2 * (h & 1), acc1(4 + (h >> 1), i) + 2 * (h & 1), T + 2 * h))
        for h in range(4):
            S.emit('v_cvt_pk_bf16_f32 v%d, v%d, v%d' % (VS[h >> 1] + 2 * (i + 1) + (h & 1), T + 2 * h, T + 2 * h + 1))
        if n == 0:
            S.emit('s_cmp_eq_u32 s28, 3\ns_cselect_b64 exec, 0, -1')
            S.emit('ds_write_b128 v4, %s offset:2048' % vr(acc1(2, 3)))
            S.emit('ds_write_b64 v4, %s offset:3072' % vr(VS[0] + 8, 2))
            S.emit('ds_write_b64 v4, %s offset:3080' % vr(VS[1] + 8, 2))
            S.emit('s_mov_b64 exec, -1')
    S.emit('s_lshr_b32 s91, s54, 4\ns_mul_i32 s3, s91, 144\ns_mul_i32 s4, s62, 36\ns_add_u32 s3, s3, s4')
    S.emit('s_add_u32 s56, s3, s63\ns_lshl_b32 s56, s56, 10\ns_add_u32 s56, s56, %d' % WS_H)
    S.emit('s_lshr_b32 s4, s63, 1\ns_mul_i32 s4, s4, 7\ns_add_u32 s3, s3, s4\ns_add_u32 s3, s3, 8\ns_lshl_b32 s3, s3, 10\ns_add_u32 s3, s3, %d' % WS_H)
    S.emit('s_and_b32 s4, s30, 1\ns_lshl_b32 s5, s4, 12\ns_add_u32 s57, s3, s5')
    S.emit('s_lshl_b32 s5, s4, 3\ns_add_u32 s58, s3, s5\ns_add_u32 s58, s58, 3072')
    MK = CS; KP = 32
    S.emit('v_and_b32 v16, 1, v0\nv_lshl_add_u32 v17, v19, 2, v16')
    S.emit('v_cmp_eq_u32 s[6:7], 1, v16\nv_cmp_le_u32 s[52:53], v17, v5\nv_add_u32 v17, 2, v17\nv_cmp_le_u32 s[4:5], v17, v5')
    S.emit('v_mov_b32 v16, 0xffff\nv_mov_b32 v17, 0xffff0000\nv_cndmask_b32 v16, v16, v17, s[6:7]')
    S.emit('v_cndmask_b32 v%d, 0, v16, s[52:53]\nv_cndmask_b32 v%d, v16, 0, s[52:53]' % (MK, MK + 1))
    S.emit('v_cndmask_b32 v%d, 0, v16, s[4:5]\nv_cndmask_b32 v%d, v16, 0, s[4:5]' % (MK + 2, MK + 3))
    S.emit('s_cmp_eq_u32 s54, 0\ns_cselect_b32 s3, %s, 0' % f32(-1e30))
    for r in range(4): S.emit('v_mov_b32 v%d, s3' % (28 + r))
    SC = lambda i: acc1(4, i)
    SP = lambda i: acc1(5, i)
    stamp(a, cfg, 'pre bar2')
    S.wait(vc=0, lg=0)
    S.emit('s_barrier')
    stamp(a, cfg, 'bar2')
    S.emit('ds_read_b128 %s, v4' % vr(KP))
    S.emit('ds_read_b64 %s, v4 offset:1024' % vr(VS[0], 2))
    S.emit('ds_read_b64 %s, v4 offset:1032' % vr(VS[1], 2))
    I4 = (1, 2, 3, 0)
    for i in I4:
        S.emit('v_mfma_f32_16x16x32_bf16 %s, %s, %s, 0' % (vr(SC(i)), vr(acc1(2, i)), vr(acc1(0, i))))
        kp = KP if i == 0 else acc1(2, i - 1)
        S.emit('v_mfma_f32_16x16x32_bf16 %s, %s, %s, %s' % (vr(SP(i)), vr(kp), vr(acc1(0, i)), vr(28) if i == 0 else '0'))
    wq = []
    for j in (6, 7):
        pre, L = k2_wdma(j)
        for k, (su, ld) in enumerate(L): wq.append((('\n'.join(pre) + '\n' if k == 0 else '') + su, ld, ('w', j)))
    def wnext():
        if wq:
            su, ld, tg = wq.pop(0)
            S.emit(su); S.emit(ld, tag=tg)
    for i in I4:
        c, p = SC(i), SP(i)
        S.emit('v_cndmask_b32 v%d, v%d, v%d, s[6:7]' % (c, c, c + 1))
        S.emit('v_cndmask_b32 v%d, v%d, v%d, s[6:7]' % (c + 2, c + 2, c + 3))
        S.emit('v_cndmask_b32 v%d, v%d, v%d, s[6:7]' % (p, p, p + 1))
        S.emit('v_cndmask_b32 v%d, v%d, v%d, s[6:7]' % (p + 2, p + 2, p + 3))
        S.emit('v_cndmask_b32 v%d, v%d, v%d, s[52:53]' % (c, p, c))
        S.emit('v_cndmask_b32 v%d, v%d, v%d, s[4:5]' % (c + 1, p + 2, c + 2))
        S.emit('v_max_f32 v%d, v%d, v%d' % (c + 2, c, c + 1))
        wnext()
    for sw in ('v_permlane16_swap_b32', 'v_permlane32_swap_b32'):
        for i in I4: S.emit('v_mov_b32 v%d, v%d' % (SC(i) + 3, SC(i) + 2))
        for i in I4: S.emit('%s v%d, v%d' % (sw, SC(i) + 2, SC(i) + 3))
        for i in I4: S.emit('v_max_f32 v%d, v%d, v%d' % (SC(i) + 2, SC(i) + 2, SC(i) + 3))
        wnext()
    S.emit('s_mov_b32 s3, %s' % f32(32 ** -0.5 * math.log2(math.e)))
    for i in I4:
        c = SC(i)
        S.emit('v_sub_f32 v%d, v%d, v%d\nv_sub_f32 v%d, v%d, v%d' % (c, c, c + 2, c + 1, c + 1, c + 2))
        S.emit('v_mul_f32 v%d, s3, v%d\nv_mul_f32 v%d, s3, v%d' % (c, c, c + 1, c + 1))
    wnext()
    for i in I4:
        c = SC(i)
        S.emit('v_exp_f32 v%d, v%d\nv_exp_f32 v%d, v%d' % (c, c, c + 1, c + 1))
    wnext()
    assert not wq
    for i in I4: S.emit('v_add_f32 v%d, v%d, v%d' % (SC(i) + 2, SC(i), SC(i) + 1))
    for sw in ('v_permlane16_swap_b32', 'v_permlane32_swap_b32'):
        for i in I4: S.emit('v_mov_b32 v%d, v%d' % (SC(i) + 3, SC(i) + 2))
        for i in I4: S.emit('%s v%d, v%d' % (sw, SC(i) + 2, SC(i) + 3))
        for i in I4: S.emit('v_add_f32 v%d, v%d, v%d' % (SC(i) + 2, SC(i) + 2, SC(i) + 3))
    for i in I4: S.emit('v_rcp_f32 v%d, v%d' % (SC(i) + 2, SC(i) + 2))
    for i in I4:
        c, p = SC(i), SP(i)
        S.emit('v_mul_f32 v%d, v%d, v%d\nv_mul_f32 v%d, v%d, v%d' % (c, c, c + 2, c + 1, c + 1, c + 2))
        S.emit('v_cvt_pk_bf16_f32 v%d, v%d, v%d\nv_cvt_pk_bf16_f32 v%d, v%d, v%d' % (c, c, c, c + 1, c + 1, c + 1))
        S.emit('v_and_b32 v%d, v%d, v%d\nv_and_b32 v%d, v%d, v%d' % (p, c, MK + 1, p + 1, c + 1, MK + 3))
        S.emit('v_and_b32 v%d, v%d, v%d\nv_and_b32 v%d, v%d, v%d' % (p + 2, c, MK, p + 3, c + 1, MK + 2))
    for i in I4:
        S.emit('v_mfma_f32_16x16x32_bf16 %s, %s, %s, 0' % (vr(acc1(0, i)), vr(VS[0] + 2 * i), vr(SP(i))))
        S.emit('v_mfma_f32_16x16x32_bf16 %s, %s, %s, 0' % (vr(SC(i)), vr(VS[1] + 2 * i), vr(SP(i))))
    def colconst(fs):
        for k, f in enumerate(fs):
            S.emit('ds_read_b128 %s, v1 offset:%d' % (vr(CS + 4 * k), (6 + f) * 64))
            S.emit('ds_read_b128 %s, v1 offset:%d' % (vr(CS + 8 + 4 * k), EX_B1 + f * 64))
    colconst([0, 1])
    for i in I4:
        o = acc1(0, i)
        S.emit('v_cvt_pk_bf16_f32 v%d, v%d, v%d\nv_cvt_pk_bf16_f32 v%d, v%d, v%d' % (o, o, o + 1, o + 1, o + 2, o + 3))
        c = SC(i)
        S.emit('v_cvt_pk_bf16_f32 v%d, v%d, v%d\nv_cvt_pk_bf16_f32 v%d, v%d, v%d' % (o + 2, c, c + 1, o + 3, c + 2, c + 3))
        S.emit('s_add_u32 s3, s56, %d' % (i * 144 * 1024))
        S.emit('buffer_store_dwordx4 %s, v3, s[20:23], s3 offen %s' % (vr(o), cfg.hst), tag='o')
    stamp(a, cfg, 'attn st')
    S.emit('v_and_b32 v%d, 7, v0\nv_lshlrev_b32 v%d, 2, v%d' % (VP + 1, VP + 1, VP + 1))
    S.emit('v_mov_b32 v%d, 1\nv_cmp_eq_u32 vcc, 0, v0' % (VP + 2))
    S.emit('v_bfe_u32 v16, v0, 2, 3\nv_bfrev_b32 v17, 1')
    S.emit('v_cndmask_b32 v%d, v17, v0, vcc' % (VP + 3))
    S.emit('v_lshrrev_b32 v17, 2, v0\nv_lshlrev_b32 v17, 8, v17')
    S.emit('v_and_b32 v23, 3, v0\nv_lshl_add_u32 v17, v23, 3, v17')
    for t in reversed(range(8)):
        S.emit('v_xor_b32 v23, %d, v16\nv_lshl_add_u32 v23, v23, 5, v17' % t)
        S.emit('v_add_u32 v%d, %d, v23\nv_add_u32 v%d, %d, v23\nv_mov_b32 v%d, v23' % (VT + 16 + t, SLOT5, VT + 8 + t, WB, VT + t))
    S.emit('s_mul_i32 s5, s62, 36')
    for i in range(4):
        S.emit('s_add_u32 s4, s62, %d\ns_and_b32 s4, s4, 3\ns_add_u32 s4, s4, s91' % i)
        if i == 0: S.emit('s_lshl_b32 s3, s4, 15\ns_lshl_b32 s38, s63, 8\ns_add_u32 s35, s3, s38')
        S.emit('s_mul_i32 s4, s4, 144\ns_add_u32 s4, s4, s5\ns_lshl_b32 s4, s4, 10\ns_add_u32 s4, s4, %d' % WS_H)
        S.emit('v_add_u32 v%d, s4, v3' % (VA + i))
    def gelu(quads, i, mid=None):
        n = len(quads) * 2
        P = [(q[0] + 2 * h, q[1] + 2 * h, q[2] + 2 * h) for q in quads for h in range(2)]
        for k, (x, cs, b) in enumerate(P): S.emit(pk('fma', T + 2 * k, RN + 2 * i, cs, b, sel=[1, 0, 0], selhi=[1, 1, 1]))
        if mid: mid()
        for k, (x, cs, b) in enumerate(P): S.emit(pk('fma', x, RN + 2 * i, x, T + 2 * k, sel=[0, 0, 0], selhi=[0, 1, 1]))
        for k, (x, cs, b) in enumerate(P): S.emit(pk('mul', T + 2 * k, x, x))
        for k, (x, cs, b) in enumerate(P): S.emit(pk('fma', T + 2 * k, T + 2 * k, CC, CC, sel=[0, 1, 0], selhi=[1, 1, 0]))
        for k, (x, cs, b) in enumerate(P): S.emit(pk('mul', T + 2 * k, T + 2 * k, x))
        for k in range(2 * n): S.emit('v_exp_f32 v%d, v%d' % (T + k, T + k))
        for k in range(n): S.emit(pk('add', T + 2 * k, T + 2 * k, '1.0', selhi=[1, 0]))
        for k in range(2 * n): S.emit('v_rcp_f32 v%d, v%d' % (T + k, T + k))
        for k, (x, cs, b) in enumerate(P): S.emit(pk('mul', T + 2 * k, T + 2 * k, x))
        for k in range(n): S.emit('v_cvt_pk_bf16_f32 v%d, v%d, v%d' % (quads[0][0] + k, T + 2 * k, T + 2 * k + 1))
    FS = [[0, 1], [2, 3], [4, 5], [6]]
    aq = []
    for fp in range(4):
        fs = FS[fp]
        for i in range(4):
            mid = (lambda: colconst(FS[fp + 1])) if (i == 3 and fp < 3) else None
            gelu([(acc1(6 + f, i), CS + 4 * k, CS + 8 + 4 * k) for k, f in enumerate(fs)], i, mid)
            if fp < 3:
                S.emit('s_add_u32 s3, s57, %d' % (i * 144 * 1024 + fp * 1024))
                S.emit('buffer_store_dwordx4 %s, v3, s[20:23], s3 offen %s' % (vr(acc1(6 + fs[0], i)), cfg.hst), tag='h')
            else:
                S.emit('s_add_u32 s3, s58, %d' % (i * 144 * 1024))
                if not cfg.nosingle: S.emit('buffer_store_dwordx2 %s, v3, s[20:23], s3 offen %s' % (vr(acc1(12, i), 2), cfg.hst), tag='h')
            if (fp, i) == cfg_at(cfg, 'oflag', (0, 3)):
                stamp(a, cfg, 'pre oflag')
                S.wait_tag(lambda t: t == 'o')
                stamp(a, cfg, 'oflag')
                S.emit('buffer_store_dword v%d, v%d, s[20:23], s89 offen sc1' % (VP + 2, VP + 3), tag='f')
                S.emit('v_mov_b32 v%d, 2' % (VP + 2))
            if (fp, i) == cfg_at(cfg, 'opoll', (1, 3)):
                S.emit('buffer_load_dword v%d, v%d, s[20:23], s86 offen sc1' % (VP, VP + 1))
            if (fp, i) == cfg_at(cfg, 'ocheck', (2, 2)):
                stamp(a, cfg, 'pre ochk')
                poll_check(S, a, 'L_po', 1, 's86', 8)
                stamp(a, cfg, 'ochk')
                for j in (0, 1):
                    pre, L = k2_aload(j, order)
                    aq += [('\n'.join(pre) + '\n' if k == 0 else '') + x for k, x in enumerate(L)]
            for x in aq[:4]: S.emit(x, tag='a')
            aq = aq[4:]
            if (fp, i) == (3, 1):
                for t in (0, 1):
                    for s in (0, 1):
                        for j4 in (0, 1): S.emit(k2_wread(0, t, s, j4))
    for x in aq: S.emit(x, tag='a')
    stamp(a, cfg, 'gelu end')

    a.srd(8, P_X, 2048 * 2048)
    a.srd(12, P_B2, 2048)
    a.srd(24, P_OUT, 2048 * 2048)
    XR = 24; BR = 4; VO = 40
    BARS = {2: None, 4: 7, 6: 9, 8: 11, 10: 13, 13: 17}
    for j in range(18):
        mf = []
        for t in range(8):
            for n, (i, s) in enumerate(order):
                d = acc2(t, i)
                first = j == 0 and not any(i2 == i for (i2, s2) in order[:n])
                mf.append('v_mfma_f32_16x16x32_bf16 %s, %s, %s, %s' % (vr(d), ar(wb(t, s)), ar(aa(j % 3, i, s)), '0' if first else vr(d)))
        fill = [[] for _ in range(64)]
        pre_ = [[] for _ in range(64)]
        for t in range(8):
            jj = j if t < 6 else j + 1
            if jj < 18:
                for k, (s, j4) in enumerate(((0, 0), (0, 1), (1, 0), (1, 1))):
                    fill[8 * t + k].append(k2_wread(jj, (t + 2) % 8, s, j4))
        ops = []
        if 2 <= j < 12:
            pre, L = k2_wdma(j + 6)
            for k, x in enumerate(pre): fill[k].append(x)
            ops += [(su, ld, ('w', j + 6)) for su, ld in L]
        if j + 2 < 18:
            pre, L = k2_aload(j + 2, order)
            for k, x in enumerate(pre): fill[4 + k].append(x)
            ops += [(None, ld, 'a') for ld in L]
        p0 = 7
        if j == 2: p0 = 12
        for k, (su, ld, tg) in enumerate(ops):
            p = p0 + (k * (62 - p0)) // len(ops)
            if su: fill[p].append(su)
            fill[p + 1].append((tg, ld))
        if j in BARS: pre_[6].append('BAR')
        if j == 0: pre_[60].append('HFLAG')
        if j == 1: fill[44].append((None, 'buffer_load_dword v%d, v%d, s[20:23], s86 offen sc1' % (VP, VP + 1)))
        if j == 2: pre_[p0 + (4 * (62 - p0)) // len(ops)].append('HCHECK')
        if j == 11:
            fill[20].append('v_lshrrev_b32 v41, 4, v0\nv_and_b32 v40, 1, v41')
            fill[21].append('v_lshrrev_b32 v41, 1, v41\nv_lshlrev_b32 v40, 5, v40')
            fill[22].append('v_lshl_add_u32 v41, v41, 4, v40\nv_and_b32 v40, 15, v0')
            fill[23].append('v_lshl_add_u32 v40, v40, 11, v41\ns_lshl_b32 s38, s63, 8')
        if j == 12:
            for tp in range(4):
                fill[10 + 12 * tp].append((None, 'buffer_load_dwordx4 %s, v40, s[8:11], s35 offen offset:%d' % (vr(XR + 4 * tp), tp * 64)))
                fill[16 + 12 * tp].append((None, 'buffer_load_dwordx4 %s, v41, s[12:15], s38 offen offset:%d' % (vr(BR + 4 * tp), tp * 64)))
        if j == 14:
            for tp in range(4):
                for k, b in enumerate((XR, BR)):
                    r = b + 4 * tp
                    fill[20 + 8 * tp + 2 * k].append('v_permlane16_swap_b32 v%d, v%d' % (r, r + 2))
                    fill[21 + 8 * tp + 2 * k].append('v_permlane16_swap_b32 v%d, v%d' % (r + 1, r + 3))
        if j in (15, 16):
            b = XR if j == 15 else BR
            for t in range(8):
                wdw = (t + 4) % 8
                for h in range(2):
                    src = b + 2 * t + h; d = acc2(t, 0) + 2 * h
                    fill[8 * wdw + 4 * h + 0].append('v_lshlrev_b32 v42, 16, v%d' % src)
                    fill[8 * wdw + 4 * h + 1].append('v_add_f32 v%d, v%d, v42' % (d, d))
                    fill[8 * wdw + 4 * h + 2].append('v_and_b32 v42, 0xffff0000, v%d' % src)
                    fill[8 * wdw + 4 * h + 3].append('v_add_f32 v%d, v%d, v42' % (d + 1, d + 1))
        if j == 4: stamp(a, cfg, 'g2 s4')
        for k in range(64):
            for x in pre_[k]:
                if x == 'BAR':
                    lim = BARS[j]
                    if lim is not None: S.wait_tag(lambda t: isinstance(t, tuple) and t[0] == 'w' and t[1] <= lim)
                    S.emit('s_barrier')
                elif x == 'HFLAG':
                    stamp(a, cfg, 'pre hflag')
                    S.wait_tag(lambda t: t == 'h')
                    stamp(a, cfg, 'hflag')
                    S.emit('buffer_store_dword v%d, v%d, s[20:23], s89 offen sc1' % (VP + 2, VP + 3), tag='f')
                elif x == 'HCHECK':
                    stamp(a, cfg, 'pre hchk')
                    poll_check(S, a, 'L_ph', 2, 's86', 8)
                    stamp(a, cfg, 'hchk')
            S.emit(mf[k])
            for x in fill[k]:
                if isinstance(x, tuple): S.emit(x[1], tag=x[0])
                else: S.emit(x)
    stamp(a, cfg, 'g2 end')
    S.emit('s_mul_i32 s3, s88, %d\ns_add_u32 s3, s3, s47\ns_add_u32 s3, s3, %d' % (12 * 16384, WS_P))
    for i in range(1, 4):
        S.emit('s_add_u32 s4, s62, %d\ns_and_b32 s4, s4, 3\ns_mul_i32 s4, s4, %d\ns_add_u32 s4, s4, s3\ns_add_u32 s4, s4, %d' % (i, 3 * 16384, (i - 1) * 16384))
        for tp in range(4):
            d0, d1 = acc2(2 * tp, i), acc2(2 * tp + 1, i)
            S.emit('v_cvt_pk_bf16_f32 v%d, v%d, v%d\nv_cvt_pk_bf16_f32 v%d, v%d, v%d' % (d0, d0, d0 + 1, d0 + 1, d0 + 2, d0 + 3))
            S.emit('v_cvt_pk_bf16_f32 v%d, v%d, v%d\nv_cvt_pk_bf16_f32 v%d, v%d, v%d' % (d0 + 2, d1, d1 + 1, d0 + 3, d1 + 2, d1 + 3))
            S.emit('buffer_store_dwordx4 %s, v3, s[20:23], s4 offen offset:%d sc1' % (vr(d0), tp * 1024))
    S.emit('s_mul_i32 s4, s62, %d\ns_add_u32 s52, s3, s4' % (3 * 16384))
    S.emit('v_and_b32 v%d, 12, v%d' % (VP + 1, VP + 1))
    S.wait(vc=0)
    stamp(a, cfg, 'stored')
    S.emit('buffer_store_dword v%d, v%d, s[20:23], s90 offen sc1' % (VP + 2, VP + 3))
    S.emit('buffer_load_dword v%d, v%d, s[20:23], s87 offen sc1' % (VP, VP + 1))
    poll_check(S, a, 'L_px', 1, 's87', 4)
    stamp(a, cfg, 'flagged')
    S.emit('s_add_u32 s53, s52, 16384\ns_add_u32 s4, s52, 32768')
    for tp in range(4):
        for jx, so in enumerate(('s52', 's53', 's4')):
            S.emit('buffer_load_dwordx4 %s, v3, s[20:23], %s offen offset:%d sc1' % (vr(RB + (tp * 3 + jx) * 4), so, tp * 1024))
    for tp in range(4):
        for jx in range(3):
            r = RB + (tp * 3 + jx) * 4
            for h in range(4):
                S.emit('v_lshlrev_b32 v%d, 16, v%d\nv_and_b32 v%d, 0xffff0000, v%d' % (4 + 2 * h, r + h, 5 + 2 * h, r + h))
            for h in range(4):
                d = acc2(2 * tp + (h >> 1), 0) + 2 * (h & 1)
                S.emit(pk('add', d, d, 4 + 2 * h))
        d0, d1 = acc2(2 * tp, 0), acc2(2 * tp + 1, 0)
        S.emit('v_cvt_pk_bf16_f32 v%d, v%d, v%d\nv_cvt_pk_bf16_f32 v%d, v%d, v%d' % (d0, d0, d0 + 1, d0 + 1, d0 + 2, d0 + 3))
        S.emit('v_cvt_pk_bf16_f32 v%d, v%d, v%d\nv_cvt_pk_bf16_f32 v%d, v%d, v%d' % (d0 + 2, d1, d1 + 1, d0 + 3, d1 + 2, d1 + 3))
        S.emit('v_permlane16_swap_b32 v%d, v%d\nv_permlane16_swap_b32 v%d, v%d' % (d0, d0 + 2, d0 + 1, d0 + 3))
        S.emit('buffer_store_dwordx4 %s, v40, s[24:27], s35 offen offset:%d' % (vr(d0), tp * 64))
    if cfg.stamps:
        a.e('s_waitcnt vmcnt(0)')
        stamp(a, cfg, 'end')
    stamp_flush(a, cfg)
    a.label('L_end')
    a.e('s_endpgm')
    return hazard.fix(a.text())

def gen_amp(cfg):
    na, nb, mult, wg = cfg.amp
    ia, ib = STAMPS.index(na), STAMPS.index(nb)
    a = Asm()
    a.e('s_cmp_ge_u32 s2, 1\ns_cbranch_scc1 KA_end')
    a.e('s_load_dwordx2 s[4:5], s[0:1], 80\ns_waitcnt lgkmcnt(0)')
    a.srd(8, 4, WS_BYTES)
    a.e('s_mov_b32 s12, %d\ns_mov_b32 s13, %d' % (WS_TS + ia * 8, WS_TS + ib * 8))
    if wg >= 0: a.e('v_mov_b32 v1, %d' % (wg * 1024))
    else: a.e('v_lshlrev_b32 v1, 10, v0')
    for k in range(4):
        a.e('buffer_load_dword v%d, v1, s[8:11], s12 offen\nbuffer_load_dword v%d, v1, s[8:11], s13 offen' % (2 + k, 6 + k))
        if wg < 0: a.e('v_add_u32 v1, 0x10000, v1')
    a.e('s_memrealtime s[16:17]\ns_waitcnt vmcnt(0) lgkmcnt(0)')
    a.e('v_min_u32 v2, v2, v3\nv_min_u32 v4, v4, v5\nv_min_u32 v2, v2, v4\nv_max_u32 v6, v6, v7\nv_max_u32 v8, v8, v9\nv_max_u32 v6, v6, v8')
    for x in allreduce64('v_min_u32', [2], [10]) + allreduce64('v_max_u32', [6], [10]): a.e(x)
    a.e('v_sub_u32 v2, v6, v2\ns_nop 1\nv_readfirstlane_b32 s14, v2\ns_nop 3')
    a.e('s_min_u32 s14, s14, 20000\ns_mul_i32 s14, s14, %d' % mult)
    a.label('KA_spin')
    a.e('s_memrealtime s[18:19]\ns_waitcnt lgkmcnt(0)\ns_sub_u32 s15, s18, s16\ns_cmp_lt_u32 s15, s14\ns_cbranch_scc1 KA_spin')
    a.label('KA_end')
    a.e('s_endpgm')
    return hazard.fix(a.text())

def cfg_at(cfg, key, default):
    return tuple(getattr(cfg, key, default))

def build(cfg, header=''):
    body = gen(cfg)
    launches = [(NAME + '_kernel', 256, 256, LDS_BYTES)]; kernels = [(NAME + '_kernel', body, 512, 256)]
    if cfg.amp:
        launches.append(('amp_kernel', 1, 64, 0)); kernels.append(('amp_kernel', gen_amp(cfg), 16, 16))
    txt = build_file(launches, kernels)
    if not cfg.aslist:
        txt = txt.replace('; @launch kernel=%s_kernel grid' % NAME, '; @launch grid')
    return header + txt

if __name__ == '__main__':
    HEADER = open('cdna_kernels/%s.s.ref' % NAME).read().split('; Override launch')[0]
    out = sys.argv[1]
    kw = {}
    for x in sys.argv[2:]:
        k, v = x.split('='); kw[k] = eval(v)
    open(out, 'w').write(build(Cfg(**kw), HEADER))
```

```python
from hazard import parse
class Stream:
    def __init__(self, asm):
        self.a = asm
        self.ds = []
        self.vm = []
        self.mute = False
    def _out(self, s):
        if not self.mute: self.a.e(s)
    def emit(self, text, tag=None):
        for ln in text.strip().split('\n'):
            i = parse(ln)
            if i is None:
                if not self.mute: self.a.raw(ln.strip())
                continue
            lg = None; vc = None
            touch = i.r | i.w
            for k in range(len(self.ds) - 1, -1, -1):
                if self.ds[k][1] & touch:
                    lg = len(self.ds) - 1 - k; break
            for k in range(len(self.vm) - 1, -1, -1):
                if self.vm[k][1] & touch:
                    vc = len(self.vm) - 1 - k; break
            self.wait(vc, lg)
            self._out(ln)
            if i.ds: self.ds.append((tag, set(i.w)))
            if i.vmem and i.op not in ('buffer_wbl2', 'buffer_inv'): self.vm.append((tag, set(i.w)))
    def wait(self, vc=None, lg=None):
        parts = []
        if vc is not None:
            vc = min(vc, 63)
            if vc < len(self.vm):
                parts.append('vmcnt(%d)' % vc); self.vm = self.vm[len(self.vm) - vc:] if vc else []
        if lg is not None:
            lg = min(lg, 15)
            if lg < len(self.ds):
                parts.append('lgkmcnt(%d)' % lg); self.ds = self.ds[len(self.ds) - lg:] if lg else []
        if parts: self._out('s_waitcnt ' + ' '.join(parts))
    def wait_tag(self, pred, lg=None):
        vc = None
        for k in range(len(self.vm) - 1, -1, -1):
            if pred(self.vm[k][0]):
                vc = len(self.vm) - 1 - k; break
        self.wait(vc, lg)
    def wait_dstag(self, tag):
        for k in range(len(self.ds) - 1, -1, -1):
            if self.ds[k][0] == tag:
                self.wait(None, len(self.ds) - 1 - k); break
    def state(self):
        return ([(t, frozenset(x)) for t, x in self.ds], [(t, frozenset(w)) for t, w in self.vm])
```

```python
import sys, struct, math
from asmlib import *
from sched import Stream
import hazard

NAME = 'parallel_sum__sliding_local_dilated__dense_activation_gelu__prompt'
WS_BYTES = 268435456
WS_RSTD = 0
WS_NM = 8192
WS_HFLAG = 0x10000
WS_XFLAG = 0x20000
WS_H = 1 << 20
WS_P = 32 << 20
WS_TS = 250 << 20
SPIN_MAX = 0x20000

def f32(x):
    return '0x%08x' % struct.unpack('<I', struct.pack('<f', x))[0]
def vr(b, n=4, f='v'):
    return '%s[%d:%d]' % (f, b, b + n - 1) if n > 1 else '%s%d' % (f, b)
def ar(b, n=4):
    return vr(b, n, 'a')

class Cfg:
    rot = 4
    wofs = 1
    stamps = False
    amp = None
    aslist = False
    hst = 'sc1'
    ost = ''
    n1 = 7
    n2 = 9
    vper = 2
    vstart = 9
    oflag = (0, 2)
    opoll = (1, 2)
    ocheck = (2, 1)
    hflag = (0, 56)
    hpoll = (2, 4)
    hcheck = (2, 44)
    sleep = 1
    def __init__(self, **kw):
        for k, v in kw.items():
            assert hasattr(self, k), k
            setattr(self, k, v)

STAMPS = ['start', 'karg', 'rows', 'data0', 'loop', 'last', 'g1 end', 'attn st', 'pre oflag', 'oflag', 'pre ochk', 'ochk', 'gelu end',
          'pre hflag', 'hflag', 'pre hchk', 'hchk', 'g2 s4', 'g2 s15', 'g2 end', 'stored', 'flag01', 'flag2', 'end']
TSA = 200
def stamp(a, cfg, name):
    if not cfg.stamps: return
    idx = STAMPS.index(name)
    a.e('s_memrealtime s[92:93]\ns_memtime s[94:95]\ns_waitcnt lgkmcnt(0)')
    a.e('v_accvgpr_write_b32 a%d, s92\nv_accvgpr_write_b32 a%d, s94' % (TSA + 2 * idx, TSA + 1 + 2 * idx))
def stamp_flush(a, cfg):
    if not cfg.stamps: return
    a.e('s_lshl_b32 s96, s2, 2\ns_add_u32 s96, s96, s28\ns_lshl_b32 s96, s96, 8')
    a.e('s_add_u32 s96, s96, %d' % WS_TS)
    a.e('s_mov_b64 exec, 1')
    a.e('v_mov_b32 v1, 0')
    for idx in range(len(STAMPS)):
        a.e('buffer_store_dwordx2 %s, v1, s[20:23], s96 offen offset:%d' % (ar(TSA + 2 * idx, 2), idx * 8))

def allreduce64(op, x, t):
    L = []
    d = 'row_mask:0xf bank_mask:0xf'
    for m in ('quad_perm:[1,0,3,2]', 'quad_perm:[2,3,0,1]', 'row_half_mirror', 'row_mirror'):
        for xx in x:
            L.append('%s_dpp v%d, v%d, v%d %s %s' % (op, xx, xx, xx, m, d))
    for sw in ('v_permlane16_swap_b32', 'v_permlane32_swap_b32'):
        for xx, tt in zip(x, t): L.append('v_mov_b32 v%d, v%d' % (tt, xx))
        for xx, tt in zip(x, t): L.append('%s v%d, v%d' % (sw, xx, tt))
        for xx, tt in zip(x, t): L.append('%s v%d, v%d, v%d' % (op, xx, xx, tt))
    return L

def pk(op, d, *src, sel=None, selhi=None):
    s = 'v_pk_%s_f32 %s, %s' % (op, vr(d, 2), ', '.join(x if isinstance(x, str) else vr(x, 2) for x in src))
    if sel is not None: s += ' op_sel:[%s]' % ','.join(map(str, sel))
    if selhi is not None: s += ' op_sel_hi:[%s]' % ','.join(map(str, selhi))
    return s
def cvt(d, x): return 'v_cvt_pk_bf16_f32 v%d, v%d, v%d' % (d, x, x + 1)
def srd_txt(d, b, nbytes):
    return ['s_mov_b32 s%d, s%d' % (d, b), 's_and_b32 s%d, s%d, 0xffff' % (d + 1, b + 1),
            's_mov_b32 s%d, 0x%x' % (d + 2, nbytes), 's_mov_b32 s%d, 0x00020000' % (d + 3)]

class Timeline:
    def __init__(self):
        self.mf = []; self.fill = []; self.pre = []; self.win = []
    def window(self): self.win.append(len(self.mf))
    def mfma(self, t):
        self.mf.append(t); self.fill.append([]); self.pre.append([])
    def at(self, p, x, tag=None):
        self.fill[p].append((x, tag))
    def before(self, p, fn):
        self.pre[p].append(fn)
    def load(self, p):
        n = v = 0
        for x, _ in self.fill[p]:
            if callable(x): n += 1; continue
            for ln in x.split('\n'):
                n += 1
                if ln.startswith('v_'): v += 2 if ln.startswith(hazard.TRANS) else 1
                if ln.startswith('buffer_'): n += 1
        return n, v
    def spread(self, p, items, vper=2, nper=3):
        items = list(items)
        while items and p < len(self.mf):
            it = items[0]
            if isinstance(it, tuple) and it[0] == 'SKIP':
                p += it[1]; items.pop(0); continue
            x, tag = it if isinstance(it, tuple) else (it, None)
            if not callable(x) and x.startswith('v_mfma'):
                p += 1
                self.mf.insert(p, x); self.fill.insert(p, []); self.pre.insert(p, [])
                self.win = [q + 1 if q >= p else q for q in self.win]
                items.pop(0); continue
            n, v = self.load(p)
            if callable(x): cn, cv = 1, 0
            else:
                ls = x.split('\n')
                cn = len(ls) + sum(1 for l in ls if l.startswith('buffer_'))
                cv = sum((2 if l.startswith(hazard.TRANS) else 1) for l in ls if l.startswith('v_'))
            if (n == 0) or (n + cn <= nper and v + cv <= vper):
                self.at(p, x, tag); items.pop(0)
            else: p += 1
        self.last = p
        return items
    def emit(self, S):
        for k in range(len(self.mf)):
            for fn in self.pre[k]: fn()
            S.emit(self.mf[k])
            for x, tag in self.fill[k]:
                if callable(x): x()
                else: S.emit(x, tag=tag)

P_X, P_WQKV, P_WO, P_W1, P_B1, P_W2, P_B2, P_OUT, P_DBG, P_WS = 64, 66, 68, 72, 74, 76, 78, 80, 82, 84

XS = 32768
WB = 65536
WSLOT = 28688
W_FFN = 12288
W_HALO = 26624
W_ONES = 28672
EX = WB + 3 * WSLOT
EX_B1 = 832
EX_ST = 1280
EX_KV = 3840
LDS_BYTES = 163840
assert EX + EX_KV + 8192 <= LDS_BYTES
ACC1 = 48
def acc1(t, i): return ACC1 + (t * 4 + i) * 4
def xa(buf, i, s): return buf * 32 + (i * 2 + s) * 4
HA0, HA1 = 64, 192
def wa(n, s): return 72 + n * 8 + s * 4
EXA = 176
EXTRAS = [[2, 6, 7, 12], [3, 8, 9], [4, 10, 11], [5, 0, 1]]
ORDER = [(0, 0), (0, 1), (1, 1), (1, 0), (2, 0), (2, 1), (3, 1), (3, 0)]
SJ = ((0, 0), (0, 1), (1, 0), (1, 1))

def k1_wread(n, t, s, j4, vq=14, vf=16):
    d = wa(n, s) + 2 * j4
    if t < 6:
        return 'ds_read_b64_tr_b16 %s, v%d offset:%d' % (ar(d, 2), vq + (t & 1), (t >> 1) * 4096 + j4 * 256 + s * 2048)
    return 'ds_read_b64_tr_b16 %s, v%d offset:%d' % (ar(d, 2), vf, W_FFN + (t - 6) * 32 + j4 * 1792 + s * 7168)
def k1_xread(buf, slot, i, s):
    return 'ds_read_b128 %s, v%d offset:%d' % (ar(xa(buf, i, s)), 10 + s, slot * XS + i * 2048)
def k1_mfma(t, d, df, x, w, first=False):
    if t in (4, 5): A, B = x, w
    else: A, B = w, x
    return 'v_mfma_f32_16x16x32_bf16 %s, %s, %s, %s' % (vr(d, 4, df), ar(A), ar(B), '0' if first else vr(d, 4, df))

def k1_dmas(w, xslot, wslot=None):
    q = []; f = []; x = []
    def m0(sg, woff, c):
        if w is None: return 's_add_u32 m0, %s, %d' % (sg, WB + wslot * WSLOT + c)
        if wslot is None: return 's_add_u32 m0, s34, %d' % (woff + c)
        return 's_mov_b32 m0, %d' % (WB + wslot * WSLOT + woff + c)
    ww = w or 0
    for ii in range(3):
        q.append((m0('s46', ww * 1024, ii * 4096), 'buffer_load_dwordx4 v%d, s[12:15], s32 offen lds' % (3 + ii)))
    for ii in range(4):
        su = m0('s47', ww * 4096, W_FFN + ii * 1024)
        if ii >= 2 and w is None: srd, so = 's[24:27]', 's40'
        elif ii >= 2 and w == 3: srd, so = 's[8:11]', 's31'
        else: srd, so = 's[16:19]', 's33'
        f.append((su, 'buffer_load_dwordx4 v%d, %s, %s offen lds' % (6 + ii, srd, so)))
    for i in range(8):
        su = 's_mov_b32 m0, %d' % (xslot * XS + w * 8192 + i * 1024) if w is not None else 's_add_u32 m0, s39, %d' % (xslot * XS + i * 1024)
        if i >= 2:
            if i % 2 == 0: su += '\ns_add_u32 s37, s31, %d' % ((i // 2) * 32768)
            so = 's37'
        else: so = 's31'
        x.append((su, 'buffer_load_dwordx4 v%d, s[8:11], %s offen lds' % (1 + (i & 1), so)))
    return q, f, x
def k1_mix(q, f, x):
    return [q[0], x[0], f[0], x[1], f[1], x[2], q[1], x[3], f[2], x[4], f[3], x[5], q[2], x[6], x[7]]

def k1_kcalc(cfg):
    if cfg.rot:
        W = cfg.rot
        s = 's_add_u32 s38, s36, s41\ns_and_b32 s38, s38, %d\ns_andn2_b32 s33, s36, %d\ns_or_b32 s38, s38, s33\n' % (W - 1, W - 1)
        if cfg.wofs: s += 's_xor_b32 s38, s38, s97\n'
        k = 's38'
    else:
        s = ''; k = 's36'
    s += 's_lshl_b32 s31, %s, 7\ns_mul_i32 s32, %s, %d\ns_mul_i32 s33, %s, %d' % (k, k, 64 * 6144, k, 64 * 7168)
    return s.split('\n')

def place_dmas(T, ops, slots):
    nl = sum(1 for o in ops if o[0] != 'K')
    assert nl <= len(slots), (nl, len(slots))
    pick = [slots[(k * len(slots)) // nl] for k in range(nl)]
    k = 0; prev = 0
    for o in ops:
        if o[0] == 'K':
            end = (pick[k] - 1) if k < nl else len(T.mf) - 1
            room = max(end - prev, 1)
            per = (len(o[1]) + room - 1) // room
            p = min(prev + 1, end) if room > 1 or end > prev else prev
            for j in range(0, len(o[1]), per):
                T.at(min(p, end), '\n'.join(o[1][j:j + per])); p += 1
        else:
            p = pick[k]; k += 1
            if o[0]: T.at(p - 1, o[0])
            T.at(p, o[1], o[2]); prev = p

def k1_step(S, cfg, w, par, mode='loop', setup=()):
    T = Timeline()
    ex_at = {}
    for e, t in enumerate(EXTRAS[w]):
        tw = t if t >= 2 else t + 7
        if mode == 's0': tw = max(tw, 5)
        ex_at.setdefault(tw, []).append((e, t))
    for t in range(13):
        T.window()
        for n, (i, s) in enumerate(ORDER):
            T.mfma(k1_mfma(t, acc1(t, i), 'v', xa(par, i, s), wa(t, s), first=(mode == 's0' and n % 2 == 0)))
        for (e, te) in ex_at.get(t, []):
            for s in (0, 1):
                T.mfma(k1_mfma(te, EXA + 4 * e, 'a', HA0 + 4 * s, wa(te, s), first=(mode == 's0' and s == 0)))
    W = T.win
    for t in range(13):
        tt = (t + 2) % 13
        seq = [k1_wread(tt, tt, s, j4) for (s, j4) in SJ]
        if t >= 11: seq += [k1_xread(1 - par, 1 - par, i, s) for (i, s) in (ORDER[:4] if t == 11 else ORDER[4:])]
        for k, r in enumerate(seq): T.at(W[t] + k, r)
    hw = 4 if mode == 's0' else 0
    T.at(W[hw] + 4, 'ds_read_b128 %s, v12' % ar(HA0))
    T.at(W[hw] + 5, 'ds_read_b128 %s, v13' % ar(HA0 + 4))
    if mode == 'loop':
        T.at(W[1] + 4, 's_cmp_eq_u32 s34, %d\ns_cselect_b32 s35, %d, s42' % (WB + WSLOT, -2 * WSLOT & 0xffffffff))
        dl = 's35'
    else: dl = 's42'
    T.at(W[6] + 3, 'v_add_u32 v12, %s, v12' % dl)
    T.at(W[6] + 4, 'v_add_u32 v13, %s, v13' % dl)
    T.at(W[8] + 3, 'v_add_u32 v14, %s, v14' % dl)
    T.at(W[8] + 4, 'v_add_u32 v15, %s, v15' % dl)
    T.at(W[10] + 4, 'v_add_u32 v16, %s, v16' % dl)
    kstep = ['s_add_u32 s36, s36, 1'] + k1_kcalc(cfg)
    if mode == 'loop':
        tagn = ('d', par)
        ops = [(su, ld, tagn) for su, ld in k1_mix(*k1_dmas(w, par))]
        ops.append(('K', kstep + ['s_add_u32 s34, s34, %d' % WSLOT, 's_cmp_eq_u32 s34, %d\ns_cselect_b32 s34, %d, s34' % (WB + 3 * WSLOT, WB)]))
        slots = []
        for t in range(11):
            if t in (2, 4, 7, 9): slots.append(W[t] + 4)
            slots.append(W[t] + 6)
        place_dmas(T, ops, slots)
        if par == 0:
            T.at(W[3] + 3, 's_cmp_eq_u32 s36, 14\ns_cselect_b32 s50, 256, 0')
            T.at(W[3] + 4, 'buffer_load_dword v17, v18, s[48:51], 0 offen sc1', tagn)
        elif w == 0:
            T.at(W[3] + 3, 's_cmp_eq_u32 s36, s98\ns_cselect_b32 s50, 256, 0')
            T.at(W[3] + 4, 'buffer_atomic_add v23, v24, s[48:51], 0 offen sc1', tagn)
        need = lambda t: t != tagn
    else:
        if mode == 's0':
            l1 = k1_mix(*k1_dmas(w, 1, 1))[cfg.n1:]; l2 = k1_mix(*k1_dmas(w, 0, 2))[:cfg.n2]; tg = (1, 2)
        else:
            l1 = k1_mix(*k1_dmas(w, 0, 2))[cfg.n2:]; l2 = k1_mix(*k1_dmas(w, 1, 0)); tg = (2, 3)
        ops = [(su, ld, ('p', tg[0])) for su, ld in l1] + [('K', kstep)] + [(su, ld, ('p', tg[1])) for su, ld in l2]
        if mode == 's1': ops.append(('K', kstep))
        slots = []
        for t in range(12):
            if t > 0: slots.append(W[t] + 4)
            slots.append(W[t] + 6)
        place_dmas(T, ops, slots)
        need = lambda t: not (isinstance(t, tuple) and t[0] == 'p' and t[1] == tg[1])
        if mode == 's0':
            def bar0():
                S.wait_tag(lambda t: t == ('p', 0)); S.emit('s_barrier')
            T.before(W[4], bar0)
    left = T.spread(W[1], setup, vper=cfg.vper)
    assert not left
    def bar():
        S.wait_tag(need, lg=0); S.emit('s_barrier')
    T.before(W[11], bar)
    T.emit(S)

ACC2 = 128
def acc2(t, i): return ACC2 + (t * 4 + i) * 4
ABUF = (0, 32, 64, 160)
def aa(j, i, s): return ABUF[j % 4] + (i * 2 + s) * 4
def wb(n, s): return 96 + (n % 8) * 8 + s * 4
VA, VA2, VT, RB = 48, 52, 56, 80
VPD, VPO, VFV, VFO = 17, 18, 14, 15
SLOT7 = WB + 2 * WSLOT + W_FFN
def k2_slot(sl):
    if sl < 4:
        o = (sl >> 1) * XS + (sl & 1) * 4096
        return (0, o, 8192, 's39', 8192, o)
    if sl == 7: return (2, 0, 4096, 's47', 4096, SLOT7)
    o = {4: WSLOT, 5: WSLOT + 16384, 6: 0}[sl]
    return (1, o, 4096, 's47', 4096, WB + o)
def k2_wread(n, j, t, s, j4):
    bs, o, st, _, _, _ = k2_slot(j % 8)
    return 'ds_read_b64_tr_b16 %s, v%d offset:%d' % (ar(wb(n, s) + 2 * j4, 2), VT + 8 * bs + t, o + (2 * s + j4) * st)
def k2_kind(j): return 'o' if j < 4 else ('s' if j in (7, 8) else 'p')
def k2_woff(j):
    kd = k2_kind(j)
    if kd == 'o': pre = ['s_add_u32 s32, s43, %d' % (j << 17)]
    elif kd == 's': pre = ['s_mov_b32 s32, s%d' % (44 + j - 7)]
    else:
        pre = [] if j == 4 else ['s_add_u32 s60, s60, 2', 's_sub_u32 s32, s60, 24\ns_min_u32 s60, s60, s32']
        pre += ['s_mul_i32 s32, s60, 86\ns_lshr_b32 s32, s32, 8', 's_lshl_b32 s33, s60, 1\ns_add_u32 s32, s32, s33', 's_lshl_b32 s32, s32, 15\ns_add_u32 s32, s32, s59']
    return pre + ['s_add_u32 s33, s32, 16384']
def k2_wdma(j):
    _, _, _, sg, _, c = k2_slot(j % 8)
    srd = 's[12:15]' if j < 4 else 's[16:19]'
    return [('K', k2_woff(j))] + [('s_add_u32 m0, %s, %d' % (sg, c + ii * 1024),
            'buffer_load_dwordx4 v%d, %s, %s offen lds' % (20 + (ii & 1), srd, 's32' if ii < 2 else 's33'), ('w', j)) for ii in range(4)]
def k2_aload(j):
    kd = k2_kind(j)
    if kd == 'o': pre = ['s_mov_b32 s31, %d' % (j * 2048)]; so = 's31'
    elif kd == 's': pre = ['s_xor_b32 s40, s40, 2048'] if j == 8 else []; so = 's40'
    elif j == 4: pre = ['s_mov_b32 s31, s61']; so = 's31'
    else: pre = ['s_add_u32 s31, s31, 2048', 's_cmp_eq_u32 s31, 32768\ns_cselect_b32 s31, 8192, s31']; so = 's31'
    L = [('K', pre)] if pre else []
    for (i, s) in ORDER:
        if kd == 's':
            for h in range(2):
                L.append((None, 'buffer_load_dwordx2 %s, v%d, s[20:23], %s offen offset:%d sc1' % (ar(aa(j, i, s) + 2 * h, 2), VA2 + i, so, s * 1024 + h * 512), 'a'))
        else:
            L.append((None, 'buffer_load_dwordx4 %s, v%d, s[20:23], %s offen offset:%d sc1' % (ar(aa(j, i, s)), VA + i, so, s * 1024), 'a'))
    return L

def poll_check(S, a, cfg, name, level, srd, soff, vd, vo):
    S.emit('v_cmp_gt_u32 vcc, %d, v%d' % (level, vd))
    S.emit('s_cmp_eq_u64 vcc, 0\ns_cbranch_scc1 %s_ok' % name)
    a.e('s_mov_b32 s99, 0')
    a.label(name + '_spin')
    if cfg.sleep: a.e('s_sleep %d' % cfg.sleep)
    a.e('buffer_load_dword v%d, v%d, %s, %s offen sc1' % (vd, vo, srd, soff))
    a.e('s_add_u32 s99, s99, 1\ns_waitcnt vmcnt(0)')
    a.e('v_cmp_gt_u32 vcc, %d, v%d' % (level, vd))
    a.e('s_cmp_eq_u64 vcc, 0\ns_cbranch_scc1 %s_ok' % name)
    a.e('s_cmp_lt_u32 s99, %d\ns_cbranch_scc1 %s_spin' % (SPIN_MAX, name))
    a.label(name + '_ok')

RN, CC, CS, TG = 26, 34, 80, 36
def colconst(fs, b):
    L = []
    for k, f in enumerate(fs):
        L.append('ds_read_b128 %s, v6 offset:%d' % (vr(b + 4 * k), (6 + f) * 64))
        L.append('ds_read_b128 %s, v6 offset:%d' % (vr(b + 8 + 4 * k), EX_B1 + f * 64))
    return L

def k1_last(S, a, cfg, w):
    T = Timeline()
    th = 2 + w
    seqB = [th] + [t for t in (2, 3, 4, 5) if t != th] + [0, 1]
    own = [t for t in EXTRAS[w] if t >= 6]
    seqD = own + [t for t in range(6, 13) if t not in own]
    wins = [(t, 0) for t in range(6)] + [(t, 1) for t in seqB] + [(t, 0) for t in range(6, 13)] + [(t, 1) for t in seqD]
    widx = {x: n for n, x in enumerate(wins)}
    ex_at = {}
    for e, t in enumerate(EXTRAS[w]):
        for st in (0, 1):
            n = widx[(t, st)]
            ex_at.setdefault(max(n, 2), []).append((e, t, st, n))
    for n, (t, st) in enumerate(wins):
        T.window()
        exs = [k1_mfma(te, EXA + 4 * e, 'a', (HA0, HA1)[se] + 4 * s, wa(ne % 13, s)) for (e, te, se, ne) in ex_at.get(n, []) for s in (0, 1)]
        main = [k1_mfma(t, acc1(t, i), 'v', xa(st, i, s), wa(n % 13, s)) for (i, s) in ORDER]
        for x in (exs + main if n >= 6 else main + exs): T.mfma(x)
    W = T.win
    for n in range(24):
        t, st = wins[n + 2]
        seq = [k1_wread((n + 2) % 13, t, s, j4, *((14, 16), (3, 5))[st]) for (s, j4) in SJ]
        if n in (4, 5): seq += [k1_xread(1, 1, i, s) for (i, s) in (ORDER[:4] if n == 4 else ORDER[4:])]
        for k, r in enumerate(seq): T.at(W[n] + k, r)
    T.at(W[0] + 4, 'ds_read_b128 %s, v12' % ar(HA0))
    T.at(W[0] + 5, 'ds_read_b128 %s, v13' % ar(HA0 + 4))
    T.at(W[4] + 3, 'ds_read_b128 %s, v1' % ar(HA1))
    T.at(W[5] + 3, 'ds_read_b128 %s, v2' % ar(HA1 + 4))
    ST = EX_ST + 640 * w
    def stats():
        S.emit('s_mov_b32 s50, 256')
        poll_check(S, a, cfg, 'L_ps%d' % w, 32, 's[48:51]', '0', 17, 18)
        S.emit('s_mov_b32 m0, %d\ns_bfm_b64 exec, 40, 0' % (EX + ST))
        S.emit('buffer_load_dwordx4 v22, s[20:23], 0 offen sc1 lds', tag='st')
        S.emit('s_mov_b64 exec, -1')
    T.at(W[0] + 6, stats)
    early = srd_txt(12, P_WO, 1024 * 2048)[:3] + srd_txt(16, P_W2, 3584 * 2048)[:3]
    for k in range(3): T.at(W[0] + k, '\n'.join(early[2 * k:2 * k + 2]))
    sl = lambda lo, hi: [W[n] + o for n in range(lo, hi) for o in (4, 6)]
    T1 = k2_wdma(0) + k2_wdma(1) + k2_wdma(4)
    ops = T1 + k2_wdma(2) + k2_wdma(3) + k2_wdma(5)
    slots = [W[1] + 6] + sl(2, 4) + [W[n] + o for n in range(6, 16) for o in (5, 7)]
    T.at(W[1] + 2, '\n'.join(ops[0][1]))
    place_dmas(T, ops[1:], slots[:24])
    tch = k2_woff(6)[:-1] + ['s_mov_b32 s58, s32']
    for k, x in enumerate(tch): T.at(W[16] + 1 + k, x)
    T.at(W[17] + 5, 's_bfm_b64 exec, 32, 0\nbuffer_load_dword v1, v2, s[16:19], s58 offen\nbuffer_load_dword v3, v2, s[16:19], s44 offen\ns_mov_b64 exec, -1', 'tch')
    d2 = 2 * WSLOT
    su = ['v_subrev_u32 v%d, %d, v%d' % (1 + k, d2, 12 + k) for k in range(5)]
    su += ['v_lshlrev_b32 v6, 4, v19', 'v_add_u32 v6, %d, v6' % EX, 'v_and_b32 v36, 15, v0', 'v_lshlrev_b32 v7, 2, v36', 'v_add_u32 v7, %d, v7' % EX,
           'v_lshlrev_b32 v8, 4, v0', 'v_add_u32 v9, %d, v8' % (EX + EX_KV), 'v_add_u32 v22, %d, v7' % ST,
           'v_and_b32 v37, 1, v0', 'v_lshl_add_u32 v38, v19, 2, v37', 'v_add_u32 v39, 2, v38',
           'v_cmp_eq_u32 s[6:7], 1, v37', 'v_cmp_le_u32 s[52:53], v38, v36', 'v_cmp_le_u32 s[4:5], v39, v36',
           'v_add_u32 v40, 16, v38', 'v_add_u32 v41, 16, v39',
           'v_cndmask_b32 v38, v38, v40, s[52:53]', 'v_cndmask_b32 v39, v39, v41, s[4:5]',
           'v_mov_b32 v40, %d' % (EX + ST), 'v_lshl_add_u32 v23, v38, 2, v40', 'v_lshl_add_u32 v24, v39, 2, v40',
           'v_mov_b32 v40, 0xffff', 'v_mov_b32 v41, 0xffff0000', 'v_cndmask_b32 v40, v40, v41, s[6:7]']
    left = T.spread(W[1], su, vper=cfg.vper); assert not left and T.last < W[5], T.last
    su = ['v_cndmask_b32 v10, 0, v40, s[52:53]', 'v_cndmask_b32 v11, v40, 0, s[52:53]', 'v_cndmask_b32 v12, 0, v40, s[4:5]', 'v_cndmask_b32 v13, v40, 0, s[4:5]',
          'v_and_b32 v36, 7, v0', 'v_xor_b32 v37, 1, v36', 'v_cmp_eq_u32 vcc, s63, v36', 'v_mov_b32 v%d, 1' % VFV, 'v_bfrev_b32 v38, 1',
          'v_cndmask_b32 v36, v36, v37, vcc', 'v_cmp_eq_u32 vcc, 0, v0', 'v_lshlrev_b32 v%d, 2, v36' % VPO, 'v_lshrrev_b32 v36, 1, v0',
          'v_cndmask_b32 v%d, v38, v0, vcc' % VFO, 'v_lshlrev_b32 v36, 11, v36', 'v_and_b32 v37, 1, v0', 'v_lshl_add_u32 v36, v37, 7, v36', 's_lshl_b32 s3, s63, 8\nv_add_u32 v2, s3, v36']
    left = T.spread(W[6] + 1, su, vper=cfg.vper); assert not left and T.last < W[8], T.last
    def b15():
        S.wait_tag(lambda t: isinstance(t, tuple) and t[0] == 'd'); S.emit('s_barrier')
    T.before(W[4], b15)
    def cswrite(es):
        L = []
        o1 = [(e, t) for e, t in es if t not in (4, 5)]
        if o1:
            L.append('s_mov_b32 exec_lo, 0x00010001\ns_mov_b32 exec_hi, 0x00010001')
            L += ['ds_write_b128 v6, %s offset:%d' % (ar(EXA + 4 * e), t * 64) for e, t in o1]
        for e, t in es:
            if t in (4, 5): L.append('s_mov_b64 exec, 0xffff\nds_write_b32 v7, a%d offset:%d' % (EXA + 4 * e, t * 64))
        L.append('s_mov_b64 exec, -1')
        return '\n'.join(L)
    T.at(W[7] + 0, cswrite([(0, th)]), 'x1')
    def c1():
        S.wait_tag(lambda t: t == 'st'); S.wait_dstag('x1'); S.emit('s_barrier')
    T.before(W[8], c1)
    if w == 3: T.at(W[12] + 4, cswrite([(1, 0), (2, 1)]), 'x2')
    if own: T.at(W[19 + len(own)] + 4, cswrite([(e, t) for e, t in enumerate(EXTRAS[w]) if t >= 6]), 'x3')
    rd = ['ds_read_b128 v[36:39], v6 offset:128', 'ds_read_b128 v[40:43], v6 offset:192', 'ds_read2_b32 v[34:35], v7 offset0:64 offset1:80']
    rd += ['ds_read2_b32 %s, v22 offset0:%d offset1:%d' % (vr(RN + 2 * i, 2), 16 * (i + 1), 80 + 16 * (i + 1)) for i in (3, 0, 1, 2)]
    hb = acc1(3, 3)
    for k, x in enumerate(rd): T.at(W[8] + 1 + k, x)
    A = []
    VS = [acc1(4, 0) - 2, acc1(5, 0) - 2]
    def qk(t0, i):
        L = ['v_fmac_f32 v%d, v%d, v%d' % (acc1(t0 + (k >> 2), i) + (k & 3), RN + 2 * i + 1, 36 + k) for k in range(8)]
        return L + [cvt(acc1(t0, i) + h, acc1(t0 + (h >> 1), i) + 2 * (h & 1)) for h in range(4)]
    A += ['v_accvgpr_read_b32 v%d, a%d' % (44 + r, EXA + r) for r in range(4)]
    A += qk(2, 3)
    if w < 3: A.append(('ds_write_b128 v9, %s offset:%d' % (vr(acc1(2, 3)), (w + 1) * 2048), 'x2'))
    if th < 4: A.append('ds_read_b32 v%d, v22 offset:320' % hb)
    else: A.append('ds_read_b128 %s, v6 offset:%d' % (vr(hb), ST + 320))
    A += qk(2, 0)
    if th < 4: A += ['v_fmac_f32 v%d, v%d, v%d' % (44 + r, hb, 36 + 4 * (th & 1) + r) for r in range(4)]
    else: A += ['v_fmac_f32 v%d, v%d, v%d' % (44 + r, hb + r, 34 + (th & 1)) for r in range(4)]
    A += [cvt(hb, 44), cvt(hb + 1, 46)]
    A.append(('ds_write_b64 v9, %s offset:%d' % (vr(hb, 2), (0 if th < 4 else 1024) + 8 * (th & 1)), 'x2'))
    NB = (44, acc1(3, 0), acc1(3, 1), acc1(3, 2))
    nm4 = lambda i: 'ds_read_b128 %s, v6 offset:%d' % (vr(NB[i]), ST + 320 + 64 * (i + 1))
    A += [nm4(0), nm4(1)]
    A += qk(2, 1) + [nm4(2)] + qk(2, 2) + [nm4(3)]
    for i in range(4):
        A += ['v_fmac_f32 v%d, v%d, v%d' % (acc1(4 + (k >> 2), i) + (k & 3), NB[i] + (k & 3), 34 + (k >> 2)) for k in range(8)]
        A += [cvt(VS[h >> 1] + 2 * (i + 1) + (h & 1), acc1(4 + (h >> 1), i) + 2 * (h & 1)) for h in range(4)]
    if w < 3:
        A.append(('ds_write_b64 v9, %s offset:%d' % (vr(VS[0] + 8, 2), (w + 1) * 2048 + 1024), 'x2'))
        A.append(('ds_write_b64 v9, %s offset:%d' % (vr(VS[1] + 8, 2), (w + 1) * 2048 + 1032), 'x2'))
    c1_ = -2.0 * math.sqrt(2.0 / math.pi) * math.log2(math.e)
    A += ['v_mov_b32 v%d, %s' % (CC, f32(c1_)), 'v_mov_b32 v%d, %s' % (CC + 1, f32(c1_ * 0.044715))]
    CI = acc1(4, 2); KP = acc1(5, 3)
    if w == 0:
        A.append('s_cmp_eq_u32 s29, 0\ns_cselect_b32 s3, 0xff800000, 0')
        A += ['v_mov_b32 v%d, s3' % (CI + r) for r in range(4)]
    else: A.append(('SKIP', 2))
    A.append(('SKIP', 1))
    def c2():
        S.wait_dstag('x2'); S.emit('s_barrier')
    A.append(c2)
    A += ['ds_read_b128 v[36:39], v6', 'ds_read_b128 v[40:43], v6 offset:64',
          'ds_read_b128 %s, v9 offset:%d' % (vr(KP), w * 2048), 'ds_read_b64 %s, v9 offset:%d' % (vr(VS[0], 2), w * 2048 + 1024),
          'ds_read_b64 %s, v9 offset:%d' % (vr(VS[1], 2), w * 2048 + 1032), ('SKIP', 3)]
    SC = lambda i: acc1(1, i)
    SP = lambda i: (acc1(3, 0), acc1(3, 1), acc1(3, 2), acc1(5, 2))[i]
    I4 = (1, 2, 3, 0)
    def smf(i):
        kp = KP if i == 0 else acc1(2, i - 1)
        return ['v_mfma_f32_16x16x32_bf16 %s, %s, %s, 0' % (vr(SC(i)), vr(acc1(2, i)), vr(acc1(0, i))),
                'v_mfma_f32_16x16x32_bf16 %s, %s, %s, %s' % (vr(SP(i)), vr(kp), vr(acc1(0, i)), vr(CI) if (i == 0 and w == 0) else '0')]
    for n, i in enumerate(I4):
        q = qk(0, i)
        A += q[:4]
        if n: A += smf(I4[n - 1])
        A += q[4:]
    RK = 40; CQ = 36
    rk = lambda i, r: RK + 4 * r + i
    A += ['ds_read2_b32 %s, v%d offset0:%d offset1:%d' % (vr(RK + 4 * r + 2 * h, 2), 23 + r, 32 * h, 32 * h + 16) for r in range(2) for h in range(2)]
    A.append('s_mov_b32 s3, %s' % f32(32 ** -0.5 * math.log2(math.e)))
    A += ['v_mul_f32 v%d, s3, v%d' % (CQ + i, RN + 2 * i) for i in range(4)]
    A += smf(0)
    for i in I4:
        c, p = SC(i), SP(i)
        A += ['v_cndmask_b32 v%d, v%d, v%d, s[6:7]' % (c, c, c + 1), 'v_cndmask_b32 v%d, v%d, v%d, s[6:7]' % (c + 2, c + 2, c + 3),
              'v_cndmask_b32 v%d, v%d, v%d, s[6:7]' % (p, p, p + 1), 'v_cndmask_b32 v%d, v%d, v%d, s[6:7]' % (p + 2, p + 2, p + 3),
              'v_cndmask_b32 v%d, v%d, v%d, s[52:53]' % (c, p, c), 'v_cndmask_b32 v%d, v%d, v%d, s[4:5]' % (c + 1, p + 2, c + 2),
              'v_mul_f32 v%d, v%d, v%d' % (c, c, rk(i, 0)), 'v_mul_f32 v%d, v%d, v%d' % (c + 1, c + 1, rk(i, 1)),
              'v_max_f32 v%d, v%d, v%d' % (c + 2, c, c + 1)]
    def red(op):
        L = []
        for sw in ('v_permlane16_swap_b32', 'v_permlane32_swap_b32'):
            L += ['v_mov_b32 v%d, v%d' % (SC(i) + 3, SC(i) + 2) for i in I4]
            L += ['%s v%d, v%d' % (sw, SC(i) + 2, SC(i) + 3) for i in I4]
            L += ['%s v%d, v%d, v%d' % (op, SC(i) + 2, SC(i) + 2, SC(i) + 3) for i in I4]
        return L
    A += red('v_max_f32')
    for i in I4:
        c = SC(i)
        A += ['v_mul_f32 v%d, v%d, v%d' % (c + 2, c + 2, CQ + i),
              'v_fma_f32 v%d, v%d, v%d, -v%d' % (c, c, CQ + i, c + 2), 'v_fma_f32 v%d, v%d, v%d, -v%d' % (c + 1, c + 1, CQ + i, c + 2)]
    for i in I4: A += ['v_exp_f32 v%d, v%d' % (SC(i), SC(i)), 'v_exp_f32 v%d, v%d' % (SC(i) + 1, SC(i) + 1)]
    A += ['v_add_f32 v%d, v%d, v%d' % (SC(i) + 2, SC(i), SC(i) + 1) for i in I4]
    for i in I4: A += ['v_mul_f32 v%d, v%d, v%d' % (SC(i), SC(i), rk(i, 0)), 'v_mul_f32 v%d, v%d, v%d' % (SC(i) + 1, SC(i) + 1, rk(i, 1))]
    A += red('v_add_f32')
    A += ['v_rcp_f32 v%d, v%d' % (SC(i) + 2, SC(i) + 2) for i in I4]
    def omf(i):
        return ['v_mfma_f32_16x16x32_bf16 %s, %s, %s, 0' % (vr(acc1(0, i)), vr(VS[0] + 2 * i), vr(SP(i))),
                'v_mfma_f32_16x16x32_bf16 %s, %s, %s, 0' % (vr(SC(i)), vr(VS[1] + 2 * i), vr(SP(i)))]
    def ost(i):
        o, c = acc1(0, i), SC(i)
        return [cvt(o, o), cvt(o + 1, o + 2), cvt(o + 2, c), cvt(o + 3, c + 2), 's_add_u32 s3, s56, %d' % (i * 147456),
                ('buffer_store_dwordx4 %s, v8, s[20:23], s3 offen %s' % (vr(o), cfg.hst), 'o')]
    for n, i in enumerate(I4):
        c, p = SC(i), SP(i)
        A += ['v_mul_f32 v%d, v%d, v%d' % (c, c, c + 2), 'v_mul_f32 v%d, v%d, v%d' % (c + 1, c + 1, c + 2)]
        if n: A += omf(I4[n - 1])
        A += ['v_cvt_pk_bf16_f32 v%d, v%d, v%d' % (c, c, c), 'v_cvt_pk_bf16_f32 v%d, v%d, v%d' % (c + 1, c + 1, c + 1),
              'v_and_b32 v%d, v%d, v11' % (p, c), 'v_and_b32 v%d, v%d, v13' % (p + 1, c + 1),
              'v_and_b32 v%d, v%d, v10' % (p + 2, c), 'v_and_b32 v%d, v%d, v12' % (p + 3, c + 1)]
    x = ost(1)
    A += x[:2] + omf(0) + x[2:] + ost(2) + ost(3) + ost(0)
    def c3():
        S.wait_tag(lambda t: isinstance(t, tuple) and t[0] == 'w' and t[1] < 4, lg=0); S.emit('s_barrier')
    T.before(W[24], c3)
    for k, x in enumerate(colconst([0, 1], CS)): T.at(W[25] + k, x)
    o6 = k2_wdma(6); o7 = k2_wdma(7)
    ops = [('K', ['s_mov_b32 s32, s58', 's_add_u32 s33, s58, 16384'])] + o6[1:] + o7
    T.at(W[23] + 5, '\n'.join(ops[0][1]))
    place_dmas(T, ops[1:], [W[24] + 1, W[24] + 3, W[24] + 5, W[24] + 7, W[25] + 2, W[25] + 4, W[25] + 5, W[25] + 7])
    left = T.spread(W[cfg.vstart], A, vper=cfg.vper)
    assert not any(x is c2 for x in left)
    pc2 = [k for k, f in enumerate(T.fill) if any(x is c2 for x, _ in f)][0]
    assert T.win[13] < pc2 < T.win[24]
    lastS = max(k for k, m in enumerate(T.mf) if m in smf(0))
    assert lastS < T.win[25]
    T.emit(S)
    stamp(a, cfg, 'g1 end')
    for it in left:
        if isinstance(it, tuple):
            if it[0] != 'SKIP': S.emit(it[0], tag=it[1])
        else: S.emit(it)
    return len(left)

def gen(cfg):
    a = Asm()
    a.e('s_cmp_ge_u32 s2, 256\ns_cbranch_scc1 L_end')
    a.e('s_load_dwordx16 s[64:79], s[0:1], 0\ns_load_dwordx4 s[80:83], s[0:1], 64\ns_load_dwordx2 s[84:85], s[0:1], 80')
    if cfg.stamps: a.e('s_memrealtime s[92:93]\ns_memtime s[94:95]')
    a.e('v_lshrrev_b32 v17, 6, v0\nv_and_b32 v0, 63, v0')
    a.e('v_readfirstlane_b32 s28, v17')
    a.e('s_and_b32 s29, s2, 1\ns_lshl_b32 s97, s29, 3\ns_lshl_b32 s29, s29, 2\ns_lshr_b32 s3, s2, 6\ns_add_u32 s29, s29, s3')
    a.e('s_bfe_u32 s62, s2, 0x20001\ns_lshl_b32 s30, s62, 3\ns_bfe_u32 s63, s2, 0x30003\ns_add_u32 s30, s30, s63')
    a.e('s_add_u32 s41, s29, s30')
    a.e('s_lshl_b32 s3, s29, 8\ns_lshl_b32 s4, s28, 6\ns_add_u32 s54, s3, s4')
    a.e('s_lshl_b32 s4, s30, 3\ns_add_u32 s5, s3, s4\ns_lshl_b32 s4, s28, 1\ns_add_u32 s58, s5, s4')
    a.e('s_lshl_b32 s6, s58, 11\ns_lshl_b32 s39, s28, 13\ns_mov_b32 s36, 0')
    for x in k1_kcalc(cfg): a.e(x)
    a.e('v_lshlrev_b32 v25, 4, v0')
    a.e('v_lshrrev_b32 v18, 3, v0')
    a.e('v_lshrrev_b32 v19, 4, v0')
    a.e('v_and_b32 v20, 7, v0')
    a.e('v_xor_b32 v21, v20, v19')
    a.e('v_lshlrev_b32 v18, 11, v18\nv_lshl_add_u32 v18, v21, 4, v18')
    a.e('s_lshl_b32 s4, s54, 11\nv_add_u32 v1, s4, v18\nv_xor_b32 v2, 0x4040, v1')
    a.e('s_waitcnt lgkmcnt(0)')
    if cfg.stamps: a.e('v_accvgpr_write_b32 a%d, s92\nv_accvgpr_write_b32 a%d, s94' % (TSA, TSA + 1))
    stamp(a, cfg, 'karg')
    a.srd(8, P_X, 2048 * 2048)
    S = Stream(a)
    for k in range(4):
        S.emit('buffer_load_dwordx4 %s, v25, s[8:11], s6 offen offset:%d' % (vr(48 + 4 * k), k * 1024))
    q0, f0, x0 = k1_dmas(None, 0, 0)
    for su, ld in x0[:4]:
        S.emit(su); S.emit(ld, tag=('a', 0))
    a.srd(12, P_WQKV, 1024 * 6144)
    a.srd(16, P_W1, 1024 * 7168)
    a.srd(20, P_WS, WS_BYTES)
    a.e('s_sub_u32 s5, s3, 16\ns_max_i32 s55, s5, 0')
    a.e('s_lshl_b32 s46, s28, 10\ns_lshl_b32 s47, s28, 12\ns_mov_b32 s42, %d' % WSLOT)
    a.e('s_cmp_eq_u32 s28, 3\ns_cselect_b32 s24, s8, s16\ns_cselect_b32 s25, s9, s17\ns_cselect_b32 s26, s10, s18\ns_cselect_b32 s40, s31, s33\ns_mov_b32 s27, 0x00020000')
    S.emit('s_mul_i32 s3, s28, %d\ns_lshl_b32 s38, s30, 6\ns_add_u32 s3, s3, s38' % (16 * 6144))
    S.emit('v_lshrrev_b32 v22, 2, v0\nv_and_b32 v23, 3, v0\nv_and_b32 v24, 2, v19\nv_xor_b32 v24, v24, v23')
    S.emit('v_mul_u32_u24 v26, 6144, v22\nv_lshl_add_u32 v26, v24, 4, v26')
    S.emit('v_add_u32 v3, s3, v26\nv_add_u32 v4, 0x800, v3\nv_add_u32 v5, 0x1000, v3')
    S.emit('s_lshl_b32 s3, s28, 8\ns_mul_i32 s53, s30, 224\ns_movk_i32 s38, 0x1c00\nv_add_u32 v26, s3, v0\nv_mov_b32 v31, s53')
    for ii in range(4):
        if ii: S.emit('v_add_u32 v26, 64, v26')
        S.emit('v_mul_u32_u24 v27, 4682, v26\nv_lshrrev_b32 v27, 16, v27')
        S.emit('v_mad_i32_i24 v28, v27, -14, v26')
        S.emit('v_and_b32 v29, 4, v27\nv_bfe_i32 v30, v27, 3, 1\nv_lshl_add_u32 v29, v30, 2, v29\nv_add_u32 v27, v27, v29')
        S.emit('v_mad_u32_u24 v27, v27, s38, v31\nv_lshl_add_u32 v%d, v28, 4, v27' % (6 + ii))
    S.emit('s_cmp_lg_u32 s28, 3\ns_cbranch_scc1 L_nohalo')
    S.emit('s_lshl_b32 s3, s55, 11\nv_add_u32 v8, s3, v18\nv_xor_b32 v9, 0x4040, v8')
    a.label('L_nohalo')
    S.emit('v_and_b32 v32, 15, v0')
    S.emit('v_lshrrev_b32 v21, 1, v32\nv_xor_b32 v21, v21, v19')
    S.emit('v_lshlrev_b32 v21, 4, v21\nv_lshl_add_u32 v21, v32, 7, v21')
    S.emit('v_add_u32 v10, s39, v21\nv_xor_b32 v11, 64, v10')
    S.emit('v_add_u32 v12, %d, v21\nv_xor_b32 v13, 64, v12' % (WB + W_HALO))
    S.emit('v_mov_b32 v27, %d\nv_cmp_eq_u32 vcc, 0, v32' % (WB + W_ONES))
    S.emit('v_and_b32 v22, 3, v22\nv_lshlrev_b32 v23, 3, v23')
    S.emit('v_cndmask_b32 v12, v12, v27, vcc\nv_cndmask_b32 v13, v13, v27, vcc')
    S.emit('v_lshl_add_u32 v24, v19, 3, v22\nv_lshl_add_u32 v24, v24, 6, v23\nv_and_b32 v25, 1, v19')
    S.emit('v_lshl_add_u32 v24, v25, 5, v24\nv_add_u32 v14, %d, v24\nv_xor_b32 v15, 32, v14' % WB)
    S.emit('v_lshrrev_b32 v26, 1, v19\nv_lshlrev_b32 v26, 4, v26\nv_lshl_add_u32 v26, v25, 2, v26\nv_add_u32 v26, v26, v22')
    S.emit('v_mul_u32_u24 v26, 224, v26\nv_add_u32 v26, v26, v23\nv_add_u32 v16, %d, v26' % WB)
    S.emit('v_mov_b32 v28, 0x3f803f80\nv_mov_b32 v29, v28\nv_mov_b32 v30, v28\nv_mov_b32 v31, v28')
    for k in range(3): S.emit('ds_write_b128 v27, v[28:31] offset:%d' % (k * WSLOT))
    S.emit('s_lshl_b32 s3, s29, 2\ns_add_u32 s3, s3, s62\ns_lshl_b32 s3, s3, 2\ns_add_u32 s3, s3, s28\ns_lshl_b32 s3, s3, 7\ns_add_u32 s86, s3, %d' % WS_HFLAG)
    S.emit('s_lshl_b32 s3, s63, 2\ns_add_u32 s89, s86, s3')
    S.emit('s_lshl_b32 s3, s29, 3\ns_add_u32 s88, s3, s63\ns_lshl_b32 s3, s88, 4\ns_add_u32 s3, s3, s28\ns_lshl_b32 s3, s3, 7\ns_add_u32 s90, s3, %d' % WS_XFLAG)
    S.emit('s_lshl_b32 s3, s62, 9\ns_add_u32 s87, s90, s3')
    a.srd(4, P_B1, 7168)
    S.emit('v_lshlrev_b32 v33, 2, v0\nv_mov_b64 v[44:45], 0\nv_mov_b64 v[46:47], 0')
    st = []
    for k in range(16):
        st.append('v_lshlrev_b32 v%d, 16, v%d' % (64 + 2 * k, 48 + k))
        st.append('v_and_b32 v%d, 0xffff0000, v%d' % (65 + 2 * k, 48 + k))
    for k in range(0, 8, 2):
        for r in range(2): st.append(pk('add', 48 + 8 * r + k, 64 + 16 * r + k, 72 + 16 * r + k))
    for k in (0, 2):
        for r in range(2): st.append(pk('add', 48 + 8 * r + k, 48 + 8 * r + k, 52 + 8 * r + k))
    for r in range(2): st.append(pk('add', 48 + 8 * r, 48 + 8 * r, 50 + 8 * r))
    for r in range(2): st.append('v_add_f32 v%d, v%d, v%d' % (34 + r, 48 + 8 * r, 49 + 8 * r))
    st += allreduce64('v_add_f32', [34, 35], [36, 37])
    for r in range(2): st.append('v_mul_f32 v%d, %s, v%d' % (34 + r, f32(-1.0 / 1024), 34 + r))
    for k in range(0, 16, 2):
        for r in range(2): st.append(pk('add', 64 + 16 * r + k, 64 + 16 * r + k, 34, sel=[0, r], selhi=[1, r]))
    for r in range(2): st.append(pk('mul', 48 + 2 * r, 64 + 16 * r, 64 + 16 * r))
    for k in range(2, 16, 2):
        for r in range(2): st.append(pk('fma', 48 + 2 * r, 64 + 16 * r + k, 64 + 16 * r + k, 48 + 2 * r))
    for r in range(2): st.append('v_add_f32 v%d, v%d, v%d' % (38 + r, 48 + 2 * r, 49 + 2 * r))
    st += allreduce64('v_add_f32', [38, 39], [36, 37])
    fin = [[], []]
    for r in range(2):
        m, v, t = 34 + r, 38 + r, 36 + r
        fin[r] = ['v_mul_f32 v%d, %s, v%d' % (v, f32(1.0 / 1024), v),
                  'v_cvt_pk_bf16_f32 v%d, v%d, v%d' % (t, m, v),
                  'v_lshlrev_b32 v%d, 16, v%d' % (m, t),
                  'v_and_b32 v%d, 0xffff0000, v%d' % (v, t),
                  'v_add_f32 v%d, %s, v%d' % (v, f32(1e-5), v),
                  'v_cvt_pk_bf16_f32 v%d, v%d, v%d' % (t, v, v),
                  'v_lshlrev_b32 v%d, 16, v%d' % (t, t),
                  'v_sqrt_f32 v%d, v%d' % (t, t),
                  'v_cvt_pk_bf16_f32 v%d, v%d, v%d' % (t, t, t),
                  'v_lshlrev_b32 v%d, 16, v%d' % (t, t),
                  'v_rcp_f32 v%d, v%d' % (40 + r, t)]
    for x, y in zip(*fin): st += [x, y]
    k1c = ['s_mov_b32 s36, 1'] + k1_kcalc(cfg) + ['s_cmp_eq_u32 s28, 3\ns_cselect_b32 s40, s31, s33']
    rest = [(su, ld, ('a', 0)) for su, ld in [x0[4], q0[0], x0[5], q0[1], x0[6], q0[2], x0[7]]] + [(su, ld, ('p', 0)) for su, ld in f0]
    rest.append(('', 'buffer_load_dword v43, v33, s[4:7], s53 offen', 'b1'))
    l1 = k1_mix(*k1_dmas(None, 1, 1))[:cfg.n1]
    rest += [(('\n'.join(k1c) + '\n' if k == 0 else '') + su, ld, ('p', 1)) for k, (su, ld) in enumerate(l1)]
    nfast = 7
    for su, ld, tg in rest[:nfast]:
        S.emit(su); S.emit(ld, tag=tg)
    rest = rest[nfast:]
    gap = len(st) // (len(rest) + 1)
    stamp(a, cfg, 'rows')
    k = 0
    for idx, x in enumerate(st):
        if idx % gap == 2 and k < len(rest):
            if rest[k][0]: S.emit(rest[k][0])
            S.emit(x); S.emit(rest[k][1], tag=rest[k][2]); k += 1
        else: S.emit(x)
    assert k == len(rest)
    if not l1:
        for x in k1c: S.emit(x)
    S.wait_tag(lambda t: t == ('a', 0), lg=0)
    S.emit('s_barrier')
    stamp(a, cfg, 'data0')
    for (s, j4) in SJ: S.emit(k1_wread(0, 0, s, j4))
    for (i, s) in ORDER[:4]: S.emit(k1_xread(0, 0, i, s))
    for (s, j4) in SJ: S.emit(k1_wread(1, 1, s, j4))
    S.emit('s_lshl_b32 s3, s58, 2\ns_add_u32 s38, s3, %d\ns_mov_b64 exec, 1' % WS_NM)
    S.emit('buffer_store_dwordx2 v[40:41], v44, s[20:23], s3 offen sc1')
    S.emit('buffer_store_dwordx2 v[34:35], v44, s[20:23], s38 offen sc1')
    S.emit('buffer_store_dword v44, v44, s[20:23], s89 offen sc1')
    S.emit('buffer_store_dwordx4 v[44:47], v44, s[20:23], s87 offen sc1')
    S.emit('s_mov_b64 exec, -1')
    S.wait(lg=8)
    for (i, s) in ORDER[4:]: S.emit(k1_xread(0, 0, i, s))
    a.e('s_cmp_eq_u32 s28, 1\ns_cbranch_scc1 L_w1\ns_cmp_eq_u32 s28, 2\ns_cbranch_scc1 L_w2\ns_cmp_eq_u32 s28, 3\ns_cbranch_scc1 L_w3')
    entry = (list(S.ds), list(S.vm))

    joins = []
    for w in range(4):
        if w: a.raw('.p2align 3'); a.label('L_w%d' % w)
        S = Stream(a)
        S.ds, S.vm = list(entry[0]), list(entry[1])
        su0 = ['s_lshl_b32 s3, s63, 8', 'v_lshlrev_b32 v21, 1, v19', 'v_xor_b32 v21, v21, v32', 'v_lshlrev_b32 v26, 11, v19', 'v_lshl_add_u32 v21, v21, 4, v26',
               'v_add_u32 v20, s3, v21', 'v_xor_b32 v21, 0x2080, v20',
               'v_subrev_u32 v22, 20, v0', 'v_min_u32 v22, v22, v0', 's_sub_u32 s3, s54, 16', 'v_mov_b32 v26, s3', 's_max_i32 s3, s3, 0', 'v_mov_b32 v27, s3',
               'v_mov_b32 v28, s55', 'v_cmp_gt_u32 s[52:53], 20, v0', 'v_cmp_gt_u32 vcc, 4, v22', 'v_mov_b32 v29, %d' % WS_NM,
               'v_cndmask_b32 v27, v28, v27, s[52:53]', 'v_cndmask_b32 v29, v29, 0, s[52:53]', 'v_cndmask_b32 v26, v26, v27, vcc',
               'v_lshl_add_u32 v22, v22, 2, v26', 'v_lshl_add_u32 v22, v22, 2, v29',
               's_lshl_b32 s3, s29, 5', 'v_mov_b32 v23, s3', 's_sub_u32 s3, s3, 32\ns_max_i32 s3, s3, 0', 'v_mov_b32 v18, s3', 'v_cmp_eq_u32 vcc, 0, v0',
               's_bfe_u32 s98, s2, 0x20003\ns_lshl_b32 s98, s98, 1', 's_add_u32 s98, s98, 5',
               'v_cndmask_b32 v18, v18, v23, vcc', 'v_cndmask_b32 v24, -16, v23, vcc', 'v_mov_b32 v23, 1',
               'v_bfe_u32 v26, v0, 2, 3', 'v_lshrrev_b32 v25, 2, v0', 'v_lshlrev_b32 v25, 8, v25', 'v_lshl_add_u32 v25, v26, 5, v25',
               'v_and_b32 v26, 3, v0', 'v_lshl_add_u32 v25, v26, 3, v25']
        su0 += srd_txt(48, P_DBG, 0)
        su1 = []
        if w == 1:
            su1 += ['v_lshlrev_b32 v26, 16, v43', 'v_and_b32 v27, 0xffff0000, v43', 'v_lshlrev_b32 v28, 3, v0', 'v_add_u32 v28, %d, v28' % (EX + EX_B1),
                    's_bfm_b64 exec, 56, 0\nds_write_b64 v28, v[26:27]\ns_mov_b64 exec, -1']
        su1 += ['s_mov_b32 s34, %d' % (WB + WSLOT),
                's_lshr_b32 s91, s54, 4', 's_mul_i32 s3, s91, 144\ns_mul_i32 s52, s62, 36', 's_add_u32 s3, s3, s52\ns_lshl_b32 s3, s3, 10', 's_add_u32 s91, s3, %d' % WS_H,
                's_lshl_b32 s3, s63, 10\ns_add_u32 s56, s91, s3', 's_mul_i32 s3, s63, 3072\ns_add_u32 s57, s91, s3', 's_add_u32 s57, s57, 8192',
                's_lshl_b32 s43, s62, 19\ns_add_u32 s43, s43, %d' % (w << 15),
                's_mul_i32 s59, s62, %d' % (896 * 2048), 's_and_b32 s3, s29, 1\ns_mul_i32 s52, s3, %d' % (448 * 2048),
                's_add_u32 s44, s59, %d' % ((112 * w + 96) * 2048), 's_sub_u32 s45, s44, s52\ns_add_u32 s45, s45, %d' % (448 * 2048), 's_add_u32 s44, s44, s52',
                's_lshl_b32 s40, s3, 11\ns_add_u32 s40, s40, 32768',
                's_add_u32 s59, s59, %d' % ((w & 1) << 15),
                's_and_b32 s3, s29, 3\ns_mul_i32 s60, s3, 6', 's_lshl_b32 s61, s60, 10\ns_add_u32 s61, s61, 8192', 's_add_u32 s60, s60, %d' % (w >> 1)]
        k1_step(S, cfg, w, 0, 's0', su0)
        k1_step(S, cfg, w, 1, 's1', su1)
        stamp(a, cfg, 'loop')
        S.mute = True
        k1_step(S, cfg, w, 0); k1_step(S, cfg, w, 1)
        st0 = S.state()
        S.mute = False
        a.raw('.p2align 3')
        a.label('L_loop%d' % w)
        k1_step(S, cfg, w, 0); k1_step(S, cfg, w, 1)
        assert S.state() == st0
        a.e('s_cmp_lt_u32 s36, 16\ns_cbranch_scc1 L_loop%d' % w)
        stamp(a, cfg, 'last')
        nleft = k1_last(S, a, cfg, w)
        joins.append((nleft, S.state()))
        if w < 3: a.e('s_branch L_epi')
    gen.info = [j[0] for j in joins]
    a.label('L_epi')
    a.e('s_nop 0')
    stamp(a, cfg, 'attn st')
    nv = max(len(j[1][1]) for j in joins)
    ref = [j[1][1] for j in joins if len(j[1][1]) == nv][0]
    for j in joins: assert ref[len(ref) - len(j[1][1]):] == j[1][1]
    S = Stream(a)
    S.vm = [(t, set(x)) for t, x in ref]
    a.e('s_waitcnt lgkmcnt(0)')
    for t in reversed(range(8)):
        S.emit('s_lshl_b32 s3, s62, 1\ns_add_u32 s3, s3, %d\ns_and_b32 s3, s3, 7\ns_lshl_b32 s3, s3, 5' % (t + 2) if t & 1 else 's_xor_b32 s3, s3, 32')
        S.emit('v_xor_b32 v%d, s3, v25' % (VT + t))
    for i in reversed(range(4)):
        S.emit('s_add_u32 s3, s91, %d\nv_add_u32 v%d, s3, v8' % (i * 147456, VA + i))
    S.emit('v_lshlrev_b32 v9, 3, v0\ns_lshl_b32 s3, s63, 9\ns_add_u32 s58, s91, s3\ns_add_u32 s58, s58, 32768')
    def gelu(quads, i, mid=None):
        n = len(quads) * 2
        P = [(q[0] + 2 * h, q[1] + 2 * h, q[2] + 2 * h) for q in quads for h in range(2)]
        for k, (x, cs, b) in enumerate(P): S.emit(pk('fma', x, RN + 2 * i, cs, x, sel=[1, 0, 0], selhi=[1, 1, 1]))
        for k, (x, cs, b) in enumerate(P): S.emit(pk('fma', x, RN + 2 * i, x, b, sel=[0, 0, 0], selhi=[0, 1, 1]))
        if mid: mid()
        for k, (x, cs, b) in enumerate(P): S.emit(pk('mul', TG + 2 * k, x, x))
        for k, (x, cs, b) in enumerate(P): S.emit(pk('fma', TG + 2 * k, TG + 2 * k, CC, CC, sel=[0, 1, 0], selhi=[1, 1, 0]))
        for k, (x, cs, b) in enumerate(P): S.emit(pk('mul', TG + 2 * k, TG + 2 * k, x))
        for k in range(2 * n): S.emit('v_exp_f32 v%d, v%d' % (TG + k, TG + k))
        for k in range(n): S.emit(pk('add', TG + 2 * k, TG + 2 * k, '1.0', selhi=[1, 0]))
        for k in range(2 * n):
            S.emit('v_rcp_f32 v%d, v%d' % (TG + k, TG + k))
            if k & 1 and aq:
                x = aq.pop(0)
                while x[0] == 'K':
                    for y in x[1]: S.emit(y)
                    x = aq.pop(0)
                S.emit(x[1], tag=x[2])
        for k, (x, cs, b) in enumerate(P): S.emit(pk('mul', TG + 2 * k, TG + 2 * k, x))
        for k in range(n): S.emit(cvt(quads[0][0] + k, TG + 2 * k))
    FS = [[0, 1], [2, 3], [4, 5], [6]]
    aq = []
    for fp in range(4):
        fs = FS[fp]
        for i in range(4):
            mid = (lambda: [S.emit(x) for x in colconst(FS[fp + 1], CS)]) if (i == 3 and fp < 3) else None
            gelu([(acc1(6 + f, i), CS + 4 * k, CS + 8 + 4 * k) for k, f in enumerate(fs)], i, mid)
            if fp < 3:
                S.emit('s_add_u32 s3, s57, %d' % (i * 147456 + fp * 1024))
                S.emit('buffer_store_dwordx4 %s, v8, s[20:23], s3 offen %s' % (vr(acc1(6 + fs[0], i)), cfg.hst), tag='h')
            else:
                S.emit('s_add_u32 s3, s58, %d' % (i * 147456))
                S.emit('buffer_store_dwordx2 %s, v9, s[20:23], s3 offen %s' % (vr(acc1(12, i), 2), cfg.hst), tag='h')
            if (fp, i) == cfg.oflag:
                stamp(a, cfg, 'pre oflag')
                S.wait_tag(lambda t: t == 'o')
                stamp(a, cfg, 'oflag')
                S.emit('buffer_store_dword v%d, v%d, s[20:23], s89 offen sc1' % (VFV, VFO), tag='f')
                S.emit('v_mov_b32 v%d, 2' % VFV)
            if (fp, i) == cfg.opoll:
                S.emit('buffer_load_dword v%d, v%d, s[20:23], s86 offen sc1' % (VPD, VPO))
            if (fp, i) == cfg.ocheck:
                stamp(a, cfg, 'pre ochk')
                poll_check(S, a, cfg, 'L_po', 1, 's[20:23]', 's86', VPD, VPO)
                stamp(a, cfg, 'ochk')
                aq += k2_aload(0) + k2_aload(1)
            if (fp, i) == (3, 1):
                for t in (0, 1):
                    for (s, j4) in SJ: S.emit(k2_wread(t, 0, t, s, j4))
    for x in aq:
        if x[0] == 'K':
            for y in x[1]: S.emit(y)
        else: S.emit(x[1], tag=x[2])
    stamp(a, cfg, 'gelu end')

    T = Timeline()
    wins = [(j, t) for j in range(15) for t in range(8)] + [(j, 2 * tp + h) for tp in range(4) for j in (15, 16, 17) for h in range(2)]
    for n, (j, t) in enumerate(wins):
        T.window()
        for k, (i, s) in enumerate(ORDER):
            d = acc2(t, i)
            T.mfma('v_mfma_f32_16x16x32_bf16 %s, %s, %s, %s' % (vr(d), ar(wb(n, s)), ar(aa(j, i, s)), '0' if (j == 0 and k % 2 == 0) else vr(d)))
    W = T.win
    for n in range(len(wins) - 2):
        j, t = wins[n + 2]
        for k, (s, j4) in enumerate(SJ): T.at(W[n] + k, k2_wread(n + 2, j, t, s, j4))
    XR, BR, VO = 24, 40, 44
    BARS = {2: 5, 4: 7, 6: 9, 8: 11, 10: 13, 13: 17}
    hc = cfg.hcheck[0] * 64 + cfg.hcheck[1]
    pend = []
    for j in range(15):
        b = 64 * j
        ops = []
        if 2 <= j < 12: ops += k2_wdma(j + 6)
        al = k2_aload(j + 2) + (k2_aload(17) if j == 14 else [])
        slots = [b + 8 * t + o for t in range(8) for o in (4, 6)]
        if j in BARS: slots = slots[2:]
        else: slots = slots[1:]
        if j + 2 >= 4 and b < hc:
            pend += al; al = []
        if pend:
            if b + 64 > hc:
                late = [p for p in range(max(hc + 1, b + 9), b + 64, 2)]
                early = [p for p in slots if p < hc]
                if b <= hc:
                    place_k2(T, ops, early, b); ops = []
                    take = []
                    while pend and sum(1 for o in take if o[0] != 'K') < len(late): take.append(pend.pop(0))
                    place_k2(T, take, late, hc)
                    continue
                al = pend + al; pend = []
                ops = al[:len(al)] + ops; al = []
        ops += al
        nl = sum(1 for o in ops if o[0] != 'K')
        if nl > len(slots): slots = [p for p in range(b + 9, b + 64) if (p % 8) in (1, 3, 4, 6)]
        place_k2(T, ops, slots, b)
    assert not pend
    for j, lim in BARS.items():
        def bar(lim=lim):
            S.wait_tag(lambda t: isinstance(t, tuple) and t[0] == 'w' and t[1] <= lim); S.emit('s_barrier')
        T.before(64 * j + 6, bar)
    def hflag():
        stamp(a, cfg, 'pre hflag')
        S.wait_tag(lambda t: t == 'h')
        stamp(a, cfg, 'hflag')
        S.emit('buffer_store_dword v%d, v%d, s[20:23], s89 offen sc1' % (VFV, VFO), tag='f')
    T.before(cfg.hflag[0] * 64 + cfg.hflag[1], hflag)
    T.at(cfg.hpoll[0] * 64 + cfg.hpoll[1], 'buffer_load_dword v%d, v%d, s[20:23], s86 offen sc1' % (VPD, VPO))
    def hcheck():
        stamp(a, cfg, 'pre hchk')
        poll_check(S, a, cfg, 'L_ph', 2, 's[20:23]', 's86', VPD, VPO)
        stamp(a, cfg, 'hchk')
    T.before(hc, hcheck)
    T.before(64 * 4, lambda: stamp(a, cfg, 'g2 s4'))
    T.before(64 * 15, lambda: stamp(a, cfg, 'g2 s15'))
    su = ['v_add_u32 v%d, %d, v%d' % (VT + 8 + t, WB, VT + t) for t in range(8)] + ['v_add_u32 v%d, %d, v%d' % (VT + 16 + t, SLOT7, VT + t) for t in range(8)]
    su += ['v_sub_u32 v%d, v%d, v9' % (VA2 + i, VA + i) for i in range(4)]
    left = T.spread(8, su, vper=1); assert not left and T.last < 64 * 2
    su = srd_txt(12, P_B2, 2048)[:3] + srd_txt(24, P_OUT, 2048 * 2048)[:3]
    su += ['v_and_b32 v%d, 1, v19' % VO, 'v_lshrrev_b32 v%d, 1, v19' % (VO + 1), 'v_lshlrev_b32 v%d, 5, v%d' % (VO, VO), 'v_lshl_add_u32 v%d, v%d, 4, v%d' % (VO + 1, VO + 1, VO),
           'v_and_b32 v%d, 15, v0' % VO, 'v_lshl_add_u32 v%d, v%d, 11, v%d' % (VO, VO, VO + 1),
           's_lshl_b32 s38, s63, 8\ns_lshl_b32 s3, s62, 6', 's_add_u32 s38, s38, s3\ns_lshl_b32 s35, s54, 11', 's_add_u32 s35, s35, s38',
           's_mul_i32 s52, s88, %d\ns_add_u32 s52, s52, s47' % (12 * 16384), 's_add_u32 s52, s52, %d' % WS_P,
           'v_and_b32 v%d, 1, v0' % VPO, 'v_lshlrev_b32 v%d, 2, v%d' % (VPO, VPO), 'v_mov_b32 v46, 8']
    for tp in range(3):
        su += ['s_add_u32 s3, s62, %d\ns_and_b32 s3, s3, 3' % (tp + 1), 's_mul_i32 s%d, s3, %d\ns_lshl_b32 s3, s3, 9' % (4 + tp, 3 * 16384),
               's_add_u32 s%d, s%d, s52\ns_add_u32 s%d, s3, s90' % (4 + tp, 4 + tp, 56 + tp), 's_add_u32 s%d, s%d, %d\ns_add_u32 s%d, s%d, %d' % (4 + tp, 4 + tp, tp * 16384, 56 + tp, 56 + tp, 4 * tp)]
    su += ['s_mul_i32 s3, s62, %d\ns_add_u32 s52, s52, s3' % (3 * 16384), 's_add_u32 s53, s52, 16384\ns_add_u32 s7, s52, 32768']
    left = T.spread(64 * 9, su, vper=1); assert not left and T.last < 64 * 11
    su = []
    for i in range(4):
        su += ['s_add_u32 s3, s35, %d' % (i << 15), ('buffer_load_dwordx4 %s, v%d, s[8:11], s3 offen' % (vr(XR + 4 * i), VO), 'x'), ('SKIP', 8)]
    su += [('buffer_load_dwordx4 %s, v%d, s[12:15], s38 offen' % (vr(BR), VO + 1), 'x')]
    left = T.spread(64 * 12 + 5, su); assert not left and T.last < 64 * 13
    su = []
    for r in [BR] + [XR + 4 * i for i in range(4)]:
        su += ['v_permlane16_swap_b32 v%d, v%d' % (r, r + 2), 'v_permlane16_swap_b32 v%d, v%d' % (r + 1, r + 3)]
    BU = 4
    bu = lambda k: (4, 5, 6, 7, 10, 11, 12, 13)[k]
    for h in range(4): su += ['v_lshlrev_b32 v%d, 16, v%d' % (bu(2 * h), BR + h), 'v_and_b32 v%d, 0xffff0000, v%d' % (bu(2 * h + 1), BR + h)]
    left = T.spread(64 * 14 + 8, su, vper=1); assert not left and T.last < 64 * 15
    b = 64 * 15
    su = []
    for i in range(4):
        for h in range(4):
            d = acc2(6 + (h >> 1), i) + 2 * (h & 1); src = XR + 4 * i + h
            su += ['v_lshlrev_b32 v1, 16, v%d' % src, 'v_and_b32 v2, 0xffff0000, v%d' % src, 'v_add_f32 v1, v1, v%d' % bu(2 * h), 'v_add_f32 v2, v2, v%d' % bu(2 * h + 1),
                   'v_add_f32 v%d, v%d, v1' % (d, d), 'v_add_f32 v%d, v%d, v2' % (d + 1, d + 1)]
    for tp in range(3):
        L = []
        for i in range(4):
            d0, d1 = acc2(2 * tp, i), acc2(2 * tp + 1, i)
            L += [cvt(d0, d0), cvt(d0 + 1, d0 + 2), cvt(d0 + 2, d1), cvt(d0 + 3, d1 + 2),
                  ('buffer_store_dwordx4 %s, v8, s[20:23], s%d offen offset:%d sc1' % (vr(d0), 4 + tp, i * 1024), ('P', tp))]
        left = T.spread(b + 48 * (tp + 1) - 1, L); assert not left
    left = T.spread(b + 4, su); assert not left and T.last < b + 140, T.last - b
    def xflag(tp):
        def f():
            S.wait_tag(lambda t: t == ('P', tp))
            S.emit('buffer_store_dword v%d, v%d, s[20:23], s%d offen sc1' % (VFV, VFO, 56 + tp), tag='f')
        return f
    T.before(b + 48 * 2 + 20, xflag(0))
    T.before(b + 48 * 3 + 20, xflag(1))
    T.at(b + 48 * 3 + 30, 'buffer_load_dword v%d, v%d, s[20:23], s87 offen sc1' % (VPD, VPO))
    T.emit(S)
    stamp(a, cfg, 'g2 end')
    xflag(2)()
    stamp(a, cfg, 'stored')
    poll_check(S, a, cfg, 'L_px', 1, 's[20:23]', 's87', VPD, VPO)
    stamp(a, cfg, 'flag01')
    rb = lambda jx, i: RB + (jx * 4 + i) * 4
    S.emit('buffer_load_dword v47, v46, s[20:23], s87 offen sc1')
    for jx, so in enumerate(('s52', 's53')):
        for i in range(4): S.emit('buffer_load_dwordx4 %s, v8, s[20:23], %s offen offset:%d sc1' % (vr(rb(jx, i)), so, i * 1024))
    poll_check(S, a, cfg, 'L_py', 1, 's[20:23]', 's87', 47, 46)
    stamp(a, cfg, 'flag2')
    for i in range(4): S.emit('buffer_load_dwordx4 %s, v8, s[20:23], s7 offen offset:%d sc1' % (vr(rb(2, i)), i * 1024))
    def addp(jx, i):
        r = rb(jx, i)
        for h in range(4):
            S.emit('v_lshlrev_b32 v%d, 16, v%d\nv_and_b32 v%d, 0xffff0000, v%d' % (24 + 2 * h, r + h, 25 + 2 * h, r + h))
        for h in range(4):
            d = acc2(6 + (h >> 1), i) + 2 * (h & 1)
            S.emit(pk('add', d, d, 24 + 2 * h))
    for jx in range(2):
        for i in range(4): addp(jx, i)
    for i in range(4):
        addp(2, i)
        d0, d1 = acc2(6, i), acc2(7, i)
        S.emit('\n'.join([cvt(d0, d0), cvt(d0 + 1, d0 + 2), cvt(d0 + 2, d1), cvt(d0 + 3, d1 + 2)]))
        S.emit('s_add_u32 s3, s35, %d' % (i << 15))
        S.emit('v_permlane16_swap_b32 v%d, v%d\nv_permlane16_swap_b32 v%d, v%d' % (d0, d0 + 2, d0 + 1, d0 + 3))
        S.emit('buffer_store_dwordx4 %s, v%d, s[24:27], s3 offen %s' % (vr(d0), VO, cfg.ost))
    if cfg.stamps:
        a.e('s_waitcnt vmcnt(0)')
        stamp(a, cfg, 'end')
    stamp_flush(a, cfg)
    a.label('L_end')
    a.e('s_endpgm')
    return hazard.fix(a.text())

def place_k2(T, ops, slots, start):
    if not ops: return
    nl = sum(1 for o in ops if o[0] != 'K')
    assert nl <= len(slots), (nl, len(slots))
    pick = [slots[(k * len(slots)) // nl] for k in range(nl)] if nl else []
    k = 0; prev = start
    for o in ops:
        if o[0] == 'K':
            end = max((pick[k] - 1) if k < nl else prev + len(o[1]), prev)
            for n, x in enumerate(o[1]): T.at(min(prev + n, end), x)
        else:
            p = pick[k]; k += 1
            if o[0]: T.at(p - 1, o[0])
            T.at(p, o[1], o[2]); prev = p

def gen_amp(cfg):
    na, nb, mult, wg = cfg.amp
    ia, ib = STAMPS.index(na), STAMPS.index(nb)
    a = Asm()
    a.e('s_cmp_ge_u32 s2, 1\ns_cbranch_scc1 KA_end')
    a.e('s_load_dwordx2 s[4:5], s[0:1], 80\ns_waitcnt lgkmcnt(0)')
    a.srd(8, 4, WS_BYTES)
    a.e('s_mov_b32 s12, %d\ns_mov_b32 s13, %d' % (WS_TS + ia * 8, WS_TS + ib * 8))
    if wg >= 0: a.e('v_mov_b32 v1, %d' % (wg * 1024))
    else: a.e('v_lshlrev_b32 v1, 10, v0')
    for k in range(4):
        a.e('buffer_load_dword v%d, v1, s[8:11], s12 offen\nbuffer_load_dword v%d, v1, s[8:11], s13 offen' % (2 + k, 6 + k))
        if wg < 0: a.e('v_add_u32 v1, 0x10000, v1')
    a.e('s_memrealtime s[16:17]\ns_waitcnt vmcnt(0) lgkmcnt(0)')
    a.e('v_min_u32 v2, v2, v3\nv_min_u32 v4, v4, v5\nv_min_u32 v2, v2, v4\nv_max_u32 v6, v6, v7\nv_max_u32 v8, v8, v9\nv_max_u32 v6, v6, v8')
    for x in allreduce64('v_min_u32', [2], [10]) + allreduce64('v_max_u32', [6], [10]): a.e(x)
    a.e('v_sub_u32 v2, v6, v2\ns_nop 1\nv_readfirstlane_b32 s14, v2\ns_nop 3')
    a.e('s_min_u32 s14, s14, 20000\ns_mul_i32 s14, s14, %d' % mult)
    a.label('KA_spin')
    a.e('s_memrealtime s[18:19]\ns_waitcnt lgkmcnt(0)\ns_sub_u32 s15, s18, s16\ns_cmp_lt_u32 s15, s14\ns_cbranch_scc1 KA_spin')
    a.label('KA_end')
    a.e('s_endpgm')
    return hazard.fix(a.text())

def build(cfg, header=''):
    body = gen(cfg)
    launches = [(NAME + '_kernel', 256, 256, LDS_BYTES)]; kernels = [(NAME + '_kernel', body, 512, 256)]
    if cfg.amp:
        launches.append(('amp_kernel', 1, 64, 0)); kernels.append(('amp_kernel', gen_amp(cfg), 16, 16))
    txt = build_file(launches, kernels)
    if not (cfg.aslist or cfg.amp):
        txt = txt.replace('; @launch kernel=%s_kernel grid' % NAME, '; @launch grid')
    return header + txt

if __name__ == '__main__':
    HEADER = open('cdna_kernels/%s.s.ref' % NAME).read().split('; Override launch')[0]
    out = sys.argv[1]
    kw = {}
    for x in sys.argv[2:]:
        k, v = x.split('=', 1); kw[k] = eval(v)
    open(out, 'w').write(build(Cfg(**kw), HEADER))
    print(out, 'left after last MFMA:', gen.info)
```

```python
from hazard import parse
class Stream:
    def __init__(self, asm):
        self.a = asm
        self.ds = []
        self.vm = []
        self.mute = False
        self.wiss = {}; self.wvis = set(); self.wrd = {}; self.wfree = set()
    def _out(self, s):
        if not self.mute: self.a.e(s)
    def emit(self, text, tag=None):
        for ln in text.strip().split('\n'):
            i = parse(ln)
            if i is None:
                if not self.mute: self.a.raw(ln.strip())
                continue
            lg = None; vc = None
            touch = i.r | i.w
            for k in range(len(self.ds) - 1, -1, -1):
                if self.ds[k][1] & touch:
                    lg = len(self.ds) - 1 - k; break
            for k in range(len(self.vm) - 1, -1, -1):
                if self.vm[k][1] & touch:
                    vc = len(self.vm) - 1 - k; break
            self.wait(vc, lg)
            self._out(ln)
            if isinstance(tag, tuple) and tag[0] == 'w' and i.vmem:
                j = tag[1]
                assert j < 8 or (j - 8) in self.wfree, ('slot not free', j)
                self.wiss[j] = self.wiss.get(j, 0) + 1
            if isinstance(tag, tuple) and tag[0] == 'r' and i.ds:
                assert tag[1] in self.wvis, ('weights not visible', tag[1])
                self.wrd[tag[1]] = self.wrd.get(tag[1], 0) + 1
            if i.op == 's_barrier':
                for j, n in self.wiss.items():
                    if n == 4 and not any(t == ('w', j) for t, _ in self.vm): self.wvis.add(j)
                for j, n in self.wrd.items():
                    if n == 32 and not any(t == ('r', j) for t, _ in self.ds): self.wfree.add(j)
            if i.ds: self.ds.append((tag, set(i.w)))
            if i.vmem and i.op not in ('buffer_wbl2', 'buffer_inv'): self.vm.append((tag, set(i.w)))
    def need(self, touch):
        lg = vc = None
        for k in range(len(self.ds) - 1, -1, -1):
            if self.ds[k][1] & touch:
                lg = len(self.ds) - 1 - k; break
        for k in range(len(self.vm) - 1, -1, -1):
            if self.vm[k][1] & touch:
                vc = len(self.vm) - 1 - k; break
        self.wait(vc, lg)
    def wait(self, vc=None, lg=None):
        parts = []
        if vc is not None:
            vc = min(vc, 63)
            if vc < len(self.vm):
                parts.append('vmcnt(%d)' % vc); self.vm = self.vm[len(self.vm) - vc:] if vc else []
        if lg is not None:
            lg = min(lg, 15)
            if lg < len(self.ds):
                parts.append('lgkmcnt(%d)' % lg); self.ds = self.ds[len(self.ds) - lg:] if lg else []
        if parts: self._out('s_waitcnt ' + ' '.join(parts))
    def wait_tag(self, pred, lg=None):
        vc = None
        for k in range(len(self.vm) - 1, -1, -1):
            if pred(self.vm[k][0]):
                vc = len(self.vm) - 1 - k; break
        self.wait(vc, lg)
    def wait_dstag(self, tag):
        for k in range(len(self.ds) - 1, -1, -1):
            if self.ds[k][0] == tag:
                self.wait(None, len(self.ds) - 1 - k); break
    def state(self):
        return ([(t, frozenset(x)) for t, x in self.ds], [(t, frozenset(w)) for t, w in self.vm])
```

```python
import sys, struct, math
from asmlib import *
from sched import Stream
import hazard

NAME = 'parallel_sum__sliding_local_dilated__dense_activation_gelu__prompt'
WS_BYTES = 268435456
WS_RSTD = 0
WS_NM = 8192
WS_HFLAG = 0x10000
WS_XFLAG = 0x20000
WS_H = 1 << 20
WS_P = 32 << 20
WS_TS = 250 << 20
SPIN_MAX = 0x20000

def f32(x):
    return '0x%08x' % struct.unpack('<I', struct.pack('<f', x))[0]
def vr(b, n=4, f='v'):
    return '%s[%d:%d]' % (f, b, b + n - 1) if n > 1 else '%s%d' % (f, b)
def ar(b, n=4):
    return vr(b, n, 'a')

class Cfg:
    rot = 4
    wofs = 1
    stamps = False
    amp = None
    aslist = False
    hst = 'sc1'
    ost = ''
    n1 = 7
    n2 = 9
    vper = 2
    vstart = 9
    oflag = (0, 2)
    opoll = (1, 3)
    ocheck = (2, 2)
    hflag = (3, 2)
    hpoll = 40
    gst = (0, 1)
    w67at = (0, 3)
    hs = {0: [3, 3], 1: [2, 2], 2: [2], 3: [2]}
    hfl = [((2, 3), 5 * 64 + 40)]
    lst = False
    over = 0
    c2w = 15
    hsched = 0
    adist = 2
    sleep = 1
    rot0 = 4
    fakestats = False
    npre = 6
    w2first = 14
    w2last = 26
    cpf = 7
    def __init__(self, **kw):
        for k, v in kw.items():
            assert hasattr(self, k), k
            setattr(self, k, v)

STAMPS = ['start', 'karg', 'rows', 'data0', 'loop', 'last', 'g1 end', 'attn st', 'pre oflag', 'oflag', 'pre ochk', 'ochk', 'pre hflag', 'hflag', 'gelu end',
          'pre hchk', 'hchk', 'g2 s4', 'g2 s15', 'g2 end', 'stored', 'flag01', 'flag2', 'end']
TSA = 200
def stamp(a, cfg, name):
    if not cfg.stamps: return
    if cfg.stamps == 'min' and name not in ('data0', 'loop', 'last', 'g1 end', 'gelu end', 'g2 end', 'end'): return
    idx = STAMPS.index(name)
    a.e('s_memrealtime s[92:93]\ns_memtime s[94:95]\ns_waitcnt lgkmcnt(0)')
    a.e('v_accvgpr_write_b32 a%d, s92\nv_accvgpr_write_b32 a%d, s94' % (TSA + 2 * idx, TSA + 1 + 2 * idx))
def stamp_flush(a, cfg):
    if not cfg.stamps: return
    a.e('s_lshl_b32 s96, s2, 2\ns_add_u32 s96, s96, s28\ns_lshl_b32 s96, s96, 8')
    a.e('s_add_u32 s96, s96, %d' % WS_TS)
    if cfg.lst:
        a.e('s_add_u32 s95, s96, 0x100000\nv_lshlrev_b32 v1, 2, v0\nbuffer_store_dword a253, v1, s[20:23], s95 offen')
    a.e('s_mov_b64 exec, 1')
    a.e('v_mov_b32 v1, 0')
    for idx in range(len(STAMPS)):
        a.e('buffer_store_dwordx2 %s, v1, s[20:23], s96 offen offset:%d' % (ar(TSA + 2 * idx, 2), idx * 8))

def allreduce64(op, x, t):
    L = []
    d = 'row_mask:0xf bank_mask:0xf'
    for m in ('quad_perm:[1,0,3,2]', 'quad_perm:[2,3,0,1]', 'row_half_mirror', 'row_mirror'):
        for xx in x:
            L.append('%s_dpp v%d, v%d, v%d %s %s' % (op, xx, xx, xx, m, d))
    for sw in ('v_permlane16_swap_b32', 'v_permlane32_swap_b32'):
        for xx, tt in zip(x, t): L.append('v_mov_b32 v%d, v%d' % (tt, xx))
        for xx, tt in zip(x, t): L.append('%s v%d, v%d' % (sw, xx, tt))
        for xx, tt in zip(x, t): L.append('%s v%d, v%d, v%d' % (op, xx, xx, tt))
    return L

def pk(op, d, *src, sel=None, selhi=None):
    s = 'v_pk_%s_f32 %s, %s' % (op, vr(d, 2), ', '.join(x if isinstance(x, str) else vr(x, 2) for x in src))
    if sel is not None: s += ' op_sel:[%s]' % ','.join(map(str, sel))
    if selhi is not None: s += ' op_sel_hi:[%s]' % ','.join(map(str, selhi))
    return s
def cvt(d, x): return 'v_cvt_pk_bf16_f32 v%d, v%d, v%d' % (d, x, x + 1)
def srd_txt(d, b, nbytes):
    return ['s_mov_b32 s%d, s%d' % (d, b), 's_and_b32 s%d, s%d, 0xffff' % (d + 1, b + 1),
            's_mov_b32 s%d, 0x%x' % (d + 2, nbytes), 's_mov_b32 s%d, 0x00020000' % (d + 3)]

CPF_LANES = 6
def cpf_addr(v):
    return ['v_min_u32 v%d, %d, v0' % (v, CPF_LANES - 1), 'v_lshlrev_b32 v%d, 7, v%d' % (v, v), 'v_mov_b32 v%d, s101' % (v + 1),
            'v_add_co_u32 v%d, vcc, s100, v%d' % (v, v), 'v_addc_co_u32 v%d, vcc, 0, v%d, vcc' % (v + 1, v + 1)]
def cpf_load(d, v): return 'global_load_dword v%d, %s, off' % (d, vr(v, 2))

def icost(x):
    if callable(x): return 2, 0
    n = v = 0
    for ln in x.split('\n'):
        if ln.startswith('v_'): v += 2 if ln.startswith(hazard.TRANS + ('v_permlane',)) else 1
        elif ln.startswith(('ds_', 'buffer_', 'global_')): n += 2
        else: n += 1
    return n, v

class Timeline:
    def __init__(self, grp=4):
        self.mf = []; self.fill = []; self.pre = []; self.win = []; self.grp = grp
    def window(self): self.win.append(len(self.mf))
    def mfma(self, t):
        self.mf.append(t); self.fill.append([]); self.pre.append([])
    def at(self, p, x, tag=None):
        f = self.fill[p]
        k = len(f)
        if not callable(x) and not x.startswith('v_'):
            while k > 0 and not callable(f[k - 1][0]) and icost(f[k - 1][0])[0] == 0: k -= 1
        f.insert(k, (x, tag))
    def before(self, p, fn):
        self.pre[p].append(fn)
    def load(self, p):
        n = v = 0
        if p + 1 in self.win: n += 1
        if p + 1 < len(self.mf) and self.pre[p + 1]: n += 2
        for x, _ in self.fill[p]:
            a, b = icost(x); n += a; v += b
        return n, v
    def spread(self, p, items, vper=2, over=0):
        items = list(items)
        while items and p < len(self.mf):
            it = items[0]
            if isinstance(it, tuple) and it[0] == 'SKIP':
                p += it[1]; items.pop(0); continue
            x, tag = it if isinstance(it, tuple) else (it, None)
            if not callable(x) and x.startswith('v_mfma'):
                p += 1
                self.mf.insert(p, x); self.fill.insert(p, []); self.pre.insert(p, [])
                self.win = [q + 1 if q >= p else q for q in self.win]
                items.pop(0); continue
            n, v = self.load(p)
            cn, cv = icost(x)
            if cn and v: ok = False
            elif n + v == 0: ok = True
            else: ok = max(n + cn, 1) + v + cv <= 3 + (over if not cn else 0) and v + cv <= max(vper, cv)
            if ok:
                self.fill[p].append((x, tag)); items.pop(0)
            else: p += 1
        self.last = p
        return items
    def sched(self, p, items, vper=2, over=0, look=48, dslat=7, after=None):
        pend = []
        for it in items:
            x, tag = it if isinstance(it, tuple) else (it, None)
            r = set(); w = set(); mem = callable(x); kind = 'f' if callable(x) else ''
            if not callable(x):
                for ln in x.split('\n'):
                    i = hazard.parse(ln); r |= i.r; w |= i.w
                    if i.ds or i.vmem: mem = True
                    if i.ds and i.w: kind = 'r'
                    if i.ds and not i.w: kind = 'w'
                    if i.mfma: kind = 'm'
            pend.append([x, tag, r, w, mem, kind])
        ready = {}
        lastw = -99
        self.pos = {}
        while pend and p < len(self.mf):
            again = True
            while again:
                again = False
                n, v = self.load(p)
                for phase in (0, 1, 2):
                    br = set(); bw = set(); bmem = False
                    for k, (x, tag, r, w, mem, kind) in enumerate(pend[:look]):
                        free = not (r & bw or w & bw or w & br or (mem and bmem))
                        br |= r; bw |= w; bmem = bmem or mem
                        if not free: continue
                        late = kind == 'm' or (not callable(x) and x.startswith('v_permlane'))
                        if any(ready.get(q, -9) + late > p for q in r | w): continue
                        if after and not callable(x) and x in after and p < self.win[after[x]]: continue
                        if kind == 'f' and p < lastw + 3: continue
                        if kind == 'm':
                            if phase != 2: continue
                            p += 1
                            self.mf.insert(p, x); self.fill.insert(p, []); self.pre.insert(p, [])
                            self.win = [q + 1 if q >= p else q for q in self.win]
                            for q in w: ready[q] = p + 4
                            pend.pop(k); again = True; break
                        cn, cv = icost(x)
                        if (phase == 0) != (cn > 0) or phase == 2: continue
                        if cn and v: continue
                        if not (n + v == 0 or (max(n + cn, 1) + v + cv <= 3 + (over if not cn else 0) and v + cv <= max(vper, cv))): continue
                        self.fill[p].append((x, tag)); self.pos[id(x)] = p
                        if kind == 'r':
                            for q in w: ready[q] = p + dslat
                        elif kind == 'w': lastw = p
                        elif cv:
                            for q in w: ready[q] = p if q[0] == 'v' and not x.startswith(hazard.TRANS) else p + 1
                        pend.pop(k); again = True; break
                    if again: break
            p += 1
        self.last = p
        return [(x, tag) for x, tag, *_ in pend]
    def emit(self, S):
        starts = set()
        for q in self.win: starts |= {q, q + self.grp}
        def regs(k):
            r = set()
            for m in self.mf[k:k + self.grp]: r |= {x for x in hazard.parse(m).ab if x[0] == 'a'}
            return r
        for k in range(len(self.mf)):
            for fn in self.pre[k]: fn()
            if k in starts: S.need(regs(k))
            S.emit(self.mf[k])
            f = self.fill[k]
            j = 0
            while j < len(f) and (callable(f[j][0]) or not f[j][0].startswith('v_')): j += 1
            for n, (x, tag) in enumerate(f):
                if n == j and k + 1 in starts and not self.pre[k + 1]: S.need(regs(k + 1))
                if callable(x): x()
                else: S.emit(x, tag=tag)

P_X, P_WQKV, P_WO, P_W1, P_B1, P_W2, P_B2, P_OUT, P_DBG, P_WS = 64, 66, 68, 72, 74, 76, 78, 80, 82, 84

XS = 32768
WB = 65536
WSLOT = 28688
W_FFN = 12288
W_HALO = 26624
W_ONES = 28672
EX = WB + 3 * WSLOT
EX_B1 = 832
EX_ST = 1280
EX_KV = 3840
LDS_BYTES = 163840
assert EX + EX_KV + 8192 <= LDS_BYTES
ACC1 = 48
def acc1(t, i): return ACC1 + (t * 4 + i) * 4
def xa(buf, i, s): return buf * 32 + (i * 2 + s) * 4
HA0, HA1 = 64, 192
def wa(n, s): return 72 + n * 8 + s * 4
EXA = 176
EXTRAS = [[2, 6, 7, 12], [3, 8, 9], [4, 10, 11], [5, 0, 1]]
ORDER = [(0, 0), (0, 1), (1, 1), (1, 0), (2, 0), (2, 1), (3, 1), (3, 0)]
SJ = ((0, 0), (0, 1), (1, 0), (1, 1))

def k1_wread(n, t, s, j4, vq=14, vf=16):
    d = wa(n, s) + 2 * j4
    if t < 6:
        return 'ds_read_b64_tr_b16 %s, v%d offset:%d' % (ar(d, 2), vq + (t & 1), (t >> 1) * 4096 + j4 * 256 + s * 2048)
    return 'ds_read_b64_tr_b16 %s, v%d offset:%d' % (ar(d, 2), vf, W_FFN + (t - 6) * 32 + j4 * 1792 + s * 7168)
def k1_xread(buf, slot, i, s):
    return 'ds_read_b128 %s, v%d offset:%d' % (ar(xa(buf, i, s)), 10 + s, slot * XS + i * 2048)
def k1_mfma(t, d, df, x, w, first=False):
    if t in (4, 5): A, B = x, w
    else: A, B = w, x
    return 'v_mfma_f32_16x16x32_bf16 %s, %s, %s, %s' % (vr(d, 4, df), ar(A), ar(B), '0' if first else vr(d, 4, df))

def k1_dmas(w, xslot, wslot=None):
    q = []; f = []; x = []
    def m0(sg, woff, c):
        if w is None: return 's_add_u32 m0, %s, %d' % (sg, WB + wslot * WSLOT + c)
        if wslot is None: return 's_add_u32 m0, s34, %d' % (woff + c)
        return 's_mov_b32 m0, %d' % (WB + wslot * WSLOT + woff + c)
    ww = w or 0
    for ii in range(3):
        q.append((m0('s46', ww * 1024, ii * 4096), 'buffer_load_dwordx4 v%d, s[12:15], s32 offen lds' % (3 + ii)))
    for ii in range(4):
        su = m0('s47', ww * 4096, W_FFN + ii * 1024)
        if ii >= 2 and w is None: srd, so = 's[24:27]', 's40'
        elif ii >= 2 and w == 3: srd, so = 's[8:11]', 's31'
        else: srd, so = 's[16:19]', 's33'
        f.append((su, 'buffer_load_dwordx4 v%d, %s, %s offen lds' % (6 + ii, srd, so)))
    for i in range(8):
        su = 's_mov_b32 m0, %d' % (xslot * XS + w * 8192 + i * 1024) if w is not None else 's_add_u32 m0, s39, %d' % (xslot * XS + i * 1024)
        if i >= 2:
            if i % 2 == 0: su += '\ns_add_u32 s37, s31, %d' % ((i // 2) * 32768)
            so = 's37'
        else: so = 's31'
        x.append((su, 'buffer_load_dwordx4 v%d, s[8:11], %s offen lds' % (1 + (i & 1), so)))
    return q, f, x
def k1_mix(q, f, x):
    return [q[0], x[0], f[0], x[1], f[1], x[2], q[1], x[3], f[2], x[4], f[3], x[5], q[2], x[6], x[7]]

def k1_kcalc(cfg, first=False):
    if cfg.rot:
        W = cfg.rot0 if first else cfg.rot
        s = 's_add_u32 s38, s36, s41\ns_and_b32 s38, s38, %d\ns_andn2_b32 s33, s36, %d\ns_or_b32 s38, s38, s33\n' % (W - 1, W - 1)
        if cfg.wofs: s += 's_xor_b32 s38, s38, s97\n'
        k = 's38'
    else:
        s = ''; k = 's36'
    s += 's_lshl_b32 s31, %s, 7\ns_mul_i32 s32, %s, %d\ns_mul_i32 s33, %s, %d' % (k, k, 64 * 6144, k, 64 * 7168)
    return s.split('\n')

def place_dmas(T, ops, slots):
    nl = sum(1 for o in ops if o[0] != 'K')
    assert nl <= len(slots), (nl, len(slots))
    pick = [slots[(k * len(slots)) // nl] for k in range(nl)]
    k = 0; prev = 0
    for o in ops:
        if o[0] == 'K':
            end = (pick[k] - 1) if k < nl else len(T.mf) - 1
            room = max(end - prev, 1)
            per = (len(o[1]) + room - 1) // room
            p = min(prev + 1, end) if room > 1 or end > prev else prev
            for j in range(0, len(o[1]), per):
                T.at(min(p, end), '\n'.join(o[1][j:j + per])); p += 1
        else:
            p = pick[k]; k += 1
            if o[0]: T.at(p - 1, o[0])
            T.at(p, o[1], o[2]); prev = p

def k1_step(S, cfg, w, par, mode='loop', setup=()):
    T = Timeline()
    ex_at = {}
    for e, t in enumerate(EXTRAS[w]):
        tw = t if t >= 2 else t + 7
        if mode == 's0': tw = max(tw, 5)
        ex_at.setdefault(tw, []).append((e, t))
    for t in range(13):
        T.window()
        for n, (i, s) in enumerate(ORDER):
            T.mfma(k1_mfma(t, acc1(t, i), 'v', xa(par, i, s), wa(t, s), first=(mode == 's0' and n % 2 == 0)))
        for (e, te) in ex_at.get(t, []):
            for s in (0, 1):
                T.mfma(k1_mfma(te, EXA + 4 * e, 'a', HA0 + 4 * s, wa(te, s), first=(mode == 's0' and s == 0)))
    W = T.win
    for t in range(13):
        tt = (t + 2) % 13
        seq = [k1_wread(tt, tt, s, j4) for (s, j4) in SJ]
        if t >= 11: seq += [k1_xread(1 - par, 1 - par, i, s) for (i, s) in (ORDER[:4] if t == 11 else ORDER[4:])]
        for k, r in enumerate(seq): T.at(W[t] + k, r)
    hw = 4 if mode == 's0' else 0
    T.at(W[hw] + 4, 'ds_read_b128 %s, v12' % ar(HA0))
    T.at(W[hw] + 5, 'ds_read_b128 %s, v13' % ar(HA0 + 4))
    if mode == 'loop':
        T.at(W[1] + 4, 's_cmp_eq_u32 s34, %d\ns_cselect_b32 s35, %d, s42' % (WB + WSLOT, -2 * WSLOT & 0xffffffff))
        dl = 's35'
    else: dl = 's42'
    T.at(W[6] + 3, 'v_add_u32 v12, %s, v12' % dl)
    T.at(W[6] + 4, 'v_add_u32 v13, %s, v13' % dl)
    T.at(W[8] + 3, 'v_add_u32 v14, %s, v14' % dl)
    T.at(W[8] + 4, 'v_add_u32 v15, %s, v15' % dl)
    T.at(W[10] + 4, 'v_add_u32 v16, %s, v16' % dl)
    kstep = ['s_add_u32 s36, s36, 1'] + k1_kcalc(cfg)
    kstep0 = ['s_add_u32 s36, s36, 1'] + k1_kcalc(cfg, True)
    if mode == 'loop':
        tagn = ('d', par)
        ops = [(su, ld, tagn) for su, ld in k1_mix(*k1_dmas(w, par))]
        ops.append(('K', kstep + ['s_add_u32 s34, s34, %d' % WSLOT, 's_cmp_eq_u32 s34, %d\ns_cselect_b32 s34, %d, s34' % (WB + 3 * WSLOT, WB)]))
        slots = []
        for t in range(11):
            if t in (2, 4, 7, 9): slots.append(W[t] + 4)
            slots.append(W[t] + 6)
        place_dmas(T, ops, slots)
        if par == 0:
            T.at(W[3] + 3, 's_cmp_eq_u32 s36, 14\ns_cselect_b32 s50, 256, 0')
            T.at(W[3] + 4, 'buffer_load_dword v17, v18, s[48:51], 0 offen sc1', tagn)
        elif w == 0:
            T.at(W[3] + 3, 's_cmp_eq_u32 s36, s98\ns_cselect_b32 s50, 256, 0')
            T.at(W[3] + 4, 'buffer_atomic_add v23, v24, s[48:51], 0 offen sc1', tagn)
        if par == 1 and cfg.cpf & 2: T.at(W[5] + 4, cpf_load(42, 44), tagn)
        need = lambda t: t != tagn
    else:
        if mode == 's0':
            l1 = k1_mix(*k1_dmas(w, 1, 1))[cfg.n1:]; l2 = k1_mix(*k1_dmas(w, 0, 2))[:cfg.n2]; tg = (1, 2)
        else:
            l1 = k1_mix(*k1_dmas(w, 0, 2))[cfg.n2:]; l2 = k1_mix(*k1_dmas(w, 1, 0)); tg = (2, 3)
        ops = [(su, ld, ('p', tg[0])) for su, ld in l1] + [('K', kstep0)] + [(su, ld, ('p', tg[1])) for su, ld in l2]
        if mode == 's1': ops.append(('K', kstep))
        slots = []
        for t in range(12):
            if t > 0: slots.append(W[t] + 4)
            slots.append(W[t] + 6)
        place_dmas(T, ops, slots)
        need = lambda t: not (isinstance(t, tuple) and t[0] == 'p' and t[1] == tg[1])
        if mode == 's0':
            def bar0():
                S.wait_tag(lambda t: t == ('p', 0)); S.emit('s_barrier')
            T.before(W[4], bar0)
    left = T.spread(W[1], setup, vper=cfg.vper)
    assert not left
    def bar():
        S.wait_tag(need, lg=0); S.emit('s_barrier')
    T.before(W[11], bar)
    T.emit(S)

ACC2 = 128
def acc2(t, i): return ACC2 + (t * 4 + i) * 4
ABUF = (0, 32, 64, 160)
def aa(j, i, s): return ABUF[j % 4] + (i * 2 + s) * 4
def wb(n, s): return 96 + (n % 8) * 8 + s * 4
VA, VA2, VT, RB = 48, 52, 56, 80
VPD, VPO, VFV, VFO = 17, 18, 14, 15
SLOT7 = WB + 2 * WSLOT + W_FFN
def k2_slot(sl):
    if sl < 4:
        o = (sl >> 1) * XS + (sl & 1) * 4096
        return (0, o, 8192, 's39', 8192, o)
    if sl == 7: return (2, 0, 4096, 's47', 4096, SLOT7)
    o = {4: WSLOT, 5: WSLOT + 16384, 6: 0}[sl]
    return (1, o, 4096, 's47', 4096, WB + o)
def k2_wread(n, j, t, s, j4):
    bs, o, st, _, _, _ = k2_slot(j % 8)
    return 'ds_read_b64_tr_b16 %s, v%d offset:%d' % (ar(wb(n, s) + 2 * j4, 2), VT + 8 * bs + t, o + (2 * s + j4) * st)
KSEQ = [('o', u) for u in range(4)] + [(0, u) for u in range(4)] + [(1, u) for u in range(4)] + [('s', 0), ('s', 1)] + [(2, u) for u in range(4)]
def k2_kind(j): return KSEQ[j][0]
def k2_woff(j):
    kd, u = KSEQ[j]
    if kd == 'o': return ['s_add_u32 s32, s43, %d' % (u << 17)]
    if kd == 's': return ['s_add_u32 s32, s44, %d' % (u * 448 * 2048)]
    return ['s_add_u32 s32, s59, %d' % ((224 * u + 32 * kd) * 2048)]
def k2_wdma(j):
    _, _, _, sg, _, c = k2_slot(j % 8)
    srd = 's[12:15]' if j < 4 else 's[16:19]'
    L = []
    for ii in range(4):
        su = 's_add_u32 m0, %s, %d' % (sg, c + ii * 1024)
        if ii == 0: su = k2_woff(j)[0] + '\n' + su
        if ii == 2: su = 's_add_u32 s32, s32, 16384\n' + su
        L.append((su, 'buffer_load_dwordx4 v%d, %s, s32 offen lds' % (20 + (ii & 1), srd), ('w', j)))
    return L
def k2_aload(j):
    kd, u = KSEQ[j]
    off = u * 2048 + (0 if kd == 'o' else 32768 if kd == 's' else 8192 * (kd + 1))
    L = []
    for (i, s) in ORDER:
        L.append((None, 'buffer_load_dwordx4 %s, v%d, s[20:23], s31 offen offset:%d sc1' % (ar(aa(j, i, s)), VA + i, s * 1024), 'a'))
    L[0] = ('s_mov_b32 s31, %d' % off, L[0][1], L[0][2])
    return L

OUTLINE = []
def poll_check(S, a, cfg, name, level, load, vd, part=0):
    if part != 2: S.emit('v_cmp_gt_u32 vcc, %d, v%d' % (level, vd))
    if part == 1: return
    if part == 0: a.e('s_nop 0')
    a.e('s_cbranch_vccnz %s_wait' % name)
    a.label(name + '_ok')
    o = Asm()
    o.label(name + '_wait')
    o.e('s_mov_b32 s99, 0')
    o.label(name + '_spin')
    if cfg.sleep: o.e('s_sleep %d' % cfg.sleep)
    o.e(load)
    o.e('s_add_u32 s99, s99, 1\ns_waitcnt vmcnt(0)')
    o.e('v_cmp_gt_u32 vcc, %d, v%d\ns_nop 0' % (level, vd))
    o.e('s_cbranch_vccz %s_ok' % name)
    o.e('s_cmp_lt_u32 s99, %d\ns_cbranch_scc1 %s_spin\ns_branch %s_ok' % (SPIN_MAX, name, name))
    OUTLINE.append(o.text())

RN, CC, CS, TG = 26, 34, 80, 36
TROT = (45, 40, 61, 46)
def colconst(fs, b):
    L = []
    for k, f in enumerate(fs):
        L.append('ds_read_b128 %s, v6 offset:%d' % (vr(b + 4 * k), (6 + f) * 64))
        L.append('ds_read_b128 %s, v6 offset:%d' % (vr(b + 8 + 4 * k), EX_B1 + f * 64))
    return L

def k1_last(S, a, cfg, w):
    T = Timeline()
    th = 2 + w
    seqB = [th] + [t for t in (2, 3, 4, 5) if t != th] + [0, 1]
    own = [t for t in EXTRAS[w] if t >= 6]
    seqD = own + [t for t in range(6, 13) if t not in own]
    wins = [(t, 0) for t in range(6)] + [(t, 1) for t in seqB] + [(t, 0) for t in range(6, 13)] + [(t, 1) for t in seqD]
    widx = {x: n for n, x in enumerate(wins)}
    ex_at = {}
    for e, t in enumerate(EXTRAS[w]):
        for st in (0, 1):
            n = widx[(t, st)]
            ex_at.setdefault(max(n, 2), []).append((e, t, st, n))
    for n, (t, st) in enumerate(wins):
        T.window()
        exs = [k1_mfma(te, EXA + 4 * e, 'a', (HA0, HA1)[se] + 4 * s, wa(ne % 13, s)) for (e, te, se, ne) in ex_at.get(n, []) for s in (0, 1)]
        main = [k1_mfma(t, acc1(t, i), 'v', xa(st, i, s), wa(n % 13, s)) for (i, s) in ORDER]
        for x in (exs + main if n >= 6 else main + exs): T.mfma(x)
    W = T.win
    for n in range(24):
        t, st = wins[n + 2]
        seq = [k1_wread((n + 2) % 13, t, s, j4, *((14, 16), (3, 5))[st]) for (s, j4) in SJ]
        if n in (4, 5): seq += [k1_xread(1, 1, i, s) for (i, s) in (ORDER[:4] if n == 4 else ORDER[4:])]
        for k, r in enumerate(seq): T.at(W[n] + k, r)
    T.at(W[0] + 4, 'ds_read_b128 %s, v12' % ar(HA0))
    T.at(W[0] + 5, 'ds_read_b128 %s, v13' % ar(HA0 + 4))
    T.at(W[4] + 3, 'ds_read_b128 %s, v1' % ar(HA1))
    T.at(W[5] + 3, 'ds_read_b128 %s, v2' % ar(HA1 + 4))
    ST = EX_ST + 640 * w
    def stats():
        S.emit('s_mov_b32 s50, 256')
        poll_check(S, a, cfg, 'L_ps%d' % w, 32, 'buffer_load_dword v17, v18, s[48:51], 0 offen sc1', 17)
        S.emit('s_mov_b32 m0, %d\ns_bfm_b64 exec, 40, 0' % (EX + ST))
        S.emit('buffer_load_dwordx4 v22, s[20:23], 0 offen sc1 lds', tag='st')
        S.emit('s_mov_b64 exec, -1')
    T.at(W[0] + 6, stats)
    early = srd_txt(12, P_WO, 1024 * 2048)[:3] + srd_txt(16, P_W2, 3584 * 2048)[:3]
    for k in range(3): T.at(W[0] + k, '\n'.join(early[2 * k:2 * k + 2]))
    T.at(W[0] + 3, 's_lshl_b32 s3, s2, 2\ns_add_u32 s3, s3, %d\nv_min_u32 v46, 15, v0' % w)
    T.at(W[0] + 4, 's_lshl_b32 s32, s3, 11\nv_lshlrev_b32 v46, 7, v46')
    T.at(W[0] + 5, 's_mul_i32 s33, s3, 7168\nv_min_u32 v47, 55, v0')
    T.at(W[0] + 7, 'v_lshlrev_b32 v47, 7, v47\nbuffer_load_dword a254, v46, s[12:15], s32 offen', 'tch')
    T.at(W[1] + 4, 'buffer_load_dword a255, v47, s[16:19], s33 offen', 'tch')
    ops = []
    for j in range(cfg.npre): ops += k2_wdma(j)
    place_dmas(T, ops, [W[n] + o for n in range(cfg.w2first, cfg.w2last) for o in (5, 7)])
    d2 = 2 * WSLOT
    su = ['v_subrev_u32 v%d, %d, v%d' % (1 + k, d2, 12 + k) for k in range(5)]
    su += ['v_lshlrev_b32 v6, 4, v19', 'v_add_u32 v6, %d, v6' % EX, 'v_and_b32 v36, 15, v0', 'v_lshlrev_b32 v7, 2, v36', 'v_add_u32 v7, %d, v7' % EX,
           'v_lshlrev_b32 v8, 4, v0', 'v_add_u32 v9, %d, v8' % (EX + EX_KV), 'v_add_u32 v22, %d, v7' % ST,
           'v_and_b32 v37, 1, v0', 'v_lshl_add_u32 v38, v19, 2, v37', 'v_add_u32 v39, 2, v38',
           'v_cmp_eq_u32 s[6:7], 1, v37', 'v_cmp_le_u32 s[52:53], v38, v36', 'v_cmp_le_u32 s[4:5], v39, v36',
           'v_add_u32 v40, 16, v38', 'v_add_u32 v41, 16, v39',
           'v_cndmask_b32 v38, v38, v40, s[52:53]', 'v_cndmask_b32 v39, v39, v41, s[4:5]',
           'v_mov_b32 v40, %d' % (EX + ST), 'v_lshl_add_u32 v23, v38, 2, v40', 'v_lshl_add_u32 v24, v39, 2, v40',
           'v_mov_b32 v40, 0xffff', 'v_mov_b32 v41, 0xffff0000', 'v_cndmask_b32 v40, v40, v41, s[6:7]']
    left = T.spread(W[1], su, vper=cfg.vper); assert not left and T.last < W[5], T.last
    su = ['v_cndmask_b32 v10, 0, v40, s[52:53]', 'v_cndmask_b32 v11, v40, 0, s[52:53]', 'v_cndmask_b32 v12, 0, v40, s[4:5]', 'v_cndmask_b32 v13, v40, 0, s[4:5]',
          'v_and_b32 v36, 7, v0', 'v_xor_b32 v37, 1, v36', 'v_cmp_eq_u32 vcc, s63, v36', 'v_mov_b32 v%d, 1' % VFV, 'v_bfrev_b32 v38, 1',
          'v_cndmask_b32 v36, v36, v37, vcc', 'v_cmp_eq_u32 vcc, 0, v0', 'v_lshlrev_b32 v%d, 2, v36' % VPO, 's_nop 0',
          'v_cndmask_b32 v%d, v38, v0, vcc' % VFO]
    left = T.spread(W[6] + 1, su, vper=cfg.vper); assert not left and T.last < W[8], T.last
    def b15():
        S.wait_tag(lambda t: isinstance(t, tuple) and t[0] == 'd'); S.emit('s_barrier')
    T.before(W[4], b15)
    def cswrite(es):
        L = []
        o1 = [(e, t) for e, t in es if t not in (4, 5)]
        if o1:
            L.append('s_mov_b32 exec_lo, 0x00010001\ns_mov_b32 exec_hi, 0x00010001')
            L += ['ds_write_b128 v6, %s offset:%d' % (ar(EXA + 4 * e), t * 64) for e, t in o1]
        for e, t in es:
            if t in (4, 5): L.append('s_mov_b64 exec, 0xffff\nds_write_b32 v7, a%d offset:%d' % (EXA + 4 * e, t * 64))
        L.append('s_mov_b64 exec, -1')
        return '\n'.join(L)
    T.at(W[7] + 0, cswrite([(0, th)]), 'x1')
    def c1():
        S.wait_tag(lambda t: t == 'st'); S.wait_dstag('x1'); S.emit('s_barrier')
    T.before(W[8], c1)
    if w == 3: T.at(W[12] + 4, cswrite([(1, 0), (2, 1)]), 'x2')
    if own: T.at(W[19 + len(own)] + 4, cswrite([(e, t) for e, t in enumerate(EXTRAS[w]) if t >= 6]), 'x3')
    rd = ['ds_read_b128 v[36:39], v6 offset:128', 'ds_read_b128 v[40:43], v6 offset:192', 'ds_read2_b32 v[34:35], v7 offset0:64 offset1:80']
    rd += ['ds_read2_b32 %s, v22 offset0:%d offset1:%d' % (vr(RN + 2 * i, 2), 16 * (i + 1), 80 + 16 * (i + 1)) for i in (3, 0, 1, 2)]
    rd.insert(4, 'ds_read_b128 v[44:47], v6 offset:%d' % (ST + 320 + 64 * 4))
    T.before(W[7], lambda: S.wait_tag(lambda t: t == 'st'))
    A = rd[3:7] + rd[:3] + rd[7:]
    VS = [acc1(4, 0) + 6, acc1(5, 0) + 6]
    def qk(t0, i):
        L = ['v_fmac_f32 v%d, v%d, v%d' % (acc1(t0 + (k >> 2), i) + (k & 3), RN + 2 * i + 1, 36 + k) for k in range(8)]
        return L + [cvt(acc1(t0, i) + h, acc1(t0 + (h >> 1), i) + 2 * (h & 1)) for h in range(4)]
    NB = (acc1(3, 2), acc1(3, 1), acc1(3, 0), 44)
    nm4 = lambda i: 'ds_read_b128 %s, v6 offset:%d' % (vr(NB[i]), ST + 320 + 64 * (i + 1))
    def vv(i):
        L = ['v_fmac_f32 v%d, v%d, v%d' % (acc1(4 + (k >> 2), i) + (k & 3), NB[i] + (k & 3), 34 + (k >> 2)) for k in range(8)]
        return L + [cvt(VS[h >> 1] + 2 * (i + 1) + (h & 1), acc1(4 + (h >> 1), i) + 2 * (h & 1)) for h in (1, 0, 3, 2)]
    hb = acc1(3, 3)
    A += qk(2, 3)
    if th < 4: A.append('ds_read_b32 v%d, v22 offset:320' % hb)
    else: A.append('ds_read_b128 %s, v6 offset:%d' % (vr(hb), ST + 320))
    if w < 3: A.append(('ds_write_b128 v9, %s offset:%d' % (vr(acc1(2, 3)), (w + 1) * 2048), 'x2'))
    A += vv(3)
    if w < 3:
        A.append(('ds_write2_b64 v9, %s, %s offset0:%d offset1:%d' % (vr(VS[0] + 8, 2), vr(VS[1] + 8, 2), 0, 1), 'V3'))
    A += ['v_accvgpr_read_b32 v%d, a%d' % (44 + r, EXA + r) for r in range(4)]
    if th < 4: A += ['v_fmac_f32 v%d, v%d, v%d' % (44 + r, hb, 36 + 4 * (th & 1) + r) for r in range(4)]
    else: A += ['v_fmac_f32 v%d, v%d, v%d' % (44 + r, hb + r, 34 + (th & 1)) for r in range(4)]
    A += [cvt(44, 44), cvt(45, 46)]
    A.append(('ds_write_b64 v9, v[44:45] offset:%d' % ((0 if th < 4 else 1024) + 8 * (th & 1)), 'x2'))
    A2 = []
    for x in A:
        if isinstance(x, tuple) and x[1] == 'V3':
            A2 += [('ds_write_b64 v9, %s offset:%d' % (vr(VS[h] + 8, 2), (w + 1) * 2048 + 1024 + 8 * h), 'x2') for h in range(2)]
        else: A2.append(x)
    A = A2
    A += qk(2, 0) + [nm4(2)] + qk(2, 1) + [nm4(1)] + qk(2, 2) + [nm4(0)]
    CI = acc1(4, 0); KP = acc1(5, 0)
    post2 = ['ds_read_b128 v[36:39], v6', 'ds_read_b128 v[40:43], v6 offset:64',
             'ds_read_b64 %s, v9 offset:%d' % (vr(VS[0], 2), w * 2048 + 1024), 'ds_read_b64 %s, v9 offset:%d' % (vr(VS[1], 2), w * 2048 + 1032),
             'ds_read_b128 %s, v9 offset:%d' % (vr(KP), w * 2048)]
    A += post2[:2] + vv(2) + vv(1) + post2[2:4] + vv(0) + post2[4:]
    c1_ = -2.0 * math.sqrt(2.0 / math.pi) * math.log2(math.e)
    A += ['v_mov_b32 v%d, %s' % (CC, f32(c1_)), 'v_mov_b32 v%d, %s' % (CC + 1, f32(c1_ * 0.044715))]
    if w == 0:
        A.append('s_cmp_eq_u32 s29, 0\ns_cselect_b32 s3, 0xff800000, 0')
        A += ['v_mov_b32 v%d, s3' % (CI + r) for r in range(4)]
    def c2():
        S.wait_dstag('x2'); S.emit('s_barrier')
    T.before(W[cfg.c2w], c2)
    SC = lambda i: acc1(1, i)
    SP = lambda i: acc1(3, i)
    I4 = (1, 2, 3, 0)
    def smf(i):
        kp = KP if i == 0 else acc1(2, i - 1)
        return ['v_mfma_f32_16x16x32_bf16 %s, %s, %s, 0' % (vr(SC(i)), vr(acc1(2, i)), vr(acc1(0, i))),
                'v_mfma_f32_16x16x32_bf16 %s, %s, %s, %s' % (vr(SP(i)), vr(kp), vr(acc1(0, i)), vr(CI) if (i == 0 and w == 0) else '0')]
    for n, i in enumerate(I4):
        q = qk(0, i)
        A += q[:4]
        if n: A += smf(I4[n - 1])
        A += q[4:]
    RK = 40; CQ = 36
    rk = lambda i, r: RK + 4 * r + i
    A += ['ds_read2_b32 %s, v%d offset0:%d offset1:%d' % (vr(RK + 4 * r + 2 * h, 2), 23 + r, 32 * h, 32 * h + 16) for r in range(2) for h in range(2)]
    A.append('s_mov_b32 s3, %s' % f32(32 ** -0.5 * math.log2(math.e)))
    A += ['v_mul_f32 v%d, s3, v%d' % (CQ + i, RN + 2 * i) for i in range(4)]
    A += smf(0)
    for i in I4:
        c, p = SC(i), SP(i)
        A += ['v_cndmask_b32 v%d, v%d, v%d, s[6:7]' % (c, c, c + 1), 'v_cndmask_b32 v%d, v%d, v%d, s[6:7]' % (c + 2, c + 2, c + 3),
              'v_cndmask_b32 v%d, v%d, v%d, s[6:7]' % (p, p, p + 1), 'v_cndmask_b32 v%d, v%d, v%d, s[6:7]' % (p + 2, p + 2, p + 3),
              'v_cndmask_b32 v%d, v%d, v%d, s[52:53]' % (c, p, c), 'v_cndmask_b32 v%d, v%d, v%d, s[4:5]' % (c + 1, p + 2, c + 2),
              'v_mul_f32 v%d, v%d, v%d' % (c, c, rk(i, 0)), 'v_mul_f32 v%d, v%d, v%d' % (c + 1, c + 1, rk(i, 1)),
              'v_max_f32 v%d, v%d, v%d' % (c + 2, c, c + 1)]
    def red(op):
        L = []
        for sw in ('v_permlane16_swap_b32', 'v_permlane32_swap_b32'):
            L += ['v_mov_b32 v%d, v%d' % (SC(i) + 3, SC(i) + 2) for i in I4]
            L += ['%s v%d, v%d' % (sw, SC(i) + 2, SC(i) + 3) for i in I4]
            L += ['%s v%d, v%d, v%d' % (op, SC(i) + 2, SC(i) + 2, SC(i) + 3) for i in I4]
        return L
    A += red('v_max_f32')
    for i in I4:
        c = SC(i)
        A += ['v_mul_f32 v%d, v%d, v%d' % (c + 2, c + 2, CQ + i),
              'v_fma_f32 v%d, v%d, v%d, -v%d' % (c, c, CQ + i, c + 2), 'v_fma_f32 v%d, v%d, v%d, -v%d' % (c + 1, c + 1, CQ + i, c + 2)]
    for i in I4: A += ['v_exp_f32 v%d, v%d' % (SC(i), SC(i)), 'v_exp_f32 v%d, v%d' % (SC(i) + 1, SC(i) + 1)]
    A += ['v_add_f32 v%d, v%d, v%d' % (SC(i) + 2, SC(i), SC(i) + 1) for i in I4]
    for i in I4: A += ['v_mul_f32 v%d, v%d, v%d' % (SC(i), SC(i), rk(i, 0)), 'v_mul_f32 v%d, v%d, v%d' % (SC(i) + 1, SC(i) + 1, rk(i, 1))]
    A += colconst([0, 1], CS)
    A += red('v_add_f32')
    A += ['v_rcp_f32 v%d, v%d' % (SC(i) + 2, SC(i) + 2) for i in I4]
    def omf(i):
        return ['v_mfma_f32_16x16x32_bf16 %s, %s, %s, 0' % (vr(acc1(0, i)), vr(VS[0] + 2 * i), vr(SP(i))),
                'v_mfma_f32_16x16x32_bf16 %s, %s, %s, 0' % (vr(SC(i)), vr(VS[1] + 2 * i), vr(SP(i)))]
    def ost(i):
        o, c = acc1(0, i), SC(i)
        return [cvt(o, o), cvt(o + 1, o + 2), cvt(o + 2, c), cvt(o + 3, c + 2), 's_add_u32 s3, s56, %d' % (i * 147456),
                ('buffer_store_dwordx4 %s, v8, s[20:23], s3 offen %s' % (vr(o), cfg.hst), 'o')]
    for n, i in enumerate(I4):
        c, p = SC(i), SP(i)
        A += ['v_mul_f32 v%d, v%d, v%d' % (c, c, c + 2), 'v_mul_f32 v%d, v%d, v%d' % (c + 1, c + 1, c + 2)]
        if n: A += omf(I4[n - 1])
        A += ['v_cvt_pk_bf16_f32 v%d, v%d, v%d' % (c, c, c), 'v_cvt_pk_bf16_f32 v%d, v%d, v%d' % (c + 1, c + 1, c + 1),
              'v_and_b32 v%d, v%d, v11' % (p, c), 'v_and_b32 v%d, v%d, v13' % (p + 1, c + 1),
              'v_and_b32 v%d, v%d, v10' % (p + 2, c), 'v_and_b32 v%d, v%d, v12' % (p + 3, c + 1)]
    x = ost(1)
    A += x[:2] + omf(0) + x[2:] + ost(2) + ost(3) + ost(0)
    def c3():
        S.wait_tag(lambda t: isinstance(t, tuple) and t[0] == 'w' and t[1] < 3, lg=0)
        S.emit('s_barrier')
    T.before(W[24], c3)
    after = {x: 24 for x in colconst([0, 1], CS)}
    after.update({x: cfg.c2w for x in post2})
    after.update({x: 8 for x in rd[:3]})
    for x in A:
        if isinstance(x, str) and x.startswith('v_fmac'):
            d = int(x.split()[1][1:-1])
            if d >= ACC1: after[x] = widx[((d - ACC1) // 16, 1)] + 1
    left = T.sched(W[7] + 1, A, vper=cfg.vper, over=cfg.over, after=after)
    assert cfg.c2w >= 13 and not any(tg == 'x2' for f in T.fill[T.win[cfg.c2w] - 2:] for _, tg in f) and not any(tg == 'x2' for _, tg in left)
    if cfg.lst == 2:
        for n in range(1, 26):
            T.pre[T.win[n]].insert(0, lambda n=n: a.e('s_memtime s[94:95]\ns_waitcnt lgkmcnt(0)\nv_writelane_b32 v17, s94, %d' % (n + 1)))
    T.emit(S)
    if cfg.lst == 2: a.e('s_memtime s[94:95]\ns_waitcnt lgkmcnt(0)\nv_writelane_b32 v17, s94, 27\nv_accvgpr_write_b32 a253, v17')
    stamp(a, cfg, 'g1 end')
    for x, tag in left: S.emit(x, tag=tag)
    return len(left)

def gen(cfg):
    a = Asm()
    del OUTLINE[:]
    a.e('s_cmp_ge_u32 s2, 256\ns_cbranch_scc1 L_end')
    a.e('s_load_dwordx16 s[64:79], s[0:1], 0\ns_load_dwordx4 s[80:83], s[0:1], 64\ns_load_dwordx2 s[84:85], s[0:1], 80')
    if cfg.stamps: a.e('s_memrealtime s[92:93]\ns_memtime s[94:95]')
    a.e('v_lshrrev_b32 v17, 6, v0\nv_and_b32 v0, 63, v0')
    a.e('v_readfirstlane_b32 s28, v17')
    if cfg.cpf:
        a.e('s_getpc_b64 s[100:101]')
        a.label('L_pc')
        a.e('s_lshr_b32 s3, s2, 3\ns_lshl_b32 s3, s3, 2\ns_add_u32 s3, s3, s28\ns_mul_i32 s3, s3, %d' % (CPF_LANES * 128))
        a.e('s_min_u32 s3, s3, L_end - L_pc - %d' % (CPF_LANES * 128))
        a.e('s_add_u32 s100, s100, s3\ns_addc_u32 s101, s101, 0')
        if cfg.cpf & 1:
            for x in cpf_addr(44): a.e(x)
            a.e(cpf_load(42, 44))
    a.e('s_and_b32 s29, s2, 1\ns_lshl_b32 s97, s29, 3\ns_lshl_b32 s29, s29, 2\ns_lshr_b32 s3, s2, 6\ns_add_u32 s29, s29, s3')
    a.e('s_bfe_u32 s62, s2, 0x20001\ns_lshl_b32 s30, s62, 3\ns_bfe_u32 s63, s2, 0x30003\ns_add_u32 s30, s30, s63')
    a.e('s_add_u32 s41, s29, s30')
    a.e('s_lshl_b32 s3, s29, 8\ns_lshl_b32 s4, s28, 6\ns_add_u32 s54, s3, s4')
    a.e('s_lshl_b32 s4, s30, 3\ns_add_u32 s5, s3, s4\ns_lshl_b32 s4, s28, 1\ns_add_u32 s58, s5, s4')
    a.e('s_lshl_b32 s6, s58, 11\ns_lshl_b32 s39, s28, 13\ns_mov_b32 s36, 0')
    for x in k1_kcalc(cfg, True): a.e(x)
    if cfg.fakestats: a.e('s_mov_b32 s6, 0')
    a.e('v_lshlrev_b32 v25, 4, v0')
    a.e('v_lshrrev_b32 v18, 3, v0')
    a.e('v_lshrrev_b32 v19, 4, v0')
    a.e('v_and_b32 v20, 7, v0')
    a.e('v_xor_b32 v21, v20, v19')
    a.e('v_lshlrev_b32 v18, 11, v18\nv_lshl_add_u32 v18, v21, 4, v18')
    a.e('s_lshl_b32 s4, s54, 11\nv_add_u32 v1, s4, v18\nv_xor_b32 v2, 0x4040, v1')
    a.e('s_waitcnt lgkmcnt(0)')
    if cfg.stamps: a.e('v_accvgpr_write_b32 a%d, s92\nv_accvgpr_write_b32 a%d, s94' % (TSA, TSA + 1))
    stamp(a, cfg, 'karg')
    a.srd(8, P_X, 2048 * 2048)
    S = Stream(a)
    if cfg.cpf & 1: S.vm.append((None, {('v', 42)}))
    for k in range(4):
        S.emit('buffer_load_dwordx4 %s, v25, s[8:11], s6 offen offset:%d' % (vr(48 + 4 * k), k * 1024))
    q0, f0, x0 = k1_dmas(None, 0, 0)
    for su, ld in x0[:4]:
        S.emit(su); S.emit(ld, tag=('a', 0))
    a.srd(12, P_WQKV, 1024 * 6144)
    a.srd(16, P_W1, 1024 * 7168)
    a.srd(20, P_WS, WS_BYTES)
    a.e('s_sub_u32 s5, s3, 16\ns_max_i32 s55, s5, 0')
    a.e('s_lshl_b32 s46, s28, 10\ns_lshl_b32 s47, s28, 12\ns_mov_b32 s42, %d' % WSLOT)
    a.e('s_cmp_eq_u32 s28, 3\ns_cselect_b32 s24, s8, s16\ns_cselect_b32 s25, s9, s17\ns_cselect_b32 s26, s10, s18\ns_cselect_b32 s40, s31, s33\ns_mov_b32 s27, 0x00020000')
    S.emit('s_mul_i32 s3, s28, %d\ns_lshl_b32 s38, s30, 6\ns_add_u32 s3, s3, s38' % (16 * 6144))
    S.emit('v_lshrrev_b32 v22, 2, v0\nv_and_b32 v23, 3, v0\nv_and_b32 v24, 2, v19\nv_xor_b32 v24, v24, v23')
    S.emit('v_mul_u32_u24 v26, 6144, v22\nv_lshl_add_u32 v26, v24, 4, v26')
    S.emit('v_add_u32 v3, s3, v26\nv_add_u32 v4, 0x800, v3\nv_add_u32 v5, 0x1000, v3')
    S.emit('s_lshl_b32 s3, s28, 8\ns_mul_i32 s53, s30, 224\ns_movk_i32 s38, 0x1c00\nv_add_u32 v26, s3, v0\nv_mov_b32 v31, s53')
    for ii in range(4):
        if ii: S.emit('v_add_u32 v26, 64, v26')
        S.emit('v_mul_u32_u24 v27, 4682, v26\nv_lshrrev_b32 v27, 16, v27')
        S.emit('v_mad_i32_i24 v28, v27, -14, v26')
        S.emit('v_and_b32 v29, 4, v27\nv_bfe_i32 v30, v27, 3, 1\nv_lshl_add_u32 v29, v30, 2, v29\nv_add_u32 v27, v27, v29')
        S.emit('v_mad_u32_u24 v27, v27, s38, v31\nv_lshl_add_u32 v%d, v28, 4, v27' % (6 + ii))
    S.emit('s_cmp_lg_u32 s28, 3\ns_cbranch_scc1 L_nohalo')
    S.emit('s_lshl_b32 s3, s55, 11\nv_add_u32 v8, s3, v18\nv_xor_b32 v9, 0x4040, v8')
    a.label('L_nohalo')
    S.emit('v_and_b32 v32, 15, v0')
    S.emit('v_lshrrev_b32 v21, 1, v32\nv_xor_b32 v21, v21, v19')
    S.emit('v_lshlrev_b32 v21, 4, v21\nv_lshl_add_u32 v21, v32, 7, v21')
    S.emit('v_add_u32 v10, s39, v21\nv_xor_b32 v11, 64, v10')
    S.emit('v_add_u32 v12, %d, v21\nv_xor_b32 v13, 64, v12' % (WB + W_HALO))
    S.emit('v_mov_b32 v27, %d\nv_cmp_eq_u32 vcc, 0, v32' % (WB + W_ONES))
    S.emit('v_and_b32 v22, 3, v22\nv_lshlrev_b32 v23, 3, v23')
    S.emit('v_cndmask_b32 v12, v12, v27, vcc\nv_cndmask_b32 v13, v13, v27, vcc')
    S.emit('v_lshl_add_u32 v24, v19, 3, v22\nv_lshl_add_u32 v24, v24, 6, v23\nv_and_b32 v25, 1, v19')
    S.emit('v_lshl_add_u32 v24, v25, 5, v24\nv_add_u32 v14, %d, v24\nv_xor_b32 v15, 32, v14' % WB)
    S.emit('v_lshrrev_b32 v26, 1, v19\nv_lshlrev_b32 v26, 4, v26\nv_lshl_add_u32 v26, v25, 2, v26\nv_add_u32 v26, v26, v22')
    S.emit('v_mul_u32_u24 v26, 224, v26\nv_add_u32 v26, v26, v23\nv_add_u32 v16, %d, v26' % WB)
    S.emit('v_mov_b32 v28, 0x3f803f80\nv_mov_b32 v29, v28\nv_mov_b32 v30, v28\nv_mov_b32 v31, v28')
    for k in range(3): S.emit('ds_write_b128 v27, v[28:31] offset:%d' % (k * WSLOT))
    S.emit('s_lshl_b32 s3, s29, 2\ns_add_u32 s3, s3, s62\ns_lshl_b32 s3, s3, 2\ns_add_u32 s3, s3, s28\ns_lshl_b32 s3, s3, 9\ns_add_u32 s86, s3, %d' % WS_HFLAG)
    S.emit('s_lshl_b32 s3, s63, 2\ns_add_u32 s89, s86, s3')
    S.emit('s_lshl_b32 s3, s29, 3\ns_add_u32 s88, s3, s63\ns_lshl_b32 s3, s88, 4\ns_add_u32 s3, s3, s28\ns_lshl_b32 s3, s3, 7\ns_add_u32 s90, s3, %d' % WS_XFLAG)
    S.emit('s_lshl_b32 s3, s62, 9\ns_add_u32 s87, s90, s3')
    a.srd(4, P_B1, 7168)
    S.emit('v_lshlrev_b32 v33, 2, v0\nv_mov_b64 v[44:45], 0\nv_mov_b64 v[46:47], 0')
    st = []
    for k in range(16):
        st.append('v_lshlrev_b32 v%d, 16, v%d' % (64 + 2 * k, 48 + k))
        st.append('v_and_b32 v%d, 0xffff0000, v%d' % (65 + 2 * k, 48 + k))
    for k in range(0, 8, 2):
        for r in range(2): st.append(pk('add', 48 + 8 * r + k, 64 + 16 * r + k, 72 + 16 * r + k))
    for k in (0, 2):
        for r in range(2): st.append(pk('add', 48 + 8 * r + k, 48 + 8 * r + k, 52 + 8 * r + k))
    for r in range(2): st.append(pk('add', 48 + 8 * r, 48 + 8 * r, 50 + 8 * r))
    for r in range(2): st.append('v_add_f32 v%d, v%d, v%d' % (34 + r, 48 + 8 * r, 49 + 8 * r))
    st += allreduce64('v_add_f32', [34, 35], [36, 37])
    for r in range(2): st.append('v_mul_f32 v%d, %s, v%d' % (34 + r, f32(-1.0 / 1024), 34 + r))
    for k in range(0, 16, 2):
        for r in range(2): st.append(pk('add', 64 + 16 * r + k, 64 + 16 * r + k, 34, sel=[0, r], selhi=[1, r]))
    for r in range(2): st.append(pk('mul', 48 + 2 * r, 64 + 16 * r, 64 + 16 * r))
    for k in range(2, 16, 2):
        for r in range(2): st.append(pk('fma', 48 + 2 * r, 64 + 16 * r + k, 64 + 16 * r + k, 48 + 2 * r))
    for r in range(2): st.append('v_add_f32 v%d, v%d, v%d' % (38 + r, 48 + 2 * r, 49 + 2 * r))
    st += allreduce64('v_add_f32', [38, 39], [36, 37])
    fin = [[], []]
    for r in range(2):
        m, v, t = 34 + r, 38 + r, 36 + r
        fin[r] = ['v_mul_f32 v%d, %s, v%d' % (v, f32(1.0 / 1024), v),
                  'v_cvt_pk_bf16_f32 v%d, v%d, v%d' % (t, m, v),
                  'v_lshlrev_b32 v%d, 16, v%d' % (m, t),
                  'v_and_b32 v%d, 0xffff0000, v%d' % (v, t),
                  'v_add_f32 v%d, %s, v%d' % (v, f32(1e-5), v),
                  'v_cvt_pk_bf16_f32 v%d, v%d, v%d' % (t, v, v),
                  'v_lshlrev_b32 v%d, 16, v%d' % (t, t),
                  'v_sqrt_f32 v%d, v%d' % (t, t),
                  'v_cvt_pk_bf16_f32 v%d, v%d, v%d' % (t, t, t),
                  'v_lshlrev_b32 v%d, 16, v%d' % (t, t),
                  'v_rcp_f32 v%d, v%d' % (40 + r, t)]
    for x, y in zip(*fin): st += [x, y]
    k1c = ['s_mov_b32 s36, 1'] + k1_kcalc(cfg, True) + ['s_cmp_eq_u32 s28, 3\ns_cselect_b32 s40, s31, s33']
    rest = [(su, ld, ('a', 0)) for su, ld in [x0[4], q0[0], x0[5], q0[1], x0[6], q0[2], x0[7]]] + [(su, ld, ('p', 0)) for su, ld in f0]
    rest.append(('', 'buffer_load_dword v43, v33, s[4:7], s53 offen', 'b1'))
    l1 = k1_mix(*k1_dmas(None, 1, 1))[:cfg.n1]
    rest += [(('\n'.join(k1c) + '\n' if k == 0 else '') + su, ld, ('p', 1)) for k, (su, ld) in enumerate(l1)]
    nfast = 7
    for su, ld, tg in rest[:nfast]:
        S.emit(su); S.emit(ld, tag=tg)
    rest = rest[nfast:]
    gap = len(st) // (len(rest) + 1)
    stamp(a, cfg, 'rows')
    k = 0
    for idx, x in enumerate(st):
        if idx % gap == 2 and k < len(rest):
            if rest[k][0]: S.emit(rest[k][0])
            S.emit(x); S.emit(rest[k][1], tag=rest[k][2]); k += 1
        else: S.emit(x)
    assert k == len(rest)
    if not l1:
        for x in k1c: S.emit(x)
    S.wait_tag(lambda t: t == ('a', 0), lg=0)
    S.emit('s_barrier')
    stamp(a, cfg, 'data0')
    for (s, j4) in SJ: S.emit(k1_wread(0, 0, s, j4))
    for (i, s) in ORDER[:4]: S.emit(k1_xread(0, 0, i, s))
    for (s, j4) in SJ: S.emit(k1_wread(1, 1, s, j4))
    S.emit('s_lshl_b32 s3, s58, 2\ns_add_u32 s38, s3, %d\ns_mov_b64 exec, 1' % WS_NM)
    S.emit('buffer_store_dwordx2 v[40:41], v44, s[20:23], s3 offen sc1')
    S.emit('buffer_store_dwordx2 v[34:35], v44, s[20:23], s38 offen sc1')
    S.emit('buffer_store_dwordx4 v[44:47], v44, s[20:23], s87 offen sc1')
    S.emit('s_mov_b64 exec, 15\nv_lshlrev_b32 v33, 7, v0')
    S.emit('buffer_store_dword v44, v33, s[20:23], s89 offen sc1')
    S.emit('s_mov_b64 exec, -1')
    S.wait(lg=8)
    for (i, s) in ORDER[4:]: S.emit(k1_xread(0, 0, i, s))
    a.e('s_cmp_eq_u32 s28, 1\ns_cbranch_scc1 L_w1\ns_cmp_eq_u32 s28, 2\ns_cbranch_scc1 L_w2\ns_cmp_eq_u32 s28, 3\ns_cbranch_scc1 L_w3')
    entry = (list(S.ds), list(S.vm))

    joins = []
    for w in range(4):
        if w: a.raw('.p2align 3'); a.label('L_w%d' % w)
        S = Stream(a)
        S.ds, S.vm = list(entry[0]), list(entry[1])
        su0 = ['s_lshl_b32 s3, s63, 8', 'v_lshlrev_b32 v21, 1, v19', 'v_xor_b32 v21, v21, v32', 'v_lshlrev_b32 v26, 11, v19', 'v_lshl_add_u32 v21, v21, 4, v26',
               'v_add_u32 v20, s3, v21', 'v_xor_b32 v21, 0x2080, v20',
               'v_subrev_u32 v22, 20, v0', 'v_min_u32 v22, v22, v0', 's_sub_u32 s3, s54, 16', 'v_mov_b32 v26, s3', 's_max_i32 s3, s3, 0', 'v_mov_b32 v27, s3',
               'v_mov_b32 v28, s55', 'v_cmp_gt_u32 s[52:53], 20, v0', 'v_cmp_gt_u32 vcc, 4, v22', 'v_mov_b32 v29, %d' % WS_NM,
               'v_cndmask_b32 v27, v28, v27, s[52:53]', 'v_cndmask_b32 v29, v29, 0, s[52:53]', 'v_cndmask_b32 v26, v26, v27, vcc',
               'v_lshl_add_u32 v22, v22, 2, v26', 'v_lshl_add_u32 v22, v22, 2, v29',
               's_lshl_b32 s3, s29, 5', 'v_mov_b32 v23, s3', 's_sub_u32 s3, s3, 32\ns_max_i32 s3, s3, 0', 'v_mov_b32 v18, s3', 'v_cmp_eq_u32 vcc, 0, v0',
               's_bfe_u32 s98, s2, 0x20003\ns_lshl_b32 s98, s98, 1', 's_add_u32 s98, s98, 5',
               'v_cndmask_b32 v18, v18, v23, vcc', 'v_cndmask_b32 v24, -16, v23, vcc', 'v_mov_b32 v23, 1',
               'v_bfe_u32 v26, v0, 2, 3', 'v_lshrrev_b32 v25, 2, v0', 'v_lshlrev_b32 v25, 8, v25', 'v_lshl_add_u32 v25, v26, 5, v25',
               'v_and_b32 v26, 3, v0', 'v_lshl_add_u32 v25, v26, 3, v25']
        su0 += srd_txt(48, P_DBG, 0)
        su1 = cpf_addr(44) if cfg.cpf & 2 else []
        if w == 1:
            su1 += ['v_lshlrev_b32 v26, 16, v43', 'v_and_b32 v27, 0xffff0000, v43', 'v_lshlrev_b32 v28, 3, v0', 'v_add_u32 v28, %d, v28' % (EX + EX_B1),
                    's_bfm_b64 exec, 56, 0\nds_write_b64 v28, v[26:27]\ns_mov_b64 exec, -1']
        su1 += ['s_mov_b32 s34, %d' % (WB + WSLOT),
                's_lshr_b32 s91, s54, 4', 's_mul_i32 s3, s91, 144\ns_mul_i32 s52, s62, 36', 's_add_u32 s3, s3, s52\ns_lshl_b32 s3, s3, 10', 's_add_u32 s91, s3, %d' % WS_H,
                's_lshl_b32 s3, s63, 10\ns_add_u32 s56, s91, s3',
                's_lshl_b32 s43, s62, 19\ns_add_u32 s43, s43, %d' % (w << 15),
                's_mul_i32 s3, s62, %d' % (896 * 2048), 's_add_u32 s44, s3, %d' % ((112 * w + 96) * 2048),
                's_add_u32 s59, s3, %d' % ((16 * (w & 1) + 112 * (w >> 1)) * 2048),
                's_lshr_b32 s3, s63, 1\ns_lshl_b32 s3, s3, 10', 's_add_u32 s58, s91, s3\ns_and_b32 s3, s63, 1', 's_mul_i32 s3, s3, 147456\ns_add_u32 s58, s58, s3', 's_add_u32 s58, s58, 32768']
        for k in range(4):
            su1 += ['s_add_u32 s3, s62, %d\ns_and_b32 s3, s3, 3' % (k + 1), 's_lshl_b32 s%d, s3, 6' % TROT[k]]
        k1_step(S, cfg, w, 0, 's0', su0)
        k1_step(S, cfg, w, 1, 's1', su1)
        stamp(a, cfg, 'loop')
        S.mute = True
        k1_step(S, cfg, w, 0); k1_step(S, cfg, w, 1)
        st0 = S.state()
        S.mute = False
        a.raw('.p2align 3')
        a.label('L_loop%d' % w)
        k1_step(S, cfg, w, 0); k1_step(S, cfg, w, 1)
        assert S.state() == st0
        a.e('s_cmp_lt_u32 s36, 16\ns_cbranch_scc1 L_loop%d' % w)
        stamp(a, cfg, 'last')
        nleft = k1_last(S, a, cfg, w)
        joins.append((nleft, S.state(), dict(S.wiss), set(S.wvis)))
        if w < 3: a.e('s_branch L_epi')
    gen.info = [j[0] for j in joins]
    a.label('L_epi')
    a.e('s_nop 0')
    stamp(a, cfg, 'attn st')
    nv = max(len(j[1][1]) for j in joins)
    ref = [j[1][1] for j in joins if len(j[1][1]) == nv][0]
    for j in joins: assert ref[len(ref) - len(j[1][1]):] == j[1][1]
    S = Stream(a)
    S.vm = [(t, set(x)) for t, x in ref]
    S.wiss = joins[0][2]; S.wvis = set.intersection(*[j[3] for j in joins])
    a.e('s_waitcnt lgkmcnt(0)')
    for k in reversed(range(4)):
        S.emit('v_xor_b32 v%d, s%d, v25\nv_xor_b32 v%d, 32, v%d' % (VT + 2 * k, TROT[k], VT + 2 * k + 1, VT + 2 * k))
    S.emit('v_add_u32 v%d, s91, v8' % VA)
    for i in range(1, 4): S.emit('v_add_u32 v%d, %d, v%d' % (VA + i, i * 147456, VA))
    def gelu(quads, i, dst, mid=None):
        n = len(quads) * 2
        P = [(q[0] + 2 * h, q[1] + 2 * h, q[2] + 2 * h) for q in quads for h in range(2)]
        for k, (x, cs, b) in enumerate(P): S.emit(pk('fma', x, RN + 2 * i, cs, x, sel=[1, 0, 0], selhi=[1, 1, 1]))
        for k, (x, cs, b) in enumerate(P): S.emit(pk('fma', x, RN + 2 * i, x, b, sel=[0, 0, 0], selhi=[0, 1, 1]))
        if mid: mid()
        for k, (x, cs, b) in enumerate(P): S.emit(pk('mul', TG + 2 * k, x, x))
        for k, (x, cs, b) in enumerate(P): S.emit(pk('fma', TG + 2 * k, TG + 2 * k, CC, CC, sel=[0, 1, 0], selhi=[1, 1, 0]))
        for k, (x, cs, b) in enumerate(P): S.emit(pk('mul', TG + 2 * k, TG + 2 * k, x))
        for k in range(2 * n): S.emit('v_exp_f32 v%d, v%d' % (TG + k, TG + k))
        for k in range(n): S.emit(pk('add', TG + 2 * k, TG + 2 * k, '1.0', selhi=[1, 0]))
        for k in range(2 * n):
            S.emit('v_rcp_f32 v%d, v%d' % (TG + k, TG + k))
            if k & 1 and aq:
                x = aq.pop(0)
                if x[0]: S.emit(x[0])
                S.emit(x[1], tag=x[2])
        for k, (x, cs, b) in enumerate(P): S.emit(pk('mul', TG + 2 * k, TG + 2 * k, x))
        for k in range(n): S.emit(cvt(dst + k, TG + 2 * k))
    FS = [[0, 1], [2, 3], [4, 5], [6]]
    def hdst(fp, i):
        if fp == 0: return acc1(6, i)
        if fp == 3: return (44, 46, 10, 12)[i]
        return 96 + 16 * (fp - 1) + 4 * i
    def hstore(fp, i):
        if fp < 3:
            return ('s_add_u32 s3, s56, %d' % (i * 147456 + (fp + 1) * 8192),
                    'buffer_store_dwordx4 %s, v8, s[20:23], s3 offen %s' % (vr(hdst(fp, i)), cfg.hst), ('h', fp))
        return ('s_add_u32 s3, s58, %d' % (i * 294912),
                'buffer_store_dwordx4 %s, v8, s[20:23], s3 offen %s' % (vr(hdst(fp, 2 * i)), cfg.hst), ('h', fp))
    def setflag(level, tags, nm=None):
        def f():
            if nm: stamp(a, cfg, 'pre ' + nm)
            S.wait_tag(lambda t: t in tags)
            if nm: stamp(a, cfg, nm)
            S.emit('buffer_store_dword v%d, v%d, s[20:23], s89 offen offset:%d sc1' % (VFV, VFO, (level - 1) * 128), tag='f')
        return f
    POLL = lambda level: 'buffer_load_dword v%d, v%d, s[20:23], s86 offen offset:%d sc1' % (VPD, VPO, (level - 1) * 128)
    aq = []
    for fp in range(4):
        fs = FS[fp]
        for i in range(4):
            mid = (lambda: [S.emit(x) for x in colconst(FS[fp + 1], CS)]) if (i == 3 and fp < 3) else None
            gelu([(acc1(6 + f, i), CS + 4 * k, CS + 8 + 4 * k) for k, f in enumerate(fs)], i, hdst(fp, i), mid)
            if fp in cfg.gst and (fp < 3 or i & 1):
                x = hstore(fp, i if fp < 3 else i >> 1); S.emit(x[0]); S.emit(x[1], tag=x[2])
            if (fp, i) == cfg.w67at:
                for j in range(cfg.npre, 8): aq += k2_wdma(j)
            if (fp, i) == cfg.oflag: setflag(1, ['o'], 'oflag')()
            if (fp, i) == cfg.hflag:
                assert fp > max(cfg.gst) and cfg.hflag > cfg.oflag
                setflag(2, [('h', x) for x in cfg.gst], 'hflag')()
            if (fp, i) == cfg.opoll: S.emit(POLL(1))
            if (fp, i) == cfg.ocheck:
                stamp(a, cfg, 'pre ochk')
                poll_check(S, a, cfg, 'L_po', 1, POLL(1), VPD)
                stamp(a, cfg, 'ochk')
                for j in range(cfg.adist): aq += k2_aload(j)
            if (fp, i) == (3, 1):
                for t in (0, 1):
                    for (s, j4) in SJ: S.emit(k2_wread(t, 0, t, s, j4), tag=('r', 0))
    for x in aq:
        if x[0]: S.emit(x[0])
        S.emit(x[1], tag=x[2])
    stamp(a, cfg, 'gelu end')

    T = Timeline()
    wins = [(j, t) for j in range(15) for t in range(8)] + [(j, 2 * tp + h) for tp in range(4) for j in (15, 16, 17) for h in range(2)]
    for n, (j, t) in enumerate(wins):
        T.window()
        for k, (i, s) in enumerate(ORDER):
            d = acc2(t, i)
            T.mfma('v_mfma_f32_16x16x32_bf16 %s, %s, %s, %s' % (vr(d), ar(wb(n, s)), ar(aa(j, i, s)), '0' if (j == 0 and k % 2 == 0) else vr(d)))
    W = T.win
    for n in range(len(wins) - 2):
        j, t = wins[n + 2]
        for k, (s, j4) in enumerate(SJ): T.at(W[n] + k, k2_wread(n + 2, j, t, s, j4), ('r', j))
    XR, BR, VO = 24, 40, 44
    BARS = {2: 7, 4: 7, 6: 9, 8: 11, 10: 13, 13: 17}
    wq = list(range(8 if cfg.w67at else cfg.npre, 18))
    aqn = list(range(cfg.adist, 18))
    cnt = {}
    XL = 16384 + WB; XD = EX - XL
    afirst = {}
    for j in range(15):
        b = 64 * j
        ops = []
        while wq and wq[0] <= j + 6 and len(ops) < 8: ops += k2_wdma(wq.pop(0))
        al = []
        while aqn and (aqn[0] <= j + cfg.adist or j == 14):
            afirst[aqn[0]] = j; al += k2_aload(aqn.pop(0))
        st = []
        for fp in cfg.hs.get(j, []):
            st.append(hstore(fp, cnt.get(fp, 0))); cnt[fp] = cnt.get(fp, 0) + 1
        if j == 12:
            ops += [('s_add_u32 s3, s35, %d\ns_add_u32 m0, s57, %d' % (i << 15, i * 1024), 'buffer_load_dwordx4 v47, s[8:11], s3 offen lds', 'x') for i in range(4)]
        if j == 13:
            ops += [(None, 'buffer_load_dwordx2 %s, v%d, s[12:15], s38 offen offset:%d' % (vr(BR + 2 * h, 2), VO + 1, 32 * h), 'b') for h in range(2)]
        slots = [b + 8 * t + o for t in range(8) for o in (4, 6)]
        slots = slots[2:] if j in BARS else slots
        ops = ops + al[:4] + st[1:] + al[4:] + st[:1]
        place_dmas(T, ops, slots)
    assert not wq and not aqn
    for fp in range(4): assert fp in cfg.gst or cnt[fp] == (4 if fp < 3 else 2)
    for j, lim in BARS.items():
        def bar(lim=lim):
            S.wait_tag(lambda t: isinstance(t, tuple) and t[0] == 'w' and t[1] <= lim); S.emit('s_barrier')
        T.before(64 * j + 6, bar)
    lvl = 2; prevp = 0
    if not isinstance(cfg.hflag, tuple):
        prevp = cfg.hflag
        T.before(cfg.hflag, setflag(2, [('h', fp) for fp in cfg.gst], 'hflag'))
    KFIRST = {0: 4, 1: 8, 3: 12, 2: 14}
    done = set()
    for grp, p in [(cfg.gst, None)] + list(cfg.hfl):
        if p is not None:
            lvl += 1
            assert lvl <= 4 and not any(tg in [('h', fp) for fp in grp] for f in T.fill[p:] for _, tg in f)
            T.before(p, setflag(lvl, [('h', fp) for fp in grp])); prevp = p
        done |= set(grp)
        j = afirst[min(KFIRST[fp] for fp in grp)]
        first = min(k for k in range(64 * j, 64 * j + 64) if any(tg == 'a' for _, tg in T.fill[k]))
        assert first > prevp
        pp = first - cfg.hpoll
        T.at(pp - pp % 8 + 5, POLL(lvl))
        def hc1(lvl=lvl):
            if lvl == 2: stamp(a, cfg, 'pre hchk')
            poll_check(S, a, cfg, 'L_ph%d' % lvl, 1, POLL(lvl), VPD, 1)
        def hc2(lvl=lvl):
            poll_check(S, a, cfg, 'L_ph%d' % lvl, 1, POLL(lvl), VPD, 2)
            if lvl == 2: stamp(a, cfg, 'hchk')
        T.before(first - 1, hc1); T.before(first, hc2)
        lastchk = first
    assert done == {0, 1, 2, 3}
    if cfg.lst == 1:
        for j in range(18):
            T.before(64 * j, lambda j=j: a.e('s_memtime s[94:95]\ns_waitcnt lgkmcnt(0)\nv_writelane_b32 v9, s94, %d' % (j + 2)))
    T.before(64 * 4, lambda: stamp(a, cfg, 'g2 s4'))
    T.before(64 * 15, lambda: stamp(a, cfg, 'g2 s15'))
    su = ['v_add_u32 v%d, %d, v%d' % (VT + 8 + t, WB, VT + t) for t in range(8)] + ['v_add_u32 v%d, %d, v%d' % (VT + 16 + t, SLOT7, VT + t) for t in range(8)]
    if cfg.cpf & 4: su = cpf_addr(22) + [cpf_load(16, 22)] + su
    left = T.spread(8, su, vper=1); assert not left and T.last < 64 * 2
    if cfg.cpf & 4:
        for j in (4, 9, 13): T.at(64 * j + 8 + 7, cpf_load(16, 22))
    su = srd_txt(12, P_B2, 2048)[:3] + srd_txt(24, P_OUT, 2048 * 2048)[:3]
    su += ['v_and_b32 v%d, 1, v19' % VO, 'v_lshrrev_b32 v1, 1, v19', 'v_lshlrev_b32 v%d, 5, v%d' % (VO + 1, VO), 'v_lshl_add_u32 v%d, v1, 4, v%d' % (VO + 1, VO + 1),
           'v_and_b32 v2, 15, v0', 'v_lshrrev_b32 v3, 2, v2', 'v_xor_b32 v1, v1, v3', 'v_lshlrev_b32 v1, 4, v1', 'v_lshl_add_u32 v1, v%d, 3, v1' % VO,
           'v_lshl_add_u32 v1, v2, 6, v1', 'v_lshl_add_u32 v%d, v2, 11, v%d' % (VO, VO + 1), 'v_lshlrev_b32 v%d, 3, v19' % (VO + 1),
           's_and_b32 s60, s28, 1\ns_lshl_b32 s60, s60, 12', 's_lshr_b32 s57, s28, 1\ns_mul_i32 s57, s57, %d' % XD, 's_add_u32 s57, s57, s60\ns_add_u32 s57, s57, %d' % XL,
           'v_xor_b32 v3, 32, v1', 'v_add_u32 v%d, s57, v1' % VA2, 'v_add_u32 v%d, s57, v3' % (VA2 + 1),
           'v_and_b32 v1, 3, v0', 'v_xor_b32 v1, v1, v19', 'v_lshrrev_b32 v2, 2, v0', 'v_lshlrev_b32 v2, 11, v2', 'v_lshl_add_u32 v47, v1, 4, v2',
           's_lshl_b32 s38, s63, 8\ns_lshl_b32 s60, s62, 6', 's_add_u32 s38, s38, s60\ns_lshl_b32 s35, s54, 11', 's_add_u32 s35, s35, s38',
           's_mul_i32 s52, s88, %d\ns_add_u32 s52, s52, s47' % (12 * 16384), 's_add_u32 s52, s52, %d' % WS_P, 'v_mov_b32 v46, 8']
    XF = (41, 42, 55)
    for tp in range(3):
        su += ['s_add_u32 s60, s62, %d\ns_and_b32 s60, s60, 3' % (tp + 1), 's_mul_i32 s%d, s60, %d\ns_lshl_b32 s60, s60, 9' % (4 + tp, 3 * 16384),
               's_add_u32 s%d, s%d, s52\ns_add_u32 s%d, s60, s90' % (4 + tp, 4 + tp, XF[tp]), 's_add_u32 s%d, s%d, %d\ns_add_u32 s%d, s%d, %d' % (4 + tp, 4 + tp, tp * 16384, XF[tp], XF[tp], 4 * tp)]
    su += ['s_mul_i32 s60, s62, %d\ns_add_u32 s52, s52, s60' % (3 * 16384), 's_add_u32 s53, s52, 16384\ns_add_u32 s7, s52, 32768']
    lastsg = max(k for k, f in enumerate(T.fill) if any(tg == ('h', 3) for _, tg in f)) if 3 not in cfg.gst else 0
    left = T.spread(max(64 * 9, lastsg + 2), su, vper=1); assert not left and T.last < 64 * 12
    left = T.spread(lastchk + 2, ['v_and_b32 v%d, 1, v0' % VPO, 'v_lshlrev_b32 v%d, 2, v%d' % (VPO, VPO)], vper=1); assert not left
    for j in range(18):
        if k2_kind(j) != 's': continue
        su = []
        for u in range(2):
            for s in ((0, 1), (0, 1))[u]:
                hi, lo = aa(j, 2 * u, s) + 2, aa(j, 2 * u + 1, s)
                su += ['v_accvgpr_read_b32 v%d, a%d' % (VA2 + 2 + r, hi + r) for r in range(2)]
                su += ['v_accvgpr_mov_b32 a%d, a%d' % (hi + r, lo + r) for r in range(2)]
                su += ['v_accvgpr_write_b32 a%d, v%d' % (lo + r, VA2 + 2 + r) for r in range(2)]
        left = T.spread(64 * (j - 1) + (8 if cfg.adist == 3 else 36), su, vper=1); assert not left and T.last < 64 * j - 1
    bu = lambda k: (4, 5, 6, 7, 10, 11, 12, 13)[k]
    T.before(64 * 14 + 8, lambda: S.wait_tag(lambda t: t == 'x'))
    for k in range(8): T.at(64 * 14 + 8 * (1 + k // 2) + 5 + 2 * (k & 1), 'ds_read_b64 %s, v%d offset:%d' % (vr(XR + 2 * k, 2), VA2 + (k & 1), (k >> 1) * 1024))
    su = []
    for h in range(4): su += ['v_lshlrev_b32 v%d, 16, v%d' % (bu(2 * h), BR + h), 'v_and_b32 v%d, 0xffff0000, v%d' % (bu(2 * h + 1), BR + h)]
    left = T.spread(64 * 14 + 40, su, vper=1); assert not left and T.last < 64 * 15
    b = 64 * 15
    su = []
    for i in range(4):
        for h in range(4):
            d = acc2(6 + (h >> 1), i) + 2 * (h & 1); src = XR + 4 * i + h
            su += ['v_lshlrev_b32 v1, 16, v%d' % src, 'v_and_b32 v2, 0xffff0000, v%d' % src, 'v_add_f32 v1, v1, v%d' % bu(2 * h), 'v_add_f32 v2, v2, v%d' % bu(2 * h + 1),
                   'v_add_f32 v%d, v%d, v1' % (d, d), 'v_add_f32 v%d, v%d, v2' % (d + 1, d + 1)]
    for tp in range(3):
        L = []
        for i in range(4):
            d0, d1 = acc2(2 * tp, i), acc2(2 * tp + 1, i)
            L += [cvt(d0, d0), cvt(d0 + 1, d0 + 2), cvt(d0 + 2, d1), cvt(d0 + 3, d1 + 2),
                  ('buffer_store_dwordx4 %s, v8, s[20:23], s%d offen offset:%d sc1' % (vr(d0), 4 + tp, i * 1024), ('P', tp))]
        left = T.spread(b + 48 * (tp + 1) - 1, L); assert not left
    left = T.spread(b + 4, su); assert not left and T.last < b + 140, T.last - b
    def xflag(tp):
        def f():
            S.wait_tag(lambda t: t == ('P', tp))
            S.emit('buffer_store_dword v%d, v%d, s[20:23], s%d offen sc1' % (VFV, VFO, XF[tp]), tag='f')
        return f
    T.before(b + 48 * 2 + 20, xflag(0))
    T.before(b + 48 * 3 + 20, xflag(1))
    T.at(b + 48 * 3 + 30, 'buffer_load_dword v%d, v%d, s[20:23], s87 offen sc1' % (VPD, VPO))
    T.emit(S)
    if cfg.lst == 1: a.e('s_memtime s[94:95]\ns_waitcnt lgkmcnt(0)\nv_writelane_b32 v9, s94, 20\nv_accvgpr_write_b32 a253, v9')
    stamp(a, cfg, 'g2 end')
    xflag(2)()
    stamp(a, cfg, 'stored')
    poll_check(S, a, cfg, 'L_px', 1, 'buffer_load_dword v%d, v%d, s[20:23], s87 offen sc1' % (VPD, VPO), VPD)
    stamp(a, cfg, 'flag01')
    rb = lambda jx, i: RB + (jx * 4 + i) * 4
    S.emit('buffer_load_dword v47, v46, s[20:23], s87 offen sc1')
    for jx, so in enumerate(('s52', 's53')):
        for i in range(4): S.emit('buffer_load_dwordx4 %s, v8, s[20:23], %s offen offset:%d sc1' % (vr(rb(jx, i)), so, i * 1024))
    poll_check(S, a, cfg, 'L_py', 1, 'buffer_load_dword v47, v46, s[20:23], s87 offen sc1', 47)
    stamp(a, cfg, 'flag2')
    for i in range(4): S.emit('buffer_load_dwordx4 %s, v8, s[20:23], s7 offen offset:%d sc1' % (vr(rb(2, i)), i * 1024))
    def addp(jx, i):
        r = rb(jx, i)
        for h in range(4):
            S.emit('v_lshlrev_b32 v%d, 16, v%d\nv_and_b32 v%d, 0xffff0000, v%d' % (24 + 2 * h, r + h, 25 + 2 * h, r + h))
        for h in range(4):
            d = acc2(6 + (h >> 1), i) + 2 * (h & 1)
            S.emit(pk('add', d, d, 24 + 2 * h))
    for jx in range(2):
        for i in range(4): addp(jx, i)
    for i in range(4):
        addp(2, i)
        d0, d1 = acc2(6, i), acc2(7, i)
        S.emit('\n'.join([cvt(d0, d0), cvt(d0 + 1, d0 + 2), cvt(d0 + 2, d1), cvt(d0 + 3, d1 + 2)]))
        S.emit('s_add_u32 s3, s35, %d' % (i << 15))
        S.emit('v_permlane16_swap_b32 v%d, v%d\nv_permlane16_swap_b32 v%d, v%d' % (d0, d0 + 2, d0 + 1, d0 + 3))
        S.emit('buffer_store_dwordx4 %s, v%d, s[24:27], s3 offen %s' % (vr(d0), VO, cfg.ost))
    if cfg.stamps:
        a.e('s_waitcnt vmcnt(0)')
        stamp(a, cfg, 'end')
    stamp_flush(a, cfg)
    a.e('s_endpgm')
    for x in OUTLINE: a.raw(x.rstrip('\n'))
    a.label('L_end')
    a.e('s_endpgm')
    return hazard.fix(a.text())

def gen_amp(cfg):
    na, nb, mult, wg = cfg.amp
    ia, ib = STAMPS.index(na), STAMPS.index(nb)
    a = Asm()
    a.e('s_cmp_ge_u32 s2, 1\ns_cbranch_scc1 KA_end')
    a.e('s_load_dwordx2 s[4:5], s[0:1], 80\ns_waitcnt lgkmcnt(0)')
    a.srd(8, 4, WS_BYTES)
    a.e('s_mov_b32 s12, %d\ns_mov_b32 s13, %d' % (WS_TS + ia * 8, WS_TS + ib * 8))
    if wg >= 0: a.e('v_mov_b32 v1, %d' % (wg * 1024))
    else: a.e('v_lshlrev_b32 v1, 10, v0')
    for k in range(4):
        a.e('buffer_load_dword v%d, v1, s[8:11], s12 offen\nbuffer_load_dword v%d, v1, s[8:11], s13 offen' % (2 + k, 6 + k))
        if wg < 0: a.e('v_add_u32 v1, 0x10000, v1')
    a.e('s_memrealtime s[16:17]\ns_waitcnt vmcnt(0) lgkmcnt(0)')
    a.e('v_min_u32 v2, v2, v3\nv_min_u32 v4, v4, v5\nv_min_u32 v2, v2, v4\nv_max_u32 v6, v6, v7\nv_max_u32 v8, v8, v9\nv_max_u32 v6, v6, v8')
    for x in allreduce64('v_min_u32', [2], [10]) + allreduce64('v_max_u32', [6], [10]): a.e(x)
    a.e('v_sub_u32 v2, v6, v2\ns_nop 1\nv_readfirstlane_b32 s14, v2\ns_nop 3')
    a.e('s_min_u32 s14, s14, 20000\ns_mul_i32 s14, s14, %d' % mult)
    a.label('KA_spin')
    a.e('s_memrealtime s[18:19]\ns_waitcnt lgkmcnt(0)\ns_sub_u32 s15, s18, s16\ns_cmp_lt_u32 s15, s14\ns_cbranch_scc1 KA_spin')
    a.label('KA_end')
    a.e('s_endpgm')
    return hazard.fix(a.text())

def build(cfg, header=''):
    body = gen(cfg)
    launches = [(NAME + '_kernel', 256, 256, LDS_BYTES)]; kernels = [(NAME + '_kernel', body, 512, 256)]
    if cfg.amp:
        launches.append(('amp_kernel', 1, 64, 0)); kernels.append(('amp_kernel', gen_amp(cfg), 16, 16))
    txt = build_file(launches, kernels)
    if not (cfg.aslist or cfg.amp):
        txt = txt.replace('; @launch kernel=%s_kernel grid' % NAME, '; @launch grid')
    return header + txt

if __name__ == '__main__':
    HEADER = open('cdna_kernels/%s.s.ref' % NAME).read().split('; Override launch')[0]
    out = sys.argv[1]
    kw = {}
    for x in sys.argv[2:]:
        k, v = x.split('=', 1); kw[k] = eval(v)
    open(out, 'w').write(build(Cfg(**kw), HEADER))
    print(out, 'left after last MFMA:', gen.info)
```

```python
import sys, struct, math
from asmlib import *
from sched import Stream
import hazard

NAME = 'parallel_sum__sliding_local_dilated__dense_activation_gelu__prompt'
WS_BYTES = 268435456
WS_RSTD = 0
WS_NM = 8192
WS_HFLAG = 0x10000
WS_XFLAG = 0x20000
WS_H = 1 << 20
WS_P = 32 << 20
WS_TS = 250 << 20
SPIN_MAX = 0x20000

def f32(x):
    return '0x%08x' % struct.unpack('<I', struct.pack('<f', x))[0]
def vr(b, n=4, f='v'):
    return '%s[%d:%d]' % (f, b, b + n - 1) if n > 1 else '%s%d' % (f, b)
def ar(b, n=4):
    return vr(b, n, 'a')

class Cfg:
    rot = 4
    wofs = 1
    stamps = False
    amp = None
    aslist = False
    hst = 'sc1'
    ost = ''
    n1 = 2
    n2 = 7
    vper = 2
    vstart = 9
    oflag = (0, 2)
    opoll = (1, 3)
    ocheck = (2, 2)
    hflag = (3, 2)
    hpoll = 40
    gst = (0, 1)
    w67at = (0, 3)
    hs = {0: [3, 3], 1: [2, 2], 2: [2], 3: [2]}
    hfl = [((2, 3), 5 * 64 + 40)]
    lst = False
    over = 0
    warm = 1
    looks = ()
    atouch = 0
    chk3 = 0
    wxor = 4
    c2w = 15
    hsched = 0
    adist = 2
    sleep = 1
    rot0 = 4
    nx0 = 8
    nq0 = 0
    nsu = 0
    npeel = 4
    ncnt = (20, 18, 15)
    dense = (0,)
    statstep = 1
    statw = 12
    grp = {4: 'w'}
    nmerge = 5
    nown = 5
    aextra = {4: 2, 5: 2, 6: 2, 7: 1, 8: 1, 9: 1, 10: 1, 12: 6}
    xfl = (68, 68, 68)
    xat = (7, 8, 9, 11)
    xw = -90
    cpfat = (7,)
    xp = 30
    ra = None
    over0 = 0
    npre = 6
    w2first = 14
    w2last = 26
    cpf = 7
    def __init__(self, **kw):
        for k, v in kw.items():
            assert hasattr(self, k), k
            setattr(self, k, v)

STAMPS = ['start', 'karg', 'rows', 'data0', 'loop', 'last', 'g1 end', 'attn st', 'pre oflag', 'oflag', 'pre ochk', 'ochk', 'pre hflag', 'hflag', 'gelu end',
          'g2 s4', 'g2 end', 'xpoll', 'flag01', 'xland', 'flag2', 'issued', 'end']
TSA = 200
def stamp(a, cfg, name):
    if not cfg.stamps: return
    if cfg.stamps == 'min' and name not in ('data0', 'loop', 'last', 'g1 end', 'gelu end', 'g2 end', 'end'): return
    if name not in STAMPS: return
    idx = STAMPS.index(name)
    a.e('s_memrealtime s[92:93]\ns_memtime s[94:95]\ns_waitcnt lgkmcnt(0)')
    a.e('v_accvgpr_write_b32 a%d, s92\nv_accvgpr_write_b32 a%d, s94' % (TSA + 2 * idx, TSA + 1 + 2 * idx))
def stamp_flush(a, cfg):
    if not cfg.stamps: return
    a.e('s_lshl_b32 s96, s2, 2\ns_add_u32 s96, s96, s28\ns_lshl_b32 s96, s96, 8')
    a.e('s_add_u32 s96, s96, %d' % WS_TS)
    if cfg.lst:
        a.e('s_add_u32 s95, s96, 0x100000\nv_lshlrev_b32 v1, 2, v0\nbuffer_store_dword a253, v1, s[20:23], s95 offen')
    a.e('s_mov_b64 exec, 1')
    a.e('v_mov_b32 v1, 0')
    for idx in range(len(STAMPS)):
        a.e('buffer_store_dwordx2 %s, v1, s[20:23], s96 offen offset:%d' % (ar(TSA + 2 * idx, 2), idx * 8))

def allreduce64(op, x, t):
    L = []
    d = 'row_mask:0xf bank_mask:0xf'
    for m in ('quad_perm:[1,0,3,2]', 'quad_perm:[2,3,0,1]', 'row_half_mirror', 'row_mirror'):
        for xx in x:
            L.append('%s_dpp v%d, v%d, v%d %s %s' % (op, xx, xx, xx, m, d))
    for sw in ('v_permlane16_swap_b32', 'v_permlane32_swap_b32'):
        for xx, tt in zip(x, t): L.append('v_mov_b32 v%d, v%d' % (tt, xx))
        for xx, tt in zip(x, t): L.append('%s v%d, v%d' % (sw, xx, tt))
        for xx, tt in zip(x, t): L.append('%s v%d, v%d, v%d' % (op, xx, xx, tt))
    return L

def pk(op, d, *src, sel=None, selhi=None):
    s = 'v_pk_%s_f32 %s, %s' % (op, vr(d, 2), ', '.join(x if isinstance(x, str) else vr(x, 2) for x in src))
    if sel is not None: s += ' op_sel:[%s]' % ','.join(map(str, sel))
    if selhi is not None: s += ' op_sel_hi:[%s]' % ','.join(map(str, selhi))
    return s
def cvt(d, x): return 'v_cvt_pk_bf16_f32 v%d, v%d, v%d' % (d, x, x + 1)
def srd_txt(d, b, nbytes):
    return ['s_mov_b32 s%d, s%d' % (d, b), 's_and_b32 s%d, s%d, 0xffff' % (d + 1, b + 1),
            's_mov_b32 s%d, 0x%x' % (d + 2, nbytes), 's_mov_b32 s%d, 0x00020000' % (d + 3)]

CPF_LANES = 7
def cpf_addr(v):
    return ['v_min_u32 v%d, %d, v0' % (v, CPF_LANES - 1), 'v_lshlrev_b32 v%d, 7, v%d' % (v, v), 'v_mov_b32 v%d, s101' % (v + 1),
            'v_add_co_u32 v%d, vcc, s100, v%d' % (v, v), 'v_addc_co_u32 v%d, vcc, 0, v%d, vcc' % (v + 1, v + 1)]
def cpf_load(d, v): return 'global_load_dword a%d, %s, off' % (d, vr(v, 2))

def icost(x):
    if callable(x): return 2, 0
    n = v = 0
    for ln in x.split('\n'):
        if ln.startswith('v_'): v += 2 if ln.startswith(hazard.TRANS + ('v_permlane',)) else 1
        elif ln.startswith(('ds_', 'buffer_', 'global_')): n += 2
        else: n += 1
    return n, v

class Timeline:
    def __init__(self, grp=4):
        self.mf = []; self.fill = []; self.pre = []; self.win = []; self.grp = grp
    def window(self): self.win.append(len(self.mf))
    def mfma(self, t):
        self.mf.append(t); self.fill.append([]); self.pre.append([])
    def at(self, p, x, tag=None):
        f = self.fill[p]
        k = len(f)
        if not callable(x) and not x.startswith('v_'):
            while k > 0 and not callable(f[k - 1][0]) and icost(f[k - 1][0])[0] == 0: k -= 1
        f.insert(k, (x, tag))
    def before(self, p, fn):
        self.pre[p].append(fn)
    def load(self, p):
        n = v = 0
        if p + 1 in self.win: n += 1
        if p + 1 < len(self.mf) and self.pre[p + 1]: n += 2
        for x, _ in self.fill[p]:
            a, b = icost(x); n += a; v += b
        return n, v
    def spread(self, p, items, vper=2, over=0):
        items = list(items)
        while items and p < len(self.mf):
            it = items[0]
            if isinstance(it, tuple) and it[0] == 'SKIP':
                p += it[1]; items.pop(0); continue
            x, tag = it if isinstance(it, tuple) else (it, None)
            if not callable(x) and x.startswith('v_mfma'):
                p += 1
                self.mf.insert(p, x); self.fill.insert(p, []); self.pre.insert(p, [])
                self.win = [q + 1 if q >= p else q for q in self.win]
                items.pop(0); continue
            n, v = self.load(p)
            cn, cv = icost(x)
            if cn and v: ok = False
            elif n + v == 0: ok = True
            else: ok = max(n + cn, 1) + v + cv <= 3 + (over if not cn else 0) and v + cv <= max(vper, cv)
            if ok:
                self.fill[p].append((x, tag)); items.pop(0)
            else: p += 1
        self.last = p
        return items
    def sched(self, p, items, vper=2, over=0, look=48, dslat=7, after=None):
        pend = []
        for it in items:
            x, tag = it if isinstance(it, tuple) else (it, None)
            r = set(); w = set(); mem = callable(x); kind = 'f' if callable(x) else ''
            if not callable(x):
                for ln in x.split('\n'):
                    i = hazard.parse(ln); r |= i.r; w |= i.w
                    if i.ds or i.vmem: mem = True
                    if i.ds and i.w: kind = 'r'
                    if i.ds and not i.w: kind = 'w'
                    if i.mfma: kind = 'm'
            pend.append([x, tag, r, w, mem, kind])
        ready = {}
        lastw = -99
        self.pos = {}
        while pend and p < len(self.mf):
            again = True
            while again:
                again = False
                n, v = self.load(p)
                for phase in (0, 1, 2):
                    br = set(); bw = set(); bmem = False
                    for k, (x, tag, r, w, mem, kind) in enumerate(pend[:look]):
                        free = not (r & bw or w & bw or w & br or (mem and bmem))
                        br |= r; bw |= w; bmem = bmem or mem
                        if not free: continue
                        late = kind == 'm' or (not callable(x) and (x.startswith('v_permlane') or '_dpp' in x))
                        if any(ready.get(q, -9) + late > p for q in r | w): continue
                        if after and not callable(x) and x in after and p < self.win[after[x]]: continue
                        if kind == 'f' and p < lastw + 3: continue
                        if kind == 'm':
                            if phase != 2: continue
                            p += 1
                            self.mf.insert(p, x); self.fill.insert(p, []); self.pre.insert(p, [])
                            self.win = [q + 1 if q >= p else q for q in self.win]
                            for q in w: ready[q] = p + 4
                            pend.pop(k); again = True; break
                        cn, cv = icost(x)
                        if (phase == 0) != (cn > 0) or phase == 2: continue
                        if cn and v: continue
                        if not (n + v == 0 or (max(n + cn, 1) + v + cv <= 3 + (over if not cn else 0) and v + cv <= max(vper, cv))): continue
                        self.fill[p].append((x, tag)); self.pos[id(x)] = p
                        if kind == 'r':
                            for q in w: ready[q] = p + dslat
                        elif kind == 'w': lastw = p
                        elif cv:
                            for q in w: ready[q] = p if q[0] == 'v' and not x.startswith(hazard.TRANS) else p + 1
                        pend.pop(k); again = True; break
                    if again: break
            p += 1
        self.last = p
        return [(x, tag) for x, tag, *_ in pend]
    def emit(self, S):
        starts = set()
        for q in self.win: starts |= {q, q + self.grp}
        def regs(k):
            r = set()
            for m in self.mf[k:k + self.grp]: r |= {x for x in hazard.parse(m).ab if x[0] == 'a'}
            return r
        for k in range(len(self.mf)):
            for fn in self.pre[k]: fn()
            if k in starts: S.need(regs(k))
            S.emit(self.mf[k])
            f = self.fill[k]
            j = 0
            while j < len(f) and (callable(f[j][0]) or not f[j][0].startswith('v_')): j += 1
            for n, (x, tag) in enumerate(f):
                if n == j and k + 1 in starts and not self.pre[k + 1]: S.need(regs(k + 1))
                if callable(x): x()
                else: S.emit(x, tag=tag)

P_X, P_WQKV, P_WO, P_W1, P_B1, P_W2, P_B2, P_OUT, P_DBG, P_WS = 64, 66, 68, 72, 74, 76, 78, 80, 82, 84

XS = 32768
WB = 65536
WSLOT = 28688
W_FFN = 12288
W_HALO = 26624
W_ONES = 28672
EX = WB + 3 * WSLOT
EX_B1 = 832
EX_ST = 1280
EX_KV = 3840
LDS_BYTES = 163840
assert EX + EX_KV + 8192 <= LDS_BYTES
ACC1 = 48
def acc1(t, i): return ACC1 + (t * 4 + i) * 4
def xa(buf, i, s): return buf * 32 + (i * 2 + s) * 4
HA0, HA1 = 64, 192
def wa(n, s): return 72 + n * 8 + s * 4
EXA = 176
EXTRAS = [[2, 6, 7, 12], [3, 8, 9], [4, 10, 11], [5, 0, 1]]
ORDER = [(0, 0), (0, 1), (1, 1), (1, 0), (2, 0), (2, 1), (3, 1), (3, 0)]
SJ = ((0, 0), (0, 1), (1, 0), (1, 1))

def k1_wread(n, t, s, j4, vq=14, vf=16):
    d = wa(n, s) + 2 * j4
    if t < 6:
        return 'ds_read_b64_tr_b16 %s, v%d offset:%d' % (ar(d, 2), vq + (t & 1), (t >> 1) * 4096 + j4 * 256 + s * 2048)
    return 'ds_read_b64_tr_b16 %s, v%d offset:%d' % (ar(d, 2), vf, W_FFN + (t - 6) * 32 + j4 * 1792 + s * 7168)
def k1_xread(buf, slot, i, s):
    return 'ds_read_b128 %s, v%d offset:%d' % (ar(xa(buf, i, s)), 10 + s, slot * XS + i * 2048)
def k1_mfma(t, d, df, x, w, first=False):
    if t in (4, 5): A, B = x, w
    else: A, B = w, x
    return 'v_mfma_f32_16x16x32_bf16 %s, %s, %s, %s' % (vr(d, 4, df), ar(A), ar(B), '0' if first else vr(d, 4, df))

def k1_dmas(w, xslot, wslot=None):
    q = []; f = []; x = []
    def m0(sg, woff, c):
        if w is None: return 's_add_u32 m0, %s, %d' % (sg, WB + wslot * WSLOT + c)
        if wslot is None: return 's_add_u32 m0, s34, %d' % (woff + c)
        return 's_mov_b32 m0, %d' % (WB + wslot * WSLOT + woff + c)
    ww = w or 0
    for ii in range(3):
        q.append((m0('s46', ww * 1024, ii * 4096), 'buffer_load_dwordx4 v%d, s[12:15], s32 offen lds' % (3 + ii)))
    for ii in range(4):
        su = m0('s47', ww * 4096, W_FFN + ii * 1024)
        if ii >= 2 and w is None: srd, so = 's[24:27]', 's40'
        elif ii >= 2 and w == 3: srd, so = 's[8:11]', 's31'
        else: srd, so = 's[16:19]', 's33'
        f.append((su, 'buffer_load_dwordx4 v%d, %s, %s offen lds' % (6 + ii, srd, so)))
    for i in range(8):
        su = 's_mov_b32 m0, %d' % (xslot * XS + w * 8192 + i * 1024) if w is not None else 's_add_u32 m0, s39, %d' % (xslot * XS + i * 1024)
        if i >= 2:
            if i % 2 == 0: su += '\ns_add_u32 s37, s31, %d' % ((i // 2) * 32768)
            so = 's37'
        else: so = 's31'
        x.append((su, 'buffer_load_dwordx4 v%d, s[8:11], %s offen lds' % (1 + (i & 1), so)))
    return q, f, x
def k1_mix(q, f, x):
    return [q[0], x[0], f[0], x[1], f[1], x[2], q[1], x[3], f[2], x[4], f[3], x[5], q[2], x[6], x[7]]

def k1_kcalc(cfg, first=False):
    if cfg.rot:
        W = cfg.rot0 if first else cfg.rot
        s = 's_add_u32 s38, s36, s41\ns_and_b32 s38, s38, %d\ns_andn2_b32 s33, s36, %d\ns_or_b32 s38, s38, s33\n' % (W - 1, W - 1)
        if cfg.wofs: s += 's_xor_b32 s38, s38, s97\n'
        k = 's38'
    else:
        s = ''; k = 's36'
    s += 's_lshl_b32 s31, %s, 7\ns_mul_i32 s32, %s, %d\ns_mul_i32 s33, %s, %d' % (k, k, 64 * 6144, k, 64 * 7168)
    return s.split('\n')

def place_dmas(T, ops, slots):
    nl = sum(1 for o in ops if o[0] != 'K')
    assert nl <= len(slots), (nl, len(slots))
    pick = [slots[(k * len(slots)) // nl] for k in range(nl)]
    k = 0; prev = 0
    for o in ops:
        if o[0] == 'K':
            end = (pick[k] - 1) if k < nl else len(T.mf) - 1
            room = max(end - prev, 1)
            per = (len(o[1]) + room - 1) // room
            p = min(prev + 1, end) if room > 1 or end > prev else prev
            for j in range(0, len(o[1]), per):
                T.at(min(p, end), '\n'.join(o[1][j:j + per])); p += 1
        else:
            p = pick[k]; k += 1
            if o[0]: T.at(p - 1, o[0])
            T.at(p, o[1], o[2]); prev = p

def k1_step(S, cfg, w, par, mode='loop', setup=()):
    sn = int(mode[1]) if mode != 'loop' else None
    T = Timeline()
    ex_at = {}
    for e, t in enumerate(EXTRAS[w]):
        tw = t if t >= 2 else t + 7
        if mode == 's0': tw = max(tw, 5)
        ex_at.setdefault(tw, []).append((e, t))
    for t in range(13):
        T.window()
        for n, (i, s) in enumerate(ORDER):
            T.mfma(k1_mfma(t, acc1(t, i), 'v', xa(par, i, s), wa(t, s), first=(mode == 's0' and n % 2 == 0)))
        for (e, te) in ex_at.get(t, []):
            for s in (0, 1):
                T.mfma(k1_mfma(te, EXA + 4 * e, 'a', HA0 + 4 * s, wa(te, s), first=(mode == 's0' and s == 0)))
    W = T.win
    for t in range(13):
        tt = (t + 2) % 13
        seq = [k1_wread(tt, tt, s, j4) for (s, j4) in SJ]
        if t >= 11: seq += [k1_xread(1 - par, 1 - par, i, s) for (i, s) in (ORDER[:4] if t == 11 else ORDER[4:])]
        for k, r in enumerate(seq): T.at(W[t] + k, r)
    hw = 4 if mode == 's0' else 0
    T.at(W[hw] + 4, 'ds_read_b128 %s, v12' % ar(HA0))
    T.at(W[hw] + 5, 'ds_read_b128 %s, v13' % ar(HA0 + 4))
    if mode == 'loop':
        T.at(W[1] + 4, 's_cmp_eq_u32 s34, %d\ns_cselect_b32 s35, %d, s42' % (WB + WSLOT, -2 * WSLOT & 0xffffffff))
        dl = 's35'
    else: dl = str(WSLOT if sn % 3 != 2 else -2 * WSLOT & 0xffffffff)
    T.at(W[6] + 3, 'v_add_u32 v12, %s, v12' % dl)
    T.at(W[6] + 4, 'v_add_u32 v13, %s, v13' % dl)
    T.at(W[8] + 3, 'v_add_u32 v14, %s, v14' % dl)
    T.at(W[8] + 4, 'v_add_u32 v15, %s, v15' % dl)
    T.at(W[10] + 4, 'v_add_u32 v16, %s, v16' % dl)
    kstep = ['s_add_u32 s36, s36, 1'] + k1_kcalc(cfg)
    kstep0 = ['s_add_u32 s36, s36, 1'] + k1_kcalc(cfg, True)
    if mode == 'loop':
        tagn = ('d', par)
        ops = [(su, ld, tagn) for su, ld in k1_mix(*k1_dmas(w, par))]
        ops.append(('K', kstep + ['s_add_u32 s34, s34, %d' % WSLOT, 's_cmp_eq_u32 s34, %d\ns_cselect_b32 s34, %d, s34' % (WB + 3 * WSLOT, WB)]))
        slots = []
        for t in range(11):
            if t in (2, 4, 7, 9): slots.append(W[t] + 4)
            slots.append(W[t] + 6)
        place_dmas(T, ops, slots)
        if par == 0:
            T.at(W[3] + 3, 's_cmp_eq_u32 s36, 14\ns_cselect_b32 s50, 256, 0')
            T.at(W[3] + 4, 'buffer_load_dword v17, v18, s[48:51], 0 offen sc1', tagn)
        elif w == 0:
            T.at(W[3] + 3, 's_cmp_eq_u32 s36, s98\ns_cselect_b32 s50, 256, 0')
            T.at(W[3] + 4, 'buffer_atomic_add v23, v24, s[48:51], 0 offen sc1', tagn)
        if par == 1 and cfg.cpf & 2: T.at(W[5] + 4, cpf_load(252, 44), tagn)
        need = lambda t: t != tagn
    else:
        Q = []
        for u in range(1, cfg.npeel + 2):
            if u > 1: Q.append(('K', kstep0 if u < 4 else kstep))
            q_, f_, x_ = k1_dmas(w, u & 1, u % 3)
            od = k1_mix(q_, f_, x_)
            if cfg.grp.get(u) == 'w': od = [q_[0], f_[0], f_[1], q_[1], f_[2], f_[3], q_[2]] + x_
            if cfg.grp.get(u) == 'x': od = x_ + [q_[0], f_[0], f_[1], q_[1], f_[2], f_[3], q_[2]]
            Q += [(su, ld, ('p', u)) for su, ld in od]
        cnt = [cfg.n1] + list(cfg.ncnt) + [99]
        for c in cnt[:sn + 2]:
            ops = []
            while Q and sum(1 for o in ops if o[0] != 'K') < c: ops.append(Q.pop(0))
        assert all(o[2][1] <= sn + 2 for o in ops if o[0] != 'K') and not any(o[0] != 'K' and o[2][1] <= sn + 1 for o in Q)
        if sn == cfg.statstep:
            rows = [(None, 'buffer_load_dwordx4 %s, v47, s[8:11], 0 offen offset:%d' % (vr(26 + 4 * k), k * 512), 'rows') for k in range(4)]
            x = 'buffer_load_dwordx2 a[246:247], v42, s[24:27], s53 offen\nbuffer_load_dwordx2 a[250:251], v42, s[24:27], s53 offen offset:32'
            if w == 1: x += '\nbuffer_load_dword a254, v43, s[4:7], s52 offen'
            rows.append((None, x, 'rows'))
            k = max([n + 1 for n, o in enumerate(ops) if o[0] != 'K' and o[2][1] == sn + 1] + [0])
            ops = ops[:k] + rows + ops[k:]
        if sn == cfg.npeel - 1: ops.append(('K', kstep))
        slots = []
        for t in range(12):
            if t > 0 or sn == 0: slots.append(W[t] + 4)
            slots.append(W[t] + 6)
        nl = sum(1 for o in ops if o[0] != 'K')
        if sn in cfg.dense: slots = slots[:nl]
        elif nl <= len(slots) - 2: slots = slots[:-2]
        place_dmas(T, ops, slots)
        need = lambda t: t == ('p', sn + 1)
        if mode == 's0':
            def bar0():
                S.wait_tag(lambda t: t == ('p', 0)); S.emit('s_barrier')
            T.before(W[4], bar0)
    def bar():
        S.wait_tag(need, lg=0); S.emit('s_barrier')
    T.before(W[11], bar)
    left = [(x, None) if not isinstance(x, tuple) else x for x in setup]
    if mode != 'loop':
        assert not any(t == ('p', sn + 1) for f in T.fill[W[11] - 1:] for _, t in f)
        assert not any(t == 'rows' for f in T.fill[W[cfg.statw]:] for _, t in f)
        assert not any(t == ('p', sn + 2) and 's[8:11]' in x for f in T.fill[:W[1]] for x, t in f)
        if sn >= cfg.statstep and setup:
            left = T.sched(W[cfg.statw] if sn == cfg.statstep else 0, setup, vper=cfg.vper, over=cfg.over0)
    if cfg.lst == 3 and mode != 'loop':
        for n in range(13):
            T.pre[T.win[n]].insert(0, lambda n=n: S.a.e('s_memtime s[94:95]\ns_waitcnt lgkmcnt(0)\nv_writelane_b32 v17, s94, %d' % (n + 3 + 13 * sn)))
    T.emit(S)
    if cfg.lst == 3 and sn == cfg.npeel - 1: S.a.e('s_memtime s[94:95]\ns_waitcnt lgkmcnt(0)\nv_writelane_b32 v17, s94, %d\nv_accvgpr_write_b32 a253, v17' % (3 + 13 * cfg.npeel))
    return left

ACC2 = 128
def acc2(t, i): return ACC2 + (t * 4 + i) * 4
ABUF = (0, 32, 64, 128, 160)
def aa(j, i, s): return ABUF[j % 5] + (i * 2 + s) * 4
def wb(n, s): return 96 + (n % 4) * 8 + s * 4
VA, VA2, VT, RB = 48, 52, 56, 80
VPD, VPO, VFV, VFO = 17, 18, 14, 15
SLOT7 = WB + 2 * WSLOT + W_FFN
def k2_slot(sl):
    if sl < 4:
        o = (sl >> 1) * XS + (sl & 1) * 4096
        return (0, o, 8192, 's39', 8192, o)
    if sl == 7: return (2, 0, 4096, 's47', 4096, SLOT7)
    o = {4: WSLOT, 5: WSLOT + 16384, 6: 0}[sl]
    return (1, o, 4096, 's47', 4096, WB + o)
def k2_wread(n, j, t, s, j4):
    bs, o, st, _, _, _ = k2_slot(j % 8)
    return 'ds_read_b64_tr_b16 %s, v%d offset:%d' % (ar(wb(n, s) + 2 * j4, 2), VT + 8 * bs + t, o + (2 * s + j4) * st)
KSEQ = [('o', u) for u in range(4)] + [(0, u) for u in range(4)] + [(1, u) for u in range(4)] + [('s', 0), ('s', 1)] + [(2, u) for u in range(4)]
def k2_kind(j): return KSEQ[j][0]
def k2_woff(j):
    kd, u = KSEQ[j]
    if kd == 'o': return ['s_add_u32 s32, s43, %d' % (u << 17)]
    if kd == 's': return ['s_add_u32 s32, s44, %d' % (u * 448 * 2048)]
    return ['s_add_u32 s32, s59, %d' % ((224 * u + 32 * kd) * 2048)]
def k2_wdma(j):
    _, _, _, sg, _, c = k2_slot(j % 8)
    srd = 's[12:15]' if j < 4 else 's[16:19]'
    L = []
    for ii in range(4):
        su = 's_add_u32 m0, %s, %d' % (sg, c + ii * 1024)
        if ii == 0: su = k2_woff(j)[0] + '\n' + su
        if ii == 2: su = 's_add_u32 s32, s32, 16384\n' + su
        L.append((su, 'buffer_load_dwordx4 v%d, %s, s32 offen lds' % (20 + (ii & 1), srd), ('w', j)))
    return L
def k2_aload(j):
    kd, u = KSEQ[j]
    off = u * 2048 + (0 if kd == 'o' else 32768 if kd == 's' else 8192 * (kd + 1))
    L = []
    for (i, s) in ORDER:
        L.append((None, 'buffer_load_dwordx4 %s, v%d, s[20:23], s31 offen offset:%d sc1' % (ar(aa(j, i, s)), VA + i, s * 1024), 'a'))
    L[0] = ('s_mov_b32 s31, %d' % off, L[0][1], L[0][2])
    return L

OUTLINE = []
def poll_check(S, a, cfg, name, level, load, vd, part=0):
    if part != 2: S.emit('v_cmp_gt_u32 vcc, %d, v%d' % (level, vd))
    if part == 1: return
    if part == 0: a.e('s_nop 0')
    a.e('s_cbranch_vccnz %s_wait' % name)
    a.label(name + '_ok')
    o = Asm()
    o.label(name + '_wait')
    o.e('s_mov_b32 s99, 0')
    o.label(name + '_spin')
    if cfg.sleep: o.e('s_sleep %d' % cfg.sleep)
    o.e(load)
    o.e('s_add_u32 s99, s99, 1\ns_waitcnt vmcnt(0)')
    o.e('v_cmp_gt_u32 vcc, %d, v%d\ns_nop 0' % (level, vd))
    o.e('s_cbranch_vccz %s_ok' % name)
    o.e('s_cmp_lt_u32 s99, %d\ns_cbranch_scc1 %s_spin\ns_branch %s_ok' % (SPIN_MAX, name, name))
    OUTLINE.append(o.text())

RN, CC, CS, TG = 26, 34, 80, 36
TROT = (45, 40, 61, 46)
def colconst(fs, b):
    L = []
    for k, f in enumerate(fs):
        L.append('ds_read_b128 %s, v6 offset:%d' % (vr(b + 4 * k), (6 + f) * 64))
        L.append('ds_read_b128 %s, v6 offset:%d' % (vr(b + 8 + 4 * k), EX_B1 + f * 64))
    return L

def k1_last(S, a, cfg, w):
    T = Timeline()
    th = 2 + w
    seqB = [th] + [t for t in (2, 3, 4, 5) if t != th] + [0, 1]
    own = [t for t in EXTRAS[w] if t >= 6]
    seqD = own + [t for t in range(6, 13) if t not in own]
    wins = [(t, 0) for t in range(6)] + [(t, 1) for t in seqB] + [(t, 0) for t in range(6, 13)] + [(t, 1) for t in seqD]
    widx = {x: n for n, x in enumerate(wins)}
    ex_at = {}
    for e, t in enumerate(EXTRAS[w]):
        for st in (0, 1):
            n = widx[(t, st)]
            ex_at.setdefault(max(n, 2), []).append((e, t, st, n))
    for n, (t, st) in enumerate(wins):
        T.window()
        exs = [k1_mfma(te, EXA + 4 * e, 'a', (HA0, HA1)[se] + 4 * s, wa(ne % 13, s)) for (e, te, se, ne) in ex_at.get(n, []) for s in (0, 1)]
        main = [k1_mfma(t, acc1(t, i), 'v', xa(st, i, s), wa(n % 13, s)) for (i, s) in ORDER]
        for x in (exs + main if n >= 6 else main + exs): T.mfma(x)
    W = T.win
    for n in range(24):
        t, st = wins[n + 2]
        seq = [k1_wread((n + 2) % 13, t, s, j4, *((14, 16), (3, 5))[st]) for (s, j4) in SJ]
        if n in (4, 5): seq += [k1_xread(1, 1, i, s) for (i, s) in (ORDER[:4] if n == 4 else ORDER[4:])]
        for k, r in enumerate(seq): T.at(W[n] + k, r)
    T.at(W[0] + 4, 'ds_read_b128 %s, v12' % ar(HA0))
    T.at(W[0] + 5, 'ds_read_b128 %s, v13' % ar(HA0 + 4))
    T.at(W[4] + 3, 'ds_read_b128 %s, v1' % ar(HA1))
    T.at(W[5] + 3, 'ds_read_b128 %s, v2' % ar(HA1 + 4))
    ST = EX_ST + 640 * w
    def stats():
        S.emit('s_mov_b32 s50, 256')
        poll_check(S, a, cfg, 'L_ps%d' % w, 32, 'buffer_load_dword v17, v18, s[48:51], 0 offen sc1', 17)
        S.emit('s_mov_b32 m0, %d\ns_bfm_b64 exec, 40, 0' % (EX + ST))
        S.emit('buffer_load_dwordx4 v22, s[20:23], 0 offen sc1 lds', tag='st')
        S.emit('s_mov_b64 exec, -1')
    T.at(W[0] + 6, stats)
    early = srd_txt(12, P_WO, 1024 * 2048)[:3] + srd_txt(16, P_W2, 3584 * 2048)[:3]
    for k in range(3): T.at(W[0] + k, '\n'.join(early[2 * k:2 * k + 2]))
    T.at(W[0] + 3, 's_lshl_b32 s3, s2, 2\ns_add_u32 s3, s3, %d\nv_min_u32 v46, 15, v0' % w)
    T.at(W[0] + 4, 's_lshl_b32 s32, s3, 11\nv_lshlrev_b32 v46, 7, v46')
    T.at(W[0] + 5, 's_mul_i32 s33, s3, 7168\nv_min_u32 v47, 55, v0')
    T.at(W[0] + 7, 'v_lshlrev_b32 v47, 7, v47\nbuffer_load_dword a254, v46, s[12:15], s32 offen', 'tch')
    T.at(W[1] + 4, 'buffer_load_dword a255, v47, s[16:19], s33 offen', 'tch')
    if cfg.warm & 1:
        T.at(W[1] + 5, 'v_accvgpr_read_b32 v46, a249')
        T.at(W[1] + 7, 'buffer_load_dword a252, v46, s[20:23], 0 offen sc1', 'tch')
    if cfg.warm & 2:
        T.at(W[2] + 4, 's_mul_i32 s32, s88, %d\ns_add_u32 s32, s32, %d\nv_min_u32 v47, 3, v0' % (12 * 16384, WS_P))
        T.at(W[2] + 5, '\n'.join(srd_txt(24, P_OUT, 2048 * 2048)[:3]))
        T.at(W[2] + 6, 's_lshl_b32 s33, s54, 11\nv_mul_u32_u24 v47, %d, v47' % (3 * 16384))
        T.at(W[3] + 4, 'buffer_load_dword a253, v47, s[20:23], s32 offen sc1', 'tch')
        T.at(W[3] + 6, 'buffer_load_dword a248, v47, s[24:27], s33 offen', 'tch')
    ops = []
    for j in range(cfg.npre): ops += k2_wdma(j)
    place_dmas(T, ops, [W[n] + o for n in range(cfg.w2first, cfg.w2last) for o in (5, 7)])
    d2 = 2 * WSLOT
    su = ['v_subrev_u32 v%d, %d, v%d' % (1 + k, d2, 12 + k) for k in range(5)]
    su += ['v_lshlrev_b32 v6, 4, v19', 'v_add_u32 v6, %d, v6' % EX, 'v_and_b32 v36, 15, v0', 'v_lshlrev_b32 v7, 2, v36', 'v_add_u32 v7, %d, v7' % EX,
           'v_lshlrev_b32 v8, 4, v0', 'v_add_u32 v9, %d, v8' % (EX + EX_KV), 'v_add_u32 v22, %d, v7' % ST,
           'v_and_b32 v37, 1, v0', 'v_lshl_add_u32 v38, v19, 2, v37', 'v_add_u32 v39, 2, v38',
           'v_cmp_eq_u32 s[6:7], 1, v37', 'v_cmp_le_u32 s[52:53], v38, v36', 'v_cmp_le_u32 s[4:5], v39, v36',
           'v_add_u32 v40, 16, v38', 'v_add_u32 v41, 16, v39',
           'v_cndmask_b32 v38, v38, v40, s[52:53]', 'v_cndmask_b32 v39, v39, v41, s[4:5]',
           'v_mov_b32 v40, %d' % (EX + ST), 'v_lshl_add_u32 v23, v38, 2, v40', 'v_lshl_add_u32 v24, v39, 2, v40',
           'v_mov_b32 v40, 0xffff', 'v_mov_b32 v41, 0xffff0000', 'v_cndmask_b32 v40, v40, v41, s[6:7]']
    left = T.spread(W[1], su, vper=cfg.vper); assert not left and T.last < W[6], T.last
    su = ['v_cndmask_b32 v10, 0, v40, s[52:53]', 'v_cndmask_b32 v11, v40, 0, s[52:53]', 'v_cndmask_b32 v12, 0, v40, s[4:5]', 'v_cndmask_b32 v13, v40, 0, s[4:5]',
          'v_and_b32 v36, 7, v0', 'v_xor_b32 v37, 1, v36', 'v_cmp_eq_u32 vcc, s63, v36', 'v_mov_b32 v%d, 1' % VFV, 'v_bfrev_b32 v38, 1',
          'v_cndmask_b32 v36, v36, v37, vcc', 'v_cmp_eq_u32 vcc, 0, v0', 'v_lshlrev_b32 v%d, 2, v36' % VPO, 's_nop 0',
          'v_cndmask_b32 v%d, v38, v0, vcc' % VFO]
    left = T.spread(W[6] + 1, su, vper=cfg.vper); assert not left and T.last < W[8], T.last
    def b15():
        S.wait_tag(lambda t: isinstance(t, tuple) and t[0] == 'd'); S.emit('s_barrier')
    T.before(W[4], b15)
    def cswrite(es):
        L = []
        o1 = [(e, t) for e, t in es if t not in (4, 5)]
        if o1:
            L.append('s_mov_b32 exec_lo, 0x00010001\ns_mov_b32 exec_hi, 0x00010001')
            L += ['ds_write_b128 v6, %s offset:%d' % (ar(EXA + 4 * e), t * 64) for e, t in o1]
        for e, t in es:
            if t in (4, 5): L.append('s_mov_b64 exec, 0xffff\nds_write_b32 v7, a%d offset:%d' % (EXA + 4 * e, t * 64))
        L.append('s_mov_b64 exec, -1')
        return '\n'.join(L)
    T.at(W[7] + 0, cswrite([(0, th)]), 'x1')
    def c1():
        S.wait_tag(lambda t: t == 'st'); S.wait_dstag('x1'); S.emit('s_barrier')
    T.before(W[8], c1)
    if w == 3: T.at(W[12] + 4, cswrite([(1, 0), (2, 1)]), 'x2')
    if own: T.at(W[19 + len(own)] + 4, cswrite([(e, t) for e, t in enumerate(EXTRAS[w]) if t >= 6]), 'x3')
    rd = ['ds_read_b128 v[36:39], v6 offset:128', 'ds_read_b128 v[40:43], v6 offset:192', 'ds_read2_b32 v[34:35], v7 offset0:64 offset1:80']
    rd += ['ds_read2_b32 %s, v22 offset0:%d offset1:%d' % (vr(RN + 2 * i, 2), 16 * (i + 1), 80 + 16 * (i + 1)) for i in (3, 0, 1, 2)]
    rd.insert(4, 'ds_read_b128 v[44:47], v6 offset:%d' % (ST + 320 + 64 * 4))
    T.before(W[7], lambda: S.wait_tag(lambda t: t == 'st'))
    A = rd[3:7] + rd[:3] + rd[7:]
    VS = [acc1(4, 0) + 6, acc1(5, 0) + 6]
    def qk(t0, i):
        L = ['v_fmac_f32 v%d, v%d, v%d' % (acc1(t0 + (k >> 2), i) + (k & 3), RN + 2 * i + 1, 36 + k) for k in range(8)]
        return L + [cvt(acc1(t0, i) + h, acc1(t0 + (h >> 1), i) + 2 * (h & 1)) for h in range(4)]
    NB = (acc1(3, 2), acc1(3, 1), acc1(3, 0), 44)
    nm4 = lambda i: 'ds_read_b128 %s, v6 offset:%d' % (vr(NB[i]), ST + 320 + 64 * (i + 1))
    def vv(i):
        L = ['v_fmac_f32 v%d, v%d, v%d' % (acc1(4 + (k >> 2), i) + (k & 3), NB[i] + (k & 3), 34 + (k >> 2)) for k in range(8)]
        return L + [cvt(VS[h >> 1] + 2 * (i + 1) + (h & 1), acc1(4 + (h >> 1), i) + 2 * (h & 1)) for h in (1, 0, 3, 2)]
    hb = acc1(3, 3)
    A += qk(2, 3)
    if th < 4: A.append('ds_read_b32 v%d, v22 offset:320' % hb)
    else: A.append('ds_read_b128 %s, v6 offset:%d' % (vr(hb), ST + 320))
    if w < 3: A.append(('ds_write_b128 v9, %s offset:%d' % (vr(acc1(2, 3)), (w + 1) * 2048), 'x2'))
    A += vv(3)
    if w < 3:
        A.append(('ds_write2_b64 v9, %s, %s offset0:%d offset1:%d' % (vr(VS[0] + 8, 2), vr(VS[1] + 8, 2), 0, 1), 'V3'))
    A += ['v_accvgpr_read_b32 v%d, a%d' % (44 + r, EXA + r) for r in range(4)]
    if th < 4: A += ['v_fmac_f32 v%d, v%d, v%d' % (44 + r, hb, 36 + 4 * (th & 1) + r) for r in range(4)]
    else: A += ['v_fmac_f32 v%d, v%d, v%d' % (44 + r, hb + r, 34 + (th & 1)) for r in range(4)]
    A += [cvt(44, 44), cvt(45, 46)]
    A.append(('ds_write_b64 v9, v[44:45] offset:%d' % ((0 if th < 4 else 1024) + 8 * (th & 1)), 'x2'))
    A2 = []
    for x in A:
        if isinstance(x, tuple) and x[1] == 'V3':
            A2 += [('ds_write_b64 v9, %s offset:%d' % (vr(VS[h] + 8, 2), (w + 1) * 2048 + 1024 + 8 * h), 'x2') for h in range(2)]
        else: A2.append(x)
    A = A2
    A += qk(2, 0) + [nm4(2)] + qk(2, 1) + [nm4(1)] + qk(2, 2) + [nm4(0)]
    CI = acc1(4, 0); KP = acc1(5, 0)
    post2 = ['ds_read_b128 v[36:39], v6', 'ds_read_b128 v[40:43], v6 offset:64',
             'ds_read_b64 %s, v9 offset:%d' % (vr(VS[0], 2), w * 2048 + 1024), 'ds_read_b64 %s, v9 offset:%d' % (vr(VS[1], 2), w * 2048 + 1032),
             'ds_read_b128 %s, v9 offset:%d' % (vr(KP), w * 2048)]
    A += post2[:2] + vv(2) + vv(1) + post2[2:4] + vv(0) + post2[4:]
    c1_ = -2.0 * math.sqrt(2.0 / math.pi) * math.log2(math.e)
    A += ['v_mov_b32 v%d, %s' % (CC, f32(c1_)), 'v_mov_b32 v%d, %s' % (CC + 1, f32(c1_ * 0.044715))]
    if w == 0:
        A.append('s_cmp_eq_u32 s29, 0\ns_cselect_b32 s3, 0xff800000, 0')
        A += ['v_mov_b32 v%d, s3' % (CI + r) for r in range(4)]
    def c2():
        S.wait_dstag('x2'); S.emit('s_barrier')
    T.before(W[cfg.c2w], c2)
    SC = lambda i: acc1(1, i)
    SP = lambda i: acc1(3, i)
    I4 = (1, 2, 3, 0)
    def smf(i):
        kp = KP if i == 0 else acc1(2, i - 1)
        return ['v_mfma_f32_16x16x32_bf16 %s, %s, %s, 0' % (vr(SC(i)), vr(acc1(2, i)), vr(acc1(0, i))),
                'v_mfma_f32_16x16x32_bf16 %s, %s, %s, %s' % (vr(SP(i)), vr(kp), vr(acc1(0, i)), vr(CI) if (i == 0 and w == 0) else '0')]
    for n, i in enumerate(I4):
        q = qk(0, i)
        A += q[:4]
        if n: A += smf(I4[n - 1])
        A += q[4:]
    RK = 40; CQ = 36
    rk = lambda i, r: RK + 4 * r + i
    A += ['ds_read2_b32 %s, v%d offset0:%d offset1:%d' % (vr(RK + 4 * r + 2 * h, 2), 23 + r, 32 * h, 32 * h + 16) for r in range(2) for h in range(2)]
    A.append('s_mov_b32 s3, %s' % f32(32 ** -0.5 * math.log2(math.e)))
    A += ['v_mul_f32 v%d, s3, v%d' % (CQ + i, RN + 2 * i) for i in range(4)]
    A += smf(0)
    for i in I4:
        c, p = SC(i), SP(i)
        A += ['v_cndmask_b32 v%d, v%d, v%d, s[6:7]' % (c, c, c + 1), 'v_cndmask_b32 v%d, v%d, v%d, s[6:7]' % (c + 2, c + 2, c + 3),
              'v_cndmask_b32 v%d, v%d, v%d, s[6:7]' % (p, p, p + 1), 'v_cndmask_b32 v%d, v%d, v%d, s[6:7]' % (p + 2, p + 2, p + 3),
              'v_cndmask_b32 v%d, v%d, v%d, s[52:53]' % (c, p, c), 'v_cndmask_b32 v%d, v%d, v%d, s[4:5]' % (c + 1, p + 2, c + 2),
              'v_mul_f32 v%d, v%d, v%d' % (c, c, rk(i, 0)), 'v_mul_f32 v%d, v%d, v%d' % (c + 1, c + 1, rk(i, 1)),
              'v_max_f32 v%d, v%d, v%d' % (c + 2, c, c + 1)]
    def red(op):
        L = []
        for sw in ('v_permlane16_swap_b32', 'v_permlane32_swap_b32'):
            L += ['v_mov_b32 v%d, v%d' % (SC(i) + 3, SC(i) + 2) for i in I4]
            L += ['%s v%d, v%d' % (sw, SC(i) + 2, SC(i) + 3) for i in I4]
            L += ['%s v%d, v%d, v%d' % (op, SC(i) + 2, SC(i) + 2, SC(i) + 3) for i in I4]
        return L
    A += red('v_max_f32')
    for i in I4:
        c = SC(i)
        A += ['v_mul_f32 v%d, v%d, v%d' % (c + 2, c + 2, CQ + i),
              'v_fma_f32 v%d, v%d, v%d, -v%d' % (c, c, CQ + i, c + 2), 'v_fma_f32 v%d, v%d, v%d, -v%d' % (c + 1, c + 1, CQ + i, c + 2)]
    for i in I4: A += ['v_exp_f32 v%d, v%d' % (SC(i), SC(i)), 'v_exp_f32 v%d, v%d' % (SC(i) + 1, SC(i) + 1)]
    A += ['v_add_f32 v%d, v%d, v%d' % (SC(i) + 2, SC(i), SC(i) + 1) for i in I4]
    for i in I4: A += ['v_mul_f32 v%d, v%d, v%d' % (SC(i), SC(i), rk(i, 0)), 'v_mul_f32 v%d, v%d, v%d' % (SC(i) + 1, SC(i) + 1, rk(i, 1))]
    A += colconst([0, 1], CS)
    A += red('v_add_f32')
    A += ['v_rcp_f32 v%d, v%d' % (SC(i) + 2, SC(i) + 2) for i in I4]
    def omf(i):
        return ['v_mfma_f32_16x16x32_bf16 %s, %s, %s, 0' % (vr(acc1(0, i)), vr(VS[0] + 2 * i), vr(SP(i))),
                'v_mfma_f32_16x16x32_bf16 %s, %s, %s, 0' % (vr(SC(i)), vr(VS[1] + 2 * i), vr(SP(i)))]
    def ost(i):
        o, c = acc1(0, i), SC(i)
        return [cvt(o, o), cvt(o + 1, o + 2), cvt(o + 2, c), cvt(o + 3, c + 2), 's_add_u32 s3, s56, %d' % (i * 147456),
                ('buffer_store_dwordx4 %s, v8, s[20:23], s3 offen %s' % (vr(o), cfg.hst), 'o')]
    for n, i in enumerate(I4):
        c, p = SC(i), SP(i)
        A += ['v_mul_f32 v%d, v%d, v%d' % (c, c, c + 2), 'v_mul_f32 v%d, v%d, v%d' % (c + 1, c + 1, c + 2)]
        if n: A += omf(I4[n - 1])
        A += ['v_cvt_pk_bf16_f32 v%d, v%d, v%d' % (c, c, c), 'v_cvt_pk_bf16_f32 v%d, v%d, v%d' % (c + 1, c + 1, c + 1),
              'v_and_b32 v%d, v%d, v11' % (p, c), 'v_and_b32 v%d, v%d, v13' % (p + 1, c + 1),
              'v_and_b32 v%d, v%d, v10' % (p + 2, c), 'v_and_b32 v%d, v%d, v12' % (p + 3, c + 1)]
    x = ost(1)
    A += x[:2] + omf(0) + x[2:] + ost(2) + ost(3) + ost(0)
    def c3():
        S.wait_tag(lambda t: isinstance(t, tuple) and t[0] == 'w' and t[1] < 3, lg=0)
        S.emit('s_barrier')
    T.before(W[24], c3)
    after = {x: 24 for x in colconst([0, 1], CS)}
    after.update({x: cfg.c2w for x in post2})
    after.update({x: 8 for x in rd[:3]})
    for x in A:
        if isinstance(x, str) and x.startswith('v_fmac'):
            d = int(x.split()[1][1:-1])
            if d >= ACC1: after[x] = widx[((d - ACC1) // 16, 1)] + 1
    left = T.sched(W[7] + 1, A, vper=cfg.vper, over=cfg.over, after=after)
    assert cfg.c2w >= 13 and not any(tg == 'x2' for f in T.fill[T.win[cfg.c2w] - 2:] for _, tg in f) and not any(tg == 'x2' for _, tg in left)
    if cfg.lst == 2:
        for n in range(1, 26):
            T.pre[T.win[n]].insert(0, lambda n=n: a.e('s_memtime s[94:95]\ns_waitcnt lgkmcnt(0)\nv_writelane_b32 v17, s94, %d' % (n + 1)))
    T.emit(S)
    if cfg.lst == 2: a.e('s_memtime s[94:95]\ns_waitcnt lgkmcnt(0)\nv_writelane_b32 v17, s94, 27\nv_accvgpr_write_b32 a253, v17')
    stamp(a, cfg, 'g1 end')
    for x, tag in left: S.emit(x, tag=tag)
    return len(left)

def stats_stream():
    R, A0, T0, T1, M = 26, 42, 43, 17, 46
    d = 'row_mask:0xf bank_mask:0xf'
    def red(x):
        L = ['v_add_f32_dpp v%d, v%d, v%d %s %s' % (x, x, x, m, d) for m in ('quad_perm:[1,0,3,2]', 'quad_perm:[2,3,0,1]', 'row_half_mirror', 'row_mirror')]
        return L + ['v_mov_b32 v%d, v%d' % (T0, x), 'v_permlane16_swap_b32 v%d, v%d' % (x, T0), 'v_add_f32 v%d, v%d, v%d' % (x, x, T0)]
    L = []
    for k in range(16):
        L += ['v_lshlrev_b32 v%d, 16, v%d' % (T0, R + k), 'v_and_b32 v%d, 0xffff0000, v%d' % (T1, R + k)]
        L += ['v_add_f32 v%d, v%d, v%d' % (M, T0, T1)] if k == 0 else ['v_add_f32 v%d, v%d, v%d' % (M, M, T0), 'v_add_f32 v%d, v%d, v%d' % (M, M, T1)]
    L += red(M) + ['v_mul_f32 v%d, %s, v%d' % (M, f32(-1.0 / 1024), M)]
    for k in range(16):
        L += ['v_lshlrev_b32 v%d, 16, v%d' % (T0, R + k), 'v_and_b32 v%d, 0xffff0000, v%d' % (T1, R + k),
              'v_add_f32 v%d, v%d, v%d' % (T0, T0, M), 'v_add_f32 v%d, v%d, v%d' % (T1, T1, M),
              ('v_mul_f32 v%d, v%d, v%d' if k == 0 else 'v_fmac_f32 v%d, v%d, v%d') % (A0, T0, T0), 'v_fmac_f32 v%d, v%d, v%d' % (A0, T1, T1)]
    L += red(A0)
    L += ['v_mul_f32 v%d, %s, v%d' % (A0, f32(1.0 / 1024), A0), 'v_cvt_pk_bf16_f32 v%d, v%d, v%d' % (T0, M, A0),
          'v_lshlrev_b32 v%d, 16, v%d' % (M, T0), 'v_and_b32 v%d, 0xffff0000, v%d' % (A0, T0), 'v_add_f32 v%d, %s, v%d' % (A0, f32(1e-5), A0),
          'v_cvt_pk_bf16_f32 v%d, v%d, v%d' % (T0, A0, A0), 'v_lshlrev_b32 v%d, 16, v%d' % (T0, T0), 'v_sqrt_f32 v%d, v%d' % (T0, T0),
          'v_cvt_pk_bf16_f32 v%d, v%d, v%d' % (T0, T0, T0), 'v_lshlrev_b32 v%d, 16, v%d' % (T0, T0), 'v_rcp_f32 v%d, v%d' % (A0, T0),
          'v_accvgpr_read_b32 v%d, a248' % T0, 'v_accvgpr_read_b32 v%d, a249' % T1, 'v_mov_b32 v%d, 0' % R,
          ('buffer_store_dword v%d, v%d, s[20:23], s33x offen sc1' % (M, T0), 'z'), ('buffer_store_dword v%d, v%d, s[20:23], 0 offen sc1' % (A0, T0), 'z'),
          ('buffer_store_dword v%d, v%d, s[20:23], 0 offen sc1' % (R, T1), 'z')]
    return [(x[0].replace('s33x', 's96'), x[1]) if isinstance(x, tuple) else x for x in L]

def gen(cfg):
    a = Asm()
    del OUTLINE[:]
    a.e('s_cmp_ge_u32 s2, 256\ns_cbranch_scc1 L_end')
    a.e('s_load_dwordx16 s[64:79], s[0:1], 0\ns_load_dwordx4 s[80:83], s[0:1], 64\ns_load_dwordx2 s[84:85], s[0:1], 80')
    if cfg.stamps: a.e('s_memrealtime s[92:93]\ns_memtime s[94:95]')
    a.e('v_lshrrev_b32 v17, 6, v0\nv_and_b32 v0, 63, v0')
    a.e('v_readfirstlane_b32 s28, v17')
    a.e('s_and_b32 s29, s2, 1\ns_lshl_b32 s97, s29, 3\ns_lshl_b32 s29, s29, 2\ns_lshr_b32 s3, s2, 6\ns_add_u32 s29, s29, s3')
    a.e('s_bfe_u32 s63, s2, 0x30003\ns_add_u32 s41, s29, s63')
    if cfg.wofs == 2: a.e('s_mov_b32 s97, 0')
    if cfg.wxor: a.e('s_or_b32 s97, s97, %d' % cfg.wxor)
    a.e('s_and_b32 s38, s41, %d\ns_xor_b32 s38, s38, s97\ns_lshl_b32 s31, s38, 7' % (cfg.rot0 - 1))
    a.e('v_lshrrev_b32 v18, 3, v0')
    a.e('v_lshrrev_b32 v19, 4, v0')
    a.e('v_and_b32 v20, 7, v0')
    a.e('v_xor_b32 v21, v20, v19')
    a.e('v_lshlrev_b32 v18, 11, v18\nv_lshl_add_u32 v18, v21, 4, v18')
    a.e('s_lshl_b32 s3, s29, 8\ns_lshl_b32 s4, s28, 6\ns_add_u32 s54, s3, s4\ns_lshl_b32 s39, s28, 13')
    a.e('s_lshl_b32 s4, s54, 11\nv_add_u32 v1, s4, v18\nv_xor_b32 v2, 0x4040, v1')
    a.e('s_mov_b32 s10, 0x%x\ns_mov_b32 s11, 0x00020000' % (2048 * 2048))
    a.e('s_waitcnt lgkmcnt(0)')
    if cfg.stamps: a.e('v_accvgpr_write_b32 a%d, s92\nv_accvgpr_write_b32 a%d, s94' % (TSA, TSA + 1))
    stamp(a, cfg, 'karg')
    a.e('\n'.join(srd_txt(8, P_X, 0)[:2]))
    S = Stream(a)
    q0, f0, x0 = k1_dmas(None, 0, 0)
    for su, ld in x0[:cfg.nx0]:
        S.emit(su); S.emit(ld, tag=('x', 0))
    if cfg.cpf:
        a.e('s_getpc_b64 s[100:101]')
        a.label('L_pc')
        a.e('s_lshr_b32 s4, s2, 3\ns_lshl_b32 s4, s4, 2\ns_add_u32 s4, s4, s28\ns_mul_i32 s4, s4, %d' % (CPF_LANES * 128))
        a.e('s_min_u32 s4, s4, L_end - L_pc - %d' % (CPF_LANES * 128))
        a.e('s_add_u32 s100, s100, s4\ns_addc_u32 s101, s101, 0')
        for x in cpf_addr(44): a.e(x)
        if cfg.cpf & 1: S.emit(cpf_load(252, 44))
    a.e('s_bfe_u32 s62, s2, 0x20001\ns_lshl_b32 s30, s62, 3\ns_add_u32 s30, s30, s63\ns_mov_b32 s36, 0')
    a.e('s_mul_i32 s32, s38, %d\ns_mul_i32 s33, s38, %d' % (64 * 6144, 64 * 7168))
    a.srd(12, P_WQKV, 1024 * 6144)
    a.e('s_lshl_b32 s46, s28, 10\ns_lshl_b32 s47, s28, 12\ns_mov_b32 s42, %d' % WSLOT)
    S.emit('s_mul_i32 s4, s28, %d\ns_lshl_b32 s38, s30, 6\ns_add_u32 s4, s4, s38' % (16 * 6144))
    S.emit('v_lshrrev_b32 v22, 2, v0\nv_and_b32 v23, 3, v0\nv_and_b32 v24, 2, v19\nv_xor_b32 v24, v24, v23')
    S.emit('v_mul_u32_u24 v26, 6144, v22\nv_lshl_add_u32 v26, v24, 4, v26')
    S.emit('v_add_u32 v3, s4, v26\nv_add_u32 v4, 0x800, v3\nv_add_u32 v5, 0x1000, v3')
    for su, ld in q0[:cfg.nq0]:
        S.emit(su); S.emit(ld, tag=('a', 0))
    a.srd(16, P_W1, 1024 * 7168)
    a.srd(20, P_WS, WS_BYTES)
    a.e('s_sub_u32 s5, s3, 16\ns_max_i32 s55, s5, 0')
    a.e('s_lshl_b32 s4, s30, 3\ns_add_u32 s5, s3, s4\ns_lshl_b32 s4, s28, 1\ns_add_u32 s58, s5, s4')
    S.emit('s_lshl_b32 s3, s28, 8\ns_mul_i32 s53, s30, 224\ns_movk_i32 s38, 0x1c00\nv_add_u32 v26, s3, v0\nv_mov_b32 v31, s53')
    for ii in range(4):
        if ii: S.emit('v_add_u32 v26, 64, v26')
        S.emit('v_mul_u32_u24 v27, 4682, v26\nv_lshrrev_b32 v27, 16, v27')
        S.emit('v_mad_i32_i24 v28, v27, -14, v26')
        S.emit('v_and_b32 v29, 4, v27\nv_bfe_i32 v30, v27, 3, 1\nv_lshl_add_u32 v29, v30, 2, v29\nv_add_u32 v27, v27, v29')
        S.emit('v_mad_u32_u24 v27, v27, s38, v31\nv_lshl_add_u32 v%d, v28, 4, v27' % (6 + ii))
    S.emit('v_and_b32 v32, 15, v0')
    S.emit('v_lshrrev_b32 v21, 1, v32\nv_xor_b32 v21, v21, v19')
    S.emit('v_lshlrev_b32 v21, 4, v21\nv_lshl_add_u32 v21, v32, 7, v21')
    S.emit('v_add_u32 v10, s39, v21\nv_xor_b32 v11, 64, v10')
    S.emit('v_add_u32 v12, %d, v21\nv_xor_b32 v13, 64, v12' % (WB + W_HALO))
    S.emit('v_mov_b32 v27, %d\nv_cmp_eq_u32 vcc, 0, v32' % (WB + W_ONES))
    S.emit('v_and_b32 v22, 3, v22\nv_lshlrev_b32 v23, 3, v23')
    S.emit('v_cndmask_b32 v12, v12, v27, vcc\nv_cndmask_b32 v13, v13, v27, vcc')
    S.emit('v_lshl_add_u32 v24, v19, 3, v22\nv_lshl_add_u32 v24, v24, 6, v23\nv_and_b32 v25, 1, v19')
    S.emit('v_lshl_add_u32 v24, v25, 5, v24\nv_add_u32 v14, %d, v24\nv_xor_b32 v15, 32, v14' % WB)
    S.emit('v_lshrrev_b32 v26, 1, v19\nv_lshlrev_b32 v26, 4, v26\nv_lshl_add_u32 v26, v25, 2, v26\nv_add_u32 v26, v26, v22')
    S.emit('v_mul_u32_u24 v26, 224, v26\nv_add_u32 v26, v26, v23\nv_add_u32 v16, %d, v26' % WB)
    S.emit('v_mov_b32 v28, 0x3f803f80\nv_mov_b32 v29, v28\nv_mov_b32 v30, v28\nv_mov_b32 v31, v28')
    for k in range(3): S.emit('ds_write_b128 v27, v[28:31] offset:%d' % (k * WSLOT))
    S.emit('s_lshl_b32 s3, s55, 11\nv_add_u32 v33, s3, v18')
    stamp(a, cfg, 'rows')
    rest = [(x, ('x', 0)) for x in x0[cfg.nx0:]] + [(x, ('a', 0)) for x in q0[cfg.nq0:]]
    su = ['s_lshl_b32 s3, s29, 2', 's_add_u32 s3, s3, s62', 's_lshl_b32 s3, s3, 2', 's_add_u32 s3, s3, s28', 's_lshl_b32 s3, s3, 9', 's_add_u32 s86, s3, %d' % WS_HFLAG,
          's_lshl_b32 s3, s63, 2', 's_add_u32 s89, s86, s3',
          's_lshl_b32 s3, s29, 3', 's_add_u32 s88, s3, s63', 's_lshl_b32 s3, s88, 4', 's_add_u32 s3, s3, s28', 's_lshl_b32 s3, s3, 9', 's_add_u32 s90, s3, %d' % WS_XFLAG,
          's_lshl_b32 s3, s62, 11', 's_add_u32 s87, s90, s3',
          'v_bfrev_b32 v30, 1', 'v_lshrrev_b32 v26, 5, v0', 'v_add_u32 v27, s58, v26', 'v_and_b32 v28, 31, v0', 'v_cmp_eq_u32 vcc, 0, v28', 'v_lshlrev_b32 v29, 2, v27',
          'v_lshlrev_b32 v27, 11, v27', 'v_cndmask_b32 v29, v30, v29, vcc', 'v_lshl_add_u32 v47, v28, 4, v27', 'v_accvgpr_write_b32 a248, v29',
          'v_lshlrev_b32 v26, 7, v0', 'v_add_u32 v26, s89, v26', 's_sub_u32 s3, s87, 512', 'v_lshl_add_u32 v27, v0, 7, s3', 'v_cmp_gt_u32 vcc, 4, v0', 'v_cmp_gt_u32 s[52:53], 7, v0',
          's_movk_i32 s96, %d' % WS_NM, 'v_cndmask_b32 v26, v27, v26, vcc', 'v_cndmask_b32 v26, v30, v26, s[52:53]', 'v_accvgpr_write_b32 a249, v26',
          's_lshl_b32 s3, s63, 8', 'v_lshlrev_b32 v21, 1, v19', 'v_xor_b32 v21, v21, v32', 'v_lshlrev_b32 v26, 11, v19', 'v_lshl_add_u32 v21, v21, 4, v26',
          'v_add_u32 v20, s3, v21', 'v_xor_b32 v21, 0x2080, v20',
          'v_bfe_u32 v26, v0, 2, 3', 'v_lshrrev_b32 v25, 2, v0', 'v_lshlrev_b32 v25, 8, v25', 'v_lshl_add_u32 v25, v26, 5, v25', 'v_add_u32 v25, v25, v23',
          'v_subrev_u32 v22, 20, v0', 'v_min_u32 v22, v22, v0', 's_sub_u32 s3, s54, 16', 'v_mov_b32 v26, s3', 's_max_i32 s3, s3, 0', 'v_mov_b32 v27, s3',
          'v_mov_b32 v28, s55', 'v_cmp_gt_u32 s[52:53], 20, v0', 'v_cmp_gt_u32 vcc, 4, v22', 'v_mov_b32 v29, s96',
          'v_cndmask_b32 v27, v28, v27, s[52:53]', 'v_cndmask_b32 v29, v29, 0, s[52:53]', 'v_cndmask_b32 v26, v26, v27, vcc',
          'v_lshl_add_u32 v22, v22, 2, v26', 'v_lshl_add_u32 v22, v22, 2, v29',
          's_lshl_b32 s3, s29, 5', 'v_mov_b32 v23, s3', 's_sub_u32 s3, s3, 32', 's_max_i32 s3, s3, 0', 'v_mov_b32 v18, s3', 'v_cmp_eq_u32 vcc, 0, v0',
          's_bfe_u32 s98, s2, 0x20003', 's_lshl_b32 s98, s98, 1', 's_add_u32 s98, s98, %d' % (cfg.npeel + 3), 's_min_u32 s98, s98, 11',
          'v_cndmask_b32 v18, v18, v23, vcc', 'v_cndmask_b32 v24, -16, v23, vcc', 'v_mov_b32 v23, 1']
    su += srd_txt(48, P_DBG, 0) + ['s_mov_b32 s27, 0x00020000', 's_mov_b32 s34, %d' % (WB + WSLOT * ((cfg.npeel + 2) % 3))]
    su2 = ['s_lshr_b32 s91, s54, 4', 's_mul_i32 s3, s91, 144', 's_mul_i32 s52, s62, 36', 's_add_u32 s3, s3, s52', 's_lshl_b32 s3, s3, 10', 's_add_u32 s91, s3, %d' % WS_H,
           's_lshl_b32 s3, s63, 10', 's_add_u32 s56, s91, s3',
           's_lshr_b32 s3, s63, 1', 's_lshl_b32 s3, s3, 10', 's_add_u32 s58, s91, s3', 's_and_b32 s3, s63, 1', 's_mul_i32 s3, s3, 147456', 's_add_u32 s58, s58, s3', 's_add_u32 s58, s58, 32768']
    for k in range(4):
        su2 += ['s_add_u32 s3, s62, %d' % (k + 1), 's_and_b32 s3, s3, 3', 's_lshl_b32 s%d, s3, 6' % TROT[k]]
    su2 += srd_txt(4, P_B1, 7168) + srd_txt(24, P_B2, 2048)[:3]
    su2 += ['s_mul_i32 s52, s30, 224', 's_lshl_b32 s53, s63, 8', 's_lshl_b32 s3, s62, 6', 's_add_u32 s53, s53, s3', 'v_lshlrev_b32 v42, 3, v19', 'v_lshlrev_b32 v43, 2, v0']
    for x in su[:cfg.nsu]: S.emit(x)
    for (s_, ld), tg in rest:
        S.emit(s_); S.emit(ld, tag=tg)
    for x in su[cfg.nsu:] + su2: S.emit(x)
    a.e('s_cmp_eq_u32 s28, 1\ns_cbranch_scc1 L_w1\ns_cmp_eq_u32 s28, 2\ns_cbranch_scc1 L_w2\ns_cmp_eq_u32 s28, 3\ns_cbranch_scc1 L_w3')
    entry = (list(S.ds), list(S.vm))

    joins = []
    for w in range(4):
        if w: a.raw('.p2align 3'); a.label('L_w%d' % w)
        S = Stream(a)
        S.ds, S.vm = list(entry[0]), list(entry[1])
        if w == 3: S.emit('v_mov_b32 v8, v33\nv_xor_b32 v9, 0x4040, v33')
        for s_, ld in k1_dmas(w, 0, 0)[1]:
            S.emit(s_); S.emit(ld, tag=('p', 0))
        S.emit('s_lshl_b32 s43, s62, 19\ns_add_u32 s43, s43, %d' % (w << 15))
        S.emit('s_mul_i32 s3, s62, %d\ns_add_u32 s44, s3, %d\ns_add_u32 s59, s3, %d' % (896 * 2048, (112 * w + 96) * 2048, (16 * (w & 1) + 112 * (w >> 1)) * 2048))
        for x in ['s_mov_b32 s36, 1'] + k1_kcalc(cfg, True): S.emit(x)
        for s_, ld in k1_mix(*k1_dmas(w, 1, 1))[:cfg.n1]:
            S.emit(s_); S.emit(ld, tag=('p', 1))
        S.wait_tag(lambda t: t == ('x', 0))
        for (i, s) in ORDER: S.emit(k1_xread(0, 0, i, s))
        S.wait_tag(lambda t: t == ('a', 0), lg=8)
        S.emit('s_barrier')
        stamp(a, cfg, 'data0')
        if cfg.lst == 3: a.e('s_memtime s[94:95]\ns_waitcnt lgkmcnt(0)\nv_writelane_b32 v17, s94, 2')
        for t in (0, 1):
            for (s, j4) in SJ: S.emit(k1_wread(t, t, s, j4))
        st = stats_stream()
        if cfg.lst == 3: st = [(x[0].replace('v17', 'v47'), x[1]) if isinstance(x, tuple) else x.replace('v17', 'v47') for x in st]
        if w == 1:
            st += ['v_accvgpr_read_b32 v30, a254', 'v_lshlrev_b32 v28, 16, v30', 'v_and_b32 v29, 0xffff0000, v30', 'v_lshlrev_b32 v27, 3, v0', 'v_add_u32 v27, %d, v27' % (EX + EX_B1),
                   's_bfm_b64 exec, 56, 0\nds_write_b64 v27, v[28:29]\ns_mov_b64 exec, -1']
        for sn in range(cfg.npeel): st = k1_step(S, cfg, w, sn & 1, 's%d' % sn, st)
        for x, tg in st: S.emit(x, tag=tg)
        gen.info2 = len(st)
        stamp(a, cfg, 'loop')
        S.mute = True
        k1_step(S, cfg, w, 0); k1_step(S, cfg, w, 1)
        st0 = S.state()
        S.mute = False
        a.raw('.p2align 3')
        a.label('L_loop%d' % w)
        k1_step(S, cfg, w, 0); k1_step(S, cfg, w, 1)
        assert S.state() == st0
        a.e('s_cmp_lt_u32 s36, 16\ns_cbranch_scc1 L_loop%d' % w)
        stamp(a, cfg, 'last')
        nleft = k1_last(S, a, cfg, w)
        joins.append((nleft, S.state(), dict(S.wiss), set(S.wvis)))
        if w < 3: a.e('s_branch L_epi')
    gen.info = [j[0] for j in joins]
    a.label('L_epi')
    a.e('s_nop 0')
    stamp(a, cfg, 'attn st')
    nv = max(len(j[1][1]) for j in joins)
    ref = [j[1][1] for j in joins if len(j[1][1]) == nv][0]
    for j in joins: assert ref[len(ref) - len(j[1][1]):] == j[1][1]
    S = Stream(a)
    S.vm = [(t, set(x)) for t, x in ref]
    S.wiss = joins[0][2]; S.wvis = set.intersection(*[j[3] for j in joins])
    a.e('s_waitcnt lgkmcnt(0)')
    for k in reversed(range(4)):
        S.emit('v_xor_b32 v%d, s%d, v25\nv_xor_b32 v%d, 32, v%d' % (VT + 2 * k, TROT[k], VT + 2 * k + 1, VT + 2 * k))
    S.emit('v_add_u32 v%d, s91, v8' % VA)
    for i in range(1, 4): S.emit('v_add_u32 v%d, %d, v%d' % (VA + i, i * 147456, VA))
    def gelu(quads, i, dst, mid=None):
        n = len(quads) * 2
        P = [(q[0] + 2 * h, q[1] + 2 * h, q[2] + 2 * h) for q in quads for h in range(2)]
        for k, (x, cs, b) in enumerate(P): S.emit(pk('fma', x, RN + 2 * i, cs, x, sel=[1, 0, 0], selhi=[1, 1, 1]))
        for k, (x, cs, b) in enumerate(P): S.emit(pk('fma', x, RN + 2 * i, x, b, sel=[0, 0, 0], selhi=[0, 1, 1]))
        if mid: mid()
        for k, (x, cs, b) in enumerate(P): S.emit(pk('mul', TG + 2 * k, x, x))
        for k, (x, cs, b) in enumerate(P): S.emit(pk('fma', TG + 2 * k, TG + 2 * k, CC, CC, sel=[0, 1, 0], selhi=[1, 1, 0]))
        for k, (x, cs, b) in enumerate(P): S.emit(pk('mul', TG + 2 * k, TG + 2 * k, x))
        for k in range(2 * n): S.emit('v_exp_f32 v%d, v%d' % (TG + k, TG + k))
        for k in range(n): S.emit(pk('add', TG + 2 * k, TG + 2 * k, '1.0', selhi=[1, 0]))
        for k in range(2 * n):
            S.emit('v_rcp_f32 v%d, v%d' % (TG + k, TG + k))
            if k & 1 and aq:
                x = aq.pop(0)
                if x[0]: S.emit(x[0])
                S.emit(x[1], tag=x[2])
        for k, (x, cs, b) in enumerate(P): S.emit(pk('mul', TG + 2 * k, TG + 2 * k, x))
        for k in range(n): S.emit(cvt(dst + k, TG + 2 * k))
    FS = [[0, 1], [2, 3], [4, 5], [6]]
    def hdst(fp, i):
        if fp == 0: return acc1(6, i)
        if fp == 3: return (44, 46, 10, 12)[i]
        return 96 + 16 * (fp - 1) + 4 * i
    def hstore(fp, i):
        if fp < 3:
            return ('s_add_u32 s3, s56, %d' % (i * 147456 + (fp + 1) * 8192),
                    'buffer_store_dwordx4 %s, v8, s[20:23], s3 offen %s' % (vr(hdst(fp, i)), cfg.hst), ('h', fp))
        return ('s_add_u32 s3, s58, %d' % (i * 294912),
                'buffer_store_dwordx4 %s, v8, s[20:23], s3 offen %s' % (vr(hdst(fp, 2 * i)), cfg.hst), ('h', fp))
    def setflag(level, tags, nm=None):
        def f():
            if nm: stamp(a, cfg, 'pre ' + nm)
            S.wait_tag(lambda t: t in tags)
            if nm: stamp(a, cfg, nm)
            S.emit('buffer_store_dword v%d, v%d, s[20:23], s89 offen offset:%d sc1' % (VFV, VFO, (level - 1) * 128), tag='f')
        return f
    POLL = lambda level: 'buffer_load_dword v%d, v%d, s[20:23], s86 offen offset:%d sc1' % (VPD, VPO, (level - 1) * 128)
    aq = []
    for fp in range(4):
        fs = FS[fp]
        for i in range(4):
            mid = (lambda: [S.emit(x) for x in colconst(FS[fp + 1], CS)]) if (i == 3 and fp < 3) else None
            gelu([(acc1(6 + f, i), CS + 4 * k, CS + 8 + 4 * k) for k, f in enumerate(fs)], i, hdst(fp, i), mid)
            if fp in cfg.gst and (fp < 3 or i & 1):
                x = hstore(fp, i if fp < 3 else i >> 1); S.emit(x[0]); S.emit(x[1], tag=x[2])
            if (fp, i) == cfg.w67at:
                for j in range(cfg.npre, 8): aq += k2_wdma(j)
            if (fp, i) == cfg.oflag: setflag(1, ['o'], 'oflag')()
            if (fp, i) == cfg.hflag:
                assert fp > max(cfg.gst) and cfg.hflag > cfg.oflag
                setflag(2, [('h', x) for x in cfg.gst], 'hflag')()
            if (fp, i) == cfg.opoll: S.emit(POLL(1))
            if (fp, i) == cfg.ocheck:
                stamp(a, cfg, 'pre ochk')
                poll_check(S, a, cfg, 'L_po', 1, POLL(1), VPD)
                stamp(a, cfg, 'ochk')
                for j in range(cfg.adist): aq += k2_aload(j)
            if (fp, i) == (3, 1):
                for t in (0, 1):
                    for (s, j4) in SJ: S.emit(k2_wread(t, 0, t, s, j4), tag=('r', 0))
    for x in aq:
        if x[0]: S.emit(x[0])
        S.emit(x[1], tag=x[2])
    stamp(a, cfg, 'gelu end')

    T = Timeline()
    jm, jo = 18 - cfg.nmerge, 18 - cfg.nown
    wins = [(j, t) for j in range(jm) for t in range(8 if j < jo else 6)]
    n0 = len(wins)
    wins += [(j, 2 * tp + h) for tp in range(3) for j in range(jm, 18) for h in range(2)] + [(j, 6 + h) for j in range(jo, 18) for h in range(2)]
    assert len(wins) == 144 and jo <= jm
    for n, (j, t) in enumerate(wins):
        T.window()
        for k, (i, s) in enumerate(ORDER):
            d = acc2(t, i)
            T.mfma('v_mfma_f32_16x16x32_bf16 %s, %s, %s, %s' % (vr(d), ar(wb(n, s)), ar(aa(j, i, s)), '0' if (j == 0 and k % 2 == 0) else vr(d)))
    W = T.win
    for n in range(len(wins) - 2):
        j, t = wins[n + 2]
        for k, (s, j4) in enumerate(SJ): T.at(W[n] + k, k2_wread(n + 2, j, t, s, j4), ('r', j))
    B = [8 * wins.index((j, 0)) for j in range(jm + 1)]
    lastuse = {j: 8 * max(n for n, x in enumerate(wins) if x[0] == j) + 7 for j in range(18)}
    XR, BR, VO = 24, 40, 44
    BARS = {2: 7, 4: 7, 6: 9, 8: 11, 10: 13, 13: 17}
    wq = list(range(8 if cfg.w67at else cfg.npre, 18))
    aqn = [(j, x) for j in range(cfg.adist, 18) for x in k2_aload(j)]
    alast = {}
    cnt = {}
    XL = 16384 + WB; XD = EX - XL
    afirst = {}
    for j in range(jm + 1):
        b = B[j]; e = B[j + 1] if j < jm else b + 16 * cfg.nmerge
        ops = []
        while wq and wq[0] <= j + 6 and len(ops) < 8: ops += k2_wdma(wq.pop(0))
        al = []
        while aqn and len(al) < 8 + cfg.aextra.get(j, 0):
            ja, x = aqn.pop(0)
            assert ja < 5 or lastuse[ja - 5] < b, (ja, j)
            afirst.setdefault(ja, j); alast[ja] = j; al.append((x[0], x[1], ('a', ja)))
        st = []
        for fp in cfg.hs.get(j, []):
            st.append(hstore(fp, cnt.get(fp, 0))); cnt[fp] = cnt.get(fp, 0) + 1
        ops = ops + al[:4] + st[1:] + al[4:] + st[:1]
        ops += [('s_add_u32 s3, s35, %d\ns_add_u32 m0, s57, %d' % (i << 15, i * 1024), 'buffer_load_dwordx4 v47, s[8:11], s3 offen lds', 'x') for i in range(4) if cfg.xat[i] == j]
        slots = [p for p in range(b, e) if p % 8 in (4, 6)]
        slots = slots[2:] if (j in BARS and j < 12) else slots
        if j == jm: slots = slots[:len(ops)]
        place_dmas(T, ops, slots)
    assert not wq and not aqn
    for fp in range(4): assert fp in cfg.gst or cnt[fp] == (4 if fp < 3 else 2)
    for j, lim in BARS.items():
        def bar(lim=lim):
            S.wait_tag(lambda t: isinstance(t, tuple) and t[0] == 'w' and t[1] <= lim); S.emit('s_barrier')
        T.before(B[j] + 6, bar)
    lvl = 2; prevp = 0
    if not isinstance(cfg.hflag, tuple):
        prevp = cfg.hflag
        T.before(cfg.hflag, setflag(2, [('h', fp) for fp in cfg.gst], 'hflag'))
    KFIRST = {(3 if k == 's' else k): min(j for j in range(18) if KSEQ[j][0] == k) for k in (0, 1, 2, 's')}
    done = set()
    for grp, p in [(cfg.gst, None)] + list(cfg.hfl):
        if p is not None:
            lvl += 1
            assert lvl <= 4 and not any(tg in [('h', fp) for fp in grp] for f in T.fill[p:] for _, tg in f)
            T.before(p, setflag(lvl, [('h', fp) for fp in grp])); prevp = p
        done |= set(grp)
        first = min(k for k in range(1152) if any(tg == ('a', min(KFIRST[fp] for fp in grp)) for _, tg in T.fill[k]))
        assert first > prevp
        if cfg.atouch & (lvl - 1):
            assert tuple(grp) in ((0, 1), (2, 3))
            T.at(first + 1, 's_mov_b32 s3, %d\nbuffer_load_dword a252, v%d, s[20:23], s3 offen sc1' % (8192 * (grp[0] + 1), 16 if grp[0] == 0 else 9))
        pp = first - cfg.hpoll
        T.at(pp - pp % 8 + 5, POLL(lvl))
        def hc1(lvl=lvl):
            if lvl == 2: stamp(a, cfg, 'pre hchk')
            poll_check(S, a, cfg, 'L_ph%d' % lvl, 1, POLL(lvl), VPD, 1)
        def hc2(lvl=lvl):
            poll_check(S, a, cfg, 'L_ph%d' % lvl, 1, POLL(lvl), VPD, 2)
            if lvl == 2: stamp(a, cfg, 'hchk')
        T.before(first - 1, hc1); T.before(first, hc2)
    assert done == {0, 1, 2, 3}
    if cfg.lst == 1:
        for j in range(18):
            T.before(64 * j, lambda j=j: a.e('s_memtime s[94:95]\ns_waitcnt lgkmcnt(0)\nv_writelane_b32 v9, s94, %d' % (j + 2)))
    T.before(64 * 4, lambda: stamp(a, cfg, 'g2 s4'))
    T.before(64 * 15, lambda: stamp(a, cfg, 'g2 s15'))
    su = ['v_add_u32 v%d, %d, v%d' % (VT + 8 + t, WB, VT + t) for t in range(8)] + ['v_add_u32 v%d, %d, v%d' % (VT + 16 + t, SLOT7, VT + t) for t in range(8)]
    if cfg.cpf & 4: su = cpf_addr(22) + [cpf_load(252, 22)] + su
    if cfg.atouch:
        su += ['v_bfe_u32 v1, v0, 3, 2', 'v_mul_u32_u24 v1, 147456, v1', 'v_add_u32 v1, s91, v1', 'v_lshrrev_b32 v2, 5, v0', 'v_lshl_add_u32 v1, v2, 13, v1',
               'v_and_b32 v3, 7, v0', 's_lshl_b32 s60, s63, 3', 'v_add_u32 v3, s60, v3', 'v_lshl_add_u32 v16, v3, 7, v1']
        if cfg.atouch & 2: su += ['v_lshrrev_b32 v3, v2, v3', 'v_lshl_add_u32 v9, v3, 7, v1']
    left = T.spread(8, su, vper=1); assert not left and T.last < 64 * 2
    if cfg.cpf & 4:
        for j in cfg.cpfat: T.at(64 * j + 8 + 7, cpf_load(252, 22))
    su = srd_txt(24, P_OUT, 2048 * 2048)[:3] + srd_txt(12, P_WS, 0)[:3] + ['v_accvgpr_read_b32 v%d, a%d' % (BR + h, (246, 247, 250, 251)[h]) for h in range(4)]
    bu = lambda k: (4, 5, 6, 7, 10, 11, 12, 13)[k]
    for h in range(4): su += ['v_lshlrev_b32 v%d, 16, v%d' % (bu(2 * h), BR + h), 'v_and_b32 v%d, 0xffff0000, v%d' % (bu(2 * h + 1), BR + h)]
    su += ['v_and_b32 v%d, 1, v19' % VO, 'v_lshrrev_b32 v1, 1, v19', 'v_lshlrev_b32 v%d, 5, v%d' % (VO + 1, VO), 'v_lshl_add_u32 v%d, v1, 4, v%d' % (VO + 1, VO + 1),
           'v_and_b32 v2, 15, v0', 'v_lshrrev_b32 v3, 2, v2', 'v_xor_b32 v1, v1, v3', 'v_lshlrev_b32 v1, 4, v1', 'v_lshl_add_u32 v1, v%d, 3, v1' % VO,
           'v_lshl_add_u32 v1, v2, 6, v1', 'v_lshl_add_u32 v%d, v2, 11, v%d' % (VO, VO + 1),
           's_and_b32 s60, s28, 1', 's_lshl_b32 s60, s60, 12', 's_lshr_b32 s57, s28, 1', 's_mul_i32 s57, s57, %d' % XD, 's_add_u32 s57, s57, s60', 's_add_u32 s57, s57, %d' % XL,
           'v_xor_b32 v3, 32, v1', 'v_add_u32 v%d, s57, v1' % VA2, 'v_add_u32 v%d, s57, v3' % (VA2 + 1),
           'v_and_b32 v1, 3, v0', 'v_xor_b32 v1, v1, v19', 'v_lshrrev_b32 v2, 2, v0', 'v_lshlrev_b32 v2, 11, v2', 'v_lshl_add_u32 v47, v1, 4, v2',
           's_lshl_b32 s38, s63, 8', 's_lshl_b32 s60, s62, 6', 's_add_u32 s38, s38, s60', 's_lshl_b32 s35, s54, 11', 's_add_u32 s35, s35, s38',
           's_mul_i32 s52, s88, %d' % (12 * 16384), 's_add_u32 s52, s52, s47', 's_add_u32 s52, s52, %d' % WS_P, 'v_min_u32 v46, 2, v0', 'v_lshlrev_b32 v46, 7, v46', 's_mov_b32 s61, 7']
    XF = (41, 42, 55)
    for tp in range(3):
        su += ['s_add_u32 s60, s62, %d' % (tp + 1), 's_and_b32 s60, s60, 3', 's_mul_i32 s%d, s60, %d' % (4 + tp, 3 * 16384), 's_lshl_b32 s60, s60, 11',
               's_add_u32 s%d, s%d, s52' % (4 + tp, 4 + tp), 's_add_u32 s%d, s60, s90' % XF[tp], 's_add_u32 s%d, s%d, %d' % (4 + tp, 4 + tp, tp * 16384)]
    su += ['s_mul_i32 s60, s62, %d' % (3 * 16384), 's_add_u32 s52, s52, s60', 's_add_u32 s53, s52, 16384', 's_add_u32 s7, s52, 32768']
    lastsg = max(k for k, f in enumerate(T.fill) if any(tg == ('h', 3) for _, tg in f)) if 3 not in cfg.gst else 0
    left = T.spread(max(64 * 3, lastsg + 2), su, vper=1); assert not left and T.last < 64 * min(cfg.xat)
    for j in range(18):
        if k2_kind(j) != 's': continue
        su = []
        for u in range(2):
            for s in (0, 1):
                hi, lo = aa(j, 2 * u, s) + 2, aa(j, 2 * u + 1, s)
                su += ['v_accvgpr_read_b32 v%d, a%d' % (VA2 + 2 + r, hi + r) for r in range(2)]
                su += ['v_accvgpr_mov_b32 a%d, a%d' % (hi + r, lo + r) for r in range(2)]
                su += ['v_accvgpr_write_b32 a%d, v%d' % (lo + r, VA2 + 2 + r) for r in range(2)]
        assert alast[j] < j - 1
        left = T.spread(B[j - 1] + (8 if alast[j] < j - 2 else 32), su, vper=1); assert not left and T.last < B[j] - 1
    b = B[jm]; pw = 16 * cfg.nmerge; own = b + 3 * pw
    for tp in range(3):
        L = []
        for i in range(4):
            d0, d1 = acc2(2 * tp, i), acc2(2 * tp + 1, i)
            L += [cvt(d0, d0), cvt(d0 + 1, d0 + 2), cvt(d0 + 2, d1), cvt(d0 + 3, d1 + 2),
                  ('buffer_store_dwordx4 %s, v8, s[20:23], s%d offen offset:%d sc1' % (vr(d0), 4 + tp, i * 1024), ('P', tp))]
        left = T.sched(b + pw * (tp + 1), L); assert not left
        def xflag(tp=tp):
            S.wait_tag(lambda t: t == ('P', tp))
            S.emit('buffer_store_dword v%d, v%d, s[20:23], s%d offen offset:%d sc1' % (VFV, VFO, XF[tp], 128 * tp), tag='f')
        pf = b + pw * (tp + 1) + cfg.xfl[tp]
        pf += (5 - pf % 8) % 8
        assert T.last < pf
        if pf < 1152: T.before(pf, xflag)
        else: assert tp == 2
    px = B[jo] + 6
    T.before(px, lambda: S.wait_tag(lambda t: t in ('x', 'b')))
    su = ['ds_read_b64 %s, v%d offset:%d' % (vr(XR + 2 * k, 2), VA2 + (k & 1), (k >> 1) * 1024) for k in range(8)]
    for i in range(4):
        for h in range(4):
            d = acc2(6 + (h >> 1), i) + 2 * (h & 1); src = XR + 4 * i + h
            su += ['v_lshlrev_b32 v1, 16, v%d' % src, 'v_and_b32 v2, 0xffff0000, v%d' % src, 'v_add_f32 v1, v1, v%d' % bu(2 * h), 'v_add_f32 v2, v2, v%d' % bu(2 * h + 1),
                   'v_add_f32 v%d, v%d, v1' % (d, d), 'v_add_f32 v%d, v%d, v2' % (d + 1, d + 1)]
    assert px > B[jo] + 2
    left = T.sched(px, su, vper=1); assert not left and T.last < own - 1, (T.last, own)
    rb = lambda jx, i: RB + (jx * 4 + i) * 4
    XP = 'buffer_load_dword v%d, v46, s[20:23], s87 offen sc1' % VPD
    PL = lambda jx, i: 'buffer_load_dwordx4 %s, v8, s[20:23], %s offen offset:%d sc1' % (vr(rb(jx, i)), ('s52', 's53', 's7')[jx], i * 1024)
    def fetch(o, n):
        for jx in range(3):
            o.e('s_bitcmp1_b32 s60, %d\ns_cbranch_scc0 %s_n%d' % (jx, n, jx))
            for i in range(4): o.e(PL(jx, i))
            o.label('%s_n%d' % (n, jx))
        o.e('s_andn2_b32 s61, s61, s60')
    if cfg.ra:
        pp, pc, n_, stp = cfg.ra
        T.at(own + pp, XP)
        T.before(own + pc - 1, lambda: S.emit('v_cmp_le_u32 vcc, 1, v%d' % VPD))
        T.before(own + pc, lambda: a.e('s_and_b32 s60, vcc_lo, %d\ns_andn2_b32 s61, s61, s60' % ((1 << n_) - 1)))
        sl = [p for p in range(own + pc + 1, 1152) if p % 8 in stp and not any('buffer_' in x for x, _ in T.fill[p])]
        for jx in range(n_):
            for i in range(4):
                p = sl.pop(0)
                if i == 0: T.at(p - 1, 's_bitcmp1_b32 s60, %d\ns_cselect_b32 s14, 0x%x, 0' % (jx, WS_BYTES))
                T.at(p, PL(jx, i).replace('s[20:23]', 's[12:15]'), 'ra')
    T.at(1152 - cfg.xp, XP)
    T.emit(S)
    if cfg.lst == 1: a.e('s_memtime s[94:95]\ns_waitcnt lgkmcnt(0)\nv_writelane_b32 v9, s94, 20\nv_accvgpr_write_b32 a253, v9')
    stamp(a, cfg, 'g2 end')
    if pf >= 1152: xflag()
    a.e('s_mov_b32 s99, 0')
    S.need({('v', VPD)})
    assert not any(t == 'ra' for t, _ in S.vm)
    stamp(a, cfg, 'xpoll')
    a.label('L_xtop')
    a.e('v_cmp_le_u32 vcc, 1, v%d\ns_cmp_lt_u32 s99, %d\ns_cselect_b32 s3, 0, 7\ns_or_b32 s60, vcc_lo, s3\ns_and_b32 s60, s60, s61' % (VPD, SPIN_MAX))
    fetch(a, 'L_xe')
    a.e('s_cmp_eq_u32 s61, 0\ns_cbranch_scc1 L_xdone')
    if cfg.sleep: a.e('s_sleep %d' % cfg.sleep)
    a.e(XP + '\ns_add_u32 s99, s99, 1\ns_waitcnt vmcnt(0)\ns_branch L_xtop')
    a.label('L_xdone')
    stamp(a, cfg, 'flag01')
    a.e('s_and_b32 s3, s60, 3\ns_cmp_eq_u32 s3, 0\ns_cbranch_scc1 L_xadd\ns_waitcnt vmcnt(0)')
    a.label('L_xadd')
    stamp(a, cfg, 'xland')
    S = Stream(a)
    def addp(jx, i):
        r = rb(jx, i)
        for h in range(4):
            S.emit('v_lshlrev_b32 v%d, 16, v%d\nv_and_b32 v%d, 0xffff0000, v%d' % (24 + 2 * h, r + h, 25 + 2 * h, r + h))
        for h in range(4):
            d = acc2(6 + (h >> 1), i) + 2 * (h & 1)
            S.emit(pk('add', d, d, 24 + 2 * h))
    for jx in range(2):
        for i in range(4): addp(jx, i)
    stamp(a, cfg, 'flag2')
    S.vm = [(None, {('v', rb(2, i) + k) for k in range(4)}) for i in range(4)]
    for i in range(4):
        addp(2, i)
        d0, d1 = acc2(6, i), acc2(7, i)
        S.emit('\n'.join([cvt(d0, d0), cvt(d0 + 1, d0 + 2), cvt(d0 + 2, d1), cvt(d0 + 3, d1 + 2)]))
        S.emit('s_add_u32 s3, s35, %d' % (i << 15))
        S.emit('v_permlane16_swap_b32 v%d, v%d\nv_permlane16_swap_b32 v%d, v%d' % (d0, d0 + 2, d0 + 1, d0 + 3))
        S.emit('buffer_store_dwordx4 %s, v%d, s[24:27], s3 offen %s' % (vr(d0), VO, cfg.ost))
    if cfg.stamps:
        stamp(a, cfg, 'issued')
        a.e('s_waitcnt vmcnt(0)')
        stamp(a, cfg, 'end')
    stamp_flush(a, cfg)
    a.e('s_endpgm')
    for x in OUTLINE: a.raw(x.rstrip('\n'))
    a.label('L_end')
    a.e('s_endpgm')
    return hazard.fix(a.text())

def gen_amp(cfg):
    na, nb, mult, wg = cfg.amp
    ia, ib = STAMPS.index(na), STAMPS.index(nb)
    a = Asm()
    a.e('s_cmp_ge_u32 s2, 1\ns_cbranch_scc1 KA_end')
    a.e('s_load_dwordx2 s[4:5], s[0:1], 80\ns_waitcnt lgkmcnt(0)')
    a.srd(8, 4, WS_BYTES)
    a.e('s_mov_b32 s12, %d\ns_mov_b32 s13, %d' % (WS_TS + ia * 8, WS_TS + ib * 8))
    if wg >= 0: a.e('v_mov_b32 v1, %d' % (wg * 1024))
    else: a.e('v_lshlrev_b32 v1, 10, v0')
    for k in range(4):
        a.e('buffer_load_dword v%d, v1, s[8:11], s12 offen\nbuffer_load_dword v%d, v1, s[8:11], s13 offen' % (2 + k, 6 + k))
        if wg < 0: a.e('v_add_u32 v1, 0x10000, v1')
    a.e('s_memrealtime s[16:17]\ns_waitcnt vmcnt(0) lgkmcnt(0)')
    a.e('v_min_u32 v2, v2, v3\nv_min_u32 v4, v4, v5\nv_min_u32 v2, v2, v4\nv_max_u32 v6, v6, v7\nv_max_u32 v8, v8, v9\nv_max_u32 v6, v6, v8')
    for x in allreduce64('v_min_u32', [2], [10]) + allreduce64('v_max_u32', [6], [10]): a.e(x)
    a.e('v_sub_u32 v2, v6, v2\ns_nop 1\nv_readfirstlane_b32 s14, v2\ns_nop 3')
    a.e('s_min_u32 s14, s14, 20000\ns_mul_i32 s14, s14, %d' % mult)
    a.label('KA_spin')
    a.e('s_memrealtime s[18:19]\ns_waitcnt lgkmcnt(0)\ns_sub_u32 s15, s18, s16\ns_cmp_lt_u32 s15, s14\ns_cbranch_scc1 KA_spin')
    a.label('KA_end')
    a.e('s_endpgm')
    return hazard.fix(a.text())

def build(cfg, header=''):
    body = gen(cfg)
    launches = [(NAME + '_kernel', 256, 256, LDS_BYTES)]; kernels = [(NAME + '_kernel', body, 512, 256)]
    if cfg.amp:
        launches.append(('amp_kernel', 1, 64, 0)); kernels.append(('amp_kernel', gen_amp(cfg), 16, 16))
    txt = build_file(launches, kernels)
    if not (cfg.aslist or cfg.amp):
        txt = txt.replace('; @launch kernel=%s_kernel grid' % NAME, '; @launch grid')
    return header + txt

if __name__ == '__main__':
    HEADER = open('cdna_kernels/%s.s.ref' % NAME).read().split('; Override launch')[0]
    out = sys.argv[1]
    kw = {}
    for x in sys.argv[2:]:
        k, v = x.split('=', 1); kw[k] = eval(v)
    open(out, 'w').write(build(Cfg(**kw), HEADER))
    print(out, 'left after last MFMA:', gen.info, gen.info2)
```
